```python
import torch

def _softmax(x, axis=-1):
    return torch.softmax(x, dim=axis)
def _gelu(x):
    return torch.nn.functional.gelu(x, approximate="tanh")
def _silu(x):
    return torch.nn.functional.silu(x)
def _sigmoid(x):
    return torch.sigmoid(x)
def _layernorm(x, axis=-1, eps=1e-5):
    m = x.mean(dim=axis, keepdim=True)
    v = x.var(dim=axis, keepdim=True, unbiased=False)
    return (x - m) / torch.sqrt(v + eps)
def _scatter_add(tgt, idx, src, axis=0):
    return tgt.clone().index_add_(axis, idx, src)
def _segment_sum(src, seg, n):
    out = torch.zeros((n,) + src.shape[1:], dtype=src.dtype)
    return out.index_add_(0, seg, src)
def _pad(x, pw):
    flat = tuple(v for pair in reversed(pw) for v in pair)
    return torch.nn.functional.pad(x, flat)

kernel_name = 'parallel_sum__ssm_conv_s4__dense_activation_relu__prompt'

def setup_inputs():

    _w = (lambda a: (lambda t: t.to(torch.bfloat16) if t.is_floating_point() else t)(torch.as_tensor(a)))
    def _A_setup():
        B, L, D, N = 1, 2048, 448, 256
        A_re = -(lambda _x: torch.exp(torch.as_tensor(_x)))((lambda *s: torch.randn(*s, dtype=torch.bfloat16) * 6.4)(D, N))
        A_im = torch.pi * (lambda *s: torch.randn(*s, dtype=torch.bfloat16) * 0.1)(D, N)
        B_re = (lambda *s: torch.randn(*s, dtype=torch.bfloat16) * 0.2)(D, N)
        B_im = (lambda *s: torch.randn(*s, dtype=torch.bfloat16) * 0.2)(D, N)
        C_re = (lambda *s: torch.randn(*s, dtype=torch.bfloat16) * 0.2)(D, N)
        C_im = (lambda *s: torch.randn(*s, dtype=torch.bfloat16) * 0.2)(D, N)
        log_dt = (lambda *s: torch.randn(*s, dtype=torch.bfloat16) * 0.1)(D) * 0.5 - 4.0
        Dskip = (lambda *s: torch.randn(*s, dtype=torch.bfloat16) * 0.1)(D)
        return {
            "u": _w((lambda *s: torch.randn(*s, dtype=torch.bfloat16) * 0.05)(B, L, D)),
            "A_re": _w(A_re),
            "A_im": _w(A_im),
            "B_re": _w(B_re),
            "B_im": _w(B_im),
            "C_re": _w(C_re),
            "C_im": _w(C_im),
            "log_dt": _w(log_dt),
            "Dskip": _w(Dskip),
        }
    _A_in = _A_setup()

    def _B_setup():
        B, S, D, Dff = 1, 2048, 448, 1792
        return {
            "x": _w((lambda *s: torch.randn(*s, dtype=torch.bfloat16) * 0.05)(B, S, D)),
            "w1": _w((lambda *s: torch.randn(*s, dtype=torch.bfloat16) * 0.05)(D, Dff)),
            "w2": _w((lambda *s: torch.randn(*s, dtype=torch.bfloat16) * 0.05)(Dff, D)),
        }
    _B_in = _B_setup()

    return {
        "A_u": _A_in["u"],
        "A_A_re": _A_in["A_re"],
        "A_A_im": _A_in["A_im"],
        "A_B_re": _A_in["B_re"],
        "A_B_im": _A_in["B_im"],
        "A_C_re": _A_in["C_re"],
        "A_C_im": _A_in["C_im"],
        "A_log_dt": _A_in["log_dt"],
        "A_Dskip": _A_in["Dskip"],
        "B_x": _B_in["x"],
        "B_w1": _B_in["w1"],
        "B_w2": _B_in["w2"],
    }

def reference(A_u, A_A_re, A_A_im, A_B_re, A_B_im, A_C_re, A_C_im, A_log_dt, A_Dskip, B_x, B_w1, B_w2):
    def _A_ref(u, A_re, A_im, B_re, B_im, C_re, C_im, log_dt, Dskip):
        Bsz, L, D = u.shape
        dt = torch.exp(log_dt)[:, None]
        A = A_re + 1j * A_im
        Bc = B_re + 1j * B_im
        Cc = C_re + 1j * C_im
        logdA = dt * A
        dB = dt * Bc
        l = (lambda x, dt: x.to(dt))(torch.arange(L), A_re.dtype)
        P = torch.exp(logdA[:, :, None] * l[None, None, :])
        K = torch.einsum("dn,dnl,dn->dl", Cc, P, dB).real
        L2 = 2 * L
        Kp = _pad(K, ((0, 0), (0, L)))
        up = (lambda x, *d: x.permute(*d))(u, 0, 2, 1)
        up = _pad(up, ((0, 0), (0, 0), (0, L)))
        Kf = (lambda x, axes=(-2,-1): torch.fft.rfft2(x.float(), dim=axes))(Kp[:, None, :], axes=(-2, -1))
        Uf = (lambda x, axes=(-2,-1): torch.fft.rfft2(x.float(), dim=axes))(up[:, :, None, :], axes=(-2, -1))
        Yf = Uf * Kf[None, :, :, :]
        y = (lambda x, s, axes=(-2,-1): torch.fft.irfft2(x, s=s, dim=axes).to(torch.bfloat16))(Yf, (1, L2), axes=(-2, -1))[:, :, 0, :L]
        y = (lambda x, *d: x.permute(*d))(y, 0, 2, 1) + u * Dskip[None, None, :]
        return y

    def _B_ref(x, w1, w2):
        h = torch.einsum("bsd,df->bsf", x, w1)
        zero = torch.zeros_like(h)
        h = torch.maximum(h, zero)
        return torch.einsum("bsf,fd->bsd", h, w2)

    x = A_u
    xn = _layernorm(x, axis=-1)
    return x + _A_ref(xn, A_A_re, A_A_im, A_B_re, A_B_im, A_C_re, A_C_im, A_log_dt, A_Dskip) + _B_ref(xn, B_w1, B_w2)
```

```python
import re

TRANS = ("v_exp_f32", "v_log_f32", "v_rcp_f32", "v_rsq_f32", "v_sqrt_f32", "v_sin_f32", "v_cos_f32", "v_rcp_iflag_f32")
VCC = (106, 107); EXEC = (126, 127); M0 = 124

def split_ops(s):
    out = []; depth = 0; cur = ""
    for ch in s:
        if ch == "[": depth += 1
        if ch == "]": depth -= 1
        if ch == "," and depth == 0:
            out.append(cur.strip()); cur = ""
        else:
            cur += ch
    if cur.strip(): out.append(cur.strip())
    return out

def regs_of(tok):
    t = tok.strip()
    t = t.split()[0] if t else t
    t = t.lstrip("-")
    if t.startswith("abs(") : t = t[4:-1]
    if t.startswith("|"): t = t.strip("|")
    m = re.fullmatch(r"([vsa])\[(\d+):(\d+)\]", t)
    if m: return m.group(1), set(range(int(m.group(2)), int(m.group(3)) + 1))
    m = re.fullmatch(r"([vsa])(\d+)", t)
    if m: return m.group(1), {int(m.group(2))}
    if t == "vcc": return "s", set(VCC)
    if t == "vcc_lo": return "s", {106}
    if t == "vcc_hi": return "s", {107}
    if t == "exec": return "s", set(EXEC)
    if t == "exec_lo": return "s", {126}
    if t == "exec_hi": return "s", {127}
    if t == "m0": return "s", {M0}
    return None, set()

class Ins:
    __slots__ = ("text", "mn", "cls", "vw", "vr", "sw", "sr", "states", "passes", "mA", "mB", "mC", "dpp", "target", "uncond", "wide_store", "lds_dma", "trans", "labels", "ends", "lanesel", "perm", "rdlane", "sdata")
    def __init__(self, text):
        self.text = text; self.labels = []
        t = text.split(";")[0].strip()
        parts = t.split(None, 1)
        mn = parts[0]; rest = parts[1] if len(parts) > 1 else ""
        for suf in ("_e32", "_e64", "_dpp", "_sdwa"):
            if mn.endswith(suf): mn = mn[: -len(suf)]
        self.mn = mn
        ops = split_ops(rest)
        self.vw = set(); self.vr = set(); self.sw = set(); self.sr = set()
        self.states = 1; self.passes = 0; self.mA = self.mB = self.mC = set()
        self.dpp = any(k in rest for k in ("quad_perm", "row_shl", "row_shr", "row_ror", "wave_shl", "wave_shr", "wave_rol", "wave_ror", "row_mirror", "row_half_mirror", "row_bcast", "row_newbcast"))
        self.target = None; self.uncond = False; self.wide_store = False; self.lds_dma = False
        self.trans = False; self.ends = False; self.lanesel = set(); self.perm = False; self.rdlane = False; self.sdata = set()
        def rd(tok):
            k, r = regs_of(tok)
            if k == "v": self.vr |= r
            elif k == "a": self.vr |= {x + 1000 for x in r}
            elif k == "s": self.sr |= r
        def wr(tok):
            k, r = regs_of(tok)
            if k == "v": self.vw |= r
            elif k == "a": self.vw |= {x + 1000 for x in r}
            elif k == "s": self.sw |= r
        def vset(tok):
            k, r = regs_of(tok)
            if k == "v": return set(r)
            if k == "a": return {x + 1000 for x in r}
            return set()
        if mn.startswith("v_mfma"):
            self.cls = "mfma"
            wr(ops[0]); [rd(o) for o in ops[1:4]]
            self.mA = vset(ops[1]); self.mB = vset(ops[2]); self.mC = vset(ops[3])
            self.passes = 8 if "32x32" in mn else 4
        elif mn.startswith("v_"):
            self.cls = "valu"
            self.trans = mn in TRANS
            if mn.startswith("v_cmp"):
                wr(ops[0]); [rd(o) for o in ops[1:]]
                if mn.startswith("v_cmpx"): self.sw |= set(EXEC)
            elif mn in ("v_readfirstlane_b32", "v_readlane_b32"):
                wr(ops[0]); [rd(o) for o in ops[1:]]; self.rdlane = True
                if mn == "v_readlane_b32": self.lanesel = regs_of(ops[2])[1] if regs_of(ops[2])[0] == "s" else set()
            elif mn == "v_writelane_b32":
                wr(ops[0]); rd(ops[0]); [rd(o) for o in ops[1:]]
                self.lanesel = regs_of(ops[2])[1] if regs_of(ops[2])[0] == "s" else set()
            elif mn in ("v_add_co_u32", "v_sub_co_u32", "v_subrev_co_u32", "v_addc_co_u32", "v_subb_co_u32", "v_mad_u64_u32", "v_div_scale_f32"):
                wr(ops[0]); wr(ops[1]); [rd(o) for o in ops[2:]]
            elif mn.startswith("v_permlane") and "swap" in mn:
                wr(ops[0]); wr(ops[1]); rd(ops[0]); rd(ops[1]); self.perm = True
            else:
                wr(ops[0]); [rd(o) for o in ops[1:]]
                if mn.startswith(("v_fmac", "v_dot2c", "v_mac", "v_pk_fmac")) or self.dpp or "op_sel" in rest and mn.startswith("v_cvt"):
                    rd(ops[0])
                if mn == "v_cndmask_b32" and len(ops) == 3: self.sr |= set(VCC)
        elif mn.startswith("buffer_") or mn.startswith("global_") or mn.startswith("flat_"):
            self.cls = "vmem"
            mods = rest
            if mn in ("buffer_wbl2", "buffer_inv"):
                pass
            elif mn.startswith("buffer_load"):
                if re.search(r"\blds\b", mods):
                    self.lds_dma = True; [rd(o) for o in ops]; self.sr.add(M0)
                else:
                    wr(ops[0]); [rd(o) for o in ops[1:]]
            elif mn.startswith("buffer_store"):
                [rd(o) for o in ops]; self.sdata = vset(ops[0])
                self.wide_store = mn.endswith(("x3", "x4"))
            elif mn.startswith("buffer_atomic"):
                [rd(o) for o in ops]
                if re.search(r"\bsc0\b", mods): wr(ops[0])
            elif mn.startswith("global_load_lds"):
                self.lds_dma = True; [rd(o) for o in ops]; self.sr.add(M0)
            elif mn.startswith("global_load"):
                wr(ops[0]); [rd(o) for o in ops[1:]]
            elif mn.startswith("global_store"):
                [rd(o) for o in ops]; self.sdata = vset(ops[1]); self.wide_store = mn.endswith(("x3", "x4"))
            elif mn.startswith("global_atomic"):
                if re.search(r"\bsc0\b", mods): wr(ops[0]); [rd(o) for o in ops[1:]]
                else: [rd(o) for o in ops]
            else:
                raise ValueError("unknown vmem " + text)
        elif mn.startswith("ds_"):
            self.cls = "ds"
            if mn.startswith(("ds_read", "ds_bpermute", "ds_permute", "ds_swizzle")) or "_rtn" in mn:
                wr(ops[0]); [rd(o) for o in ops[1:]]
                if "d16" in mn: rd(ops[0])
            else:
                [rd(o) for o in ops]
        elif mn.startswith("s_"):
            if mn == "s_nop":
                self.cls = "nop"; self.states = int(ops[0], 0) + 1
            elif mn in ("s_branch",) or mn.startswith("s_cbranch"):
                self.cls = "branch"; self.target = ops[0]; self.uncond = mn == "s_branch"
                if "vcc" in mn: self.sr |= set(VCC)
                if "exec" in mn: self.sr |= set(EXEC)
            elif mn == "s_endpgm":
                self.cls = "salu"; self.ends = True
            elif mn in ("s_waitcnt", "s_barrier", "s_setprio", "s_sleep", "s_sethalt", "s_setreg_imm32_b32"):
                self.cls = "salu"
            elif mn.startswith(("s_load", "s_buffer_load", "s_memtime", "s_memrealtime", "s_atomic")):
                self.cls = "smem"; wr(ops[0]); [rd(o) for o in ops[1:]]
            elif mn.startswith("s_cmp") or mn.startswith("s_bitcmp"):
                self.cls = "salu"; [rd(o) for o in ops]
            else:
                self.cls = "salu"; wr(ops[0]); [rd(o) for o in ops[1:]]
                if "saveexec" in mn: self.sw |= set(EXEC); self.sr |= set(EXEC)
                if mn in ("s_addk_i32", "s_mulk_i32", "s_cmov_b32", "s_cmov_b64"): rd(ops[0])
        else:
            raise ValueError("unknown instr: " + text)

def need(p, c):
    n = 0
    pv = p.cls == "valu"; cv = c.cls == "valu"
    if pv:
        if c.cls == "mfma" and (p.vw & c.vr): n = max(n, 2)
        if c.cls == "mfma" and (p.sw & set(EXEC)): n = max(n, 4)
        if p.trans and cv and not c.trans and (p.vw & c.vr): n = max(n, 1)
        if p.trans and cv and c.trans and (p.vw & c.vr): n = max(n, 1)
        if p.sw:
            if cv and (p.sw & c.lanesel): n = max(n, 4)
            if cv and (p.sw & c.sr): n = max(n, 2)
            if c.cls == "vmem" and (p.sw & c.sr): n = max(n, 5)
            if cv and (p.sw & set(EXEC)) and (c.rdlane or c.perm): n = max(n, 4)
            if cv and (p.sw & set(EXEC)) and c.dpp: n = max(n, 5)
            if c.cls == "branch" and (p.sw & c.sr): n = max(n, 5 if (p.sw & (set(EXEC) | set(VCC))) else 0)
            if c.cls in ("salu", "smem") and (p.sw & c.sr): n = max(n, 1)
        if cv and c.rdlane and (p.vw & c.vr): n = max(n, 1)
        if cv and c.dpp and (p.vw & c.vr): n = max(n, 2)
        if cv and c.perm and (p.vw & c.vr): n = max(n, 2)
    if p.cls == "mfma":
        big = p.passes == 8
        if c.cls == "mfma":
            if p.vw & (c.mA | c.mB): n = max(n, 12 if big else 8)
            if p.vw & c.mC:
                if not (p.vw == c.mC and p.passes == c.passes): n = max(n, 10 if big else 6)
            if (p.vw & c.vw) and not (p.vw == c.vw and p.passes == c.passes): n = max(n, 10 if big else 6)
        elif c.cls in ("valu", "vmem", "ds"):
            if p.vw & (c.vr | c.vw): n = max(n, 12 if big else 8)
            if cv and (p.mC & c.vw): n = max(n, 7 if big else 3)
    if p.cls == "salu" and M0 in p.sw and (c.lds_dma or "addtid" in c.mn or c.mn.startswith("s_movrel")): n = max(n, 1)
    if p.wide_store:
        if cv and (p.sdata & c.vw): n = max(n, 2)
        elif (p.sdata & c.vw): n = max(n, 1)
    return n

MAXD = 13
def fix_hazards(lines):
    items = []
    pend_labels = []
    for ln in lines:
        s = ln.strip()
        if not s or s.startswith(";") or s.startswith("."):
            items.append(("raw", ln)); continue
        m = re.fullmatch(r"([A-Za-z_.$][\w.$]*):", s.split(";")[0].strip())
        if m:
            items.append(("label", m.group(1))); continue
        items.append(("ins", Ins(s)))
    insl = [o for k, o in items if k == "ins"]
    idx = {id(o): i for i, o in enumerate(insl)}
    label_at = {}
    i = 0
    for k, o in items:
        if k == "label": label_at[o] = i
        elif k == "ins": i += 1
    branch_preds = {}
    for i, o in enumerate(insl):
        if o.target is not None:
            if o.target not in label_at: raise ValueError("unknown label " + o.target)
            branch_preds.setdefault(label_at[o.target], []).append(i)
    pad = [0] * len(insl)
    nins = 0
    for ci, c in enumerate(insl):
        if c.cls in ("nop",): continue
        worst = 0
        stack = [(ci, 0)]
        seen = {}
        while stack:
            j, dist = stack.pop()
            preds = []
            if j > 0 and not insl[j - 1].uncond and not insl[j - 1].ends: preds.append(j - 1)
            preds += branch_preds.get(j, [])
            dist_j = dist + (pad[j] if j != ci else 0)
            for p in preds:
                if dist_j >= MAXD: continue
                if seen.get(p, 99) <= dist_j: continue
                seen[p] = dist_j
                n = need(insl[p], c)
                if n > dist_j: worst = max(worst, n - dist_j)
                stack.append((p, dist_j + insl[p].states))
        if worst > 0:
            pad[ci] = worst; nins += 1
    out = []
    i = 0
    for k, o in items:
        if k == "raw": out.append(o)
        elif k == "label": out.append(o + ":")
        else:
            p = pad[i]
            while p > 0:
                q = min(p, 16); out.append(f"  s_nop {q-1}"); p -= q
            out.append("  " + o.text); i += 1
    return out, nins

class Asm:
    def __init__(self):
        self.lines = []; self.uid = 0
    def __call__(self, s):
        for ln in s.strip("\n").split("\n"):
            self.lines.append(ln.strip())
    def label(self, name): self.lines.append(name + ":")
    def newlabel(self, base):
        self.uid += 1
        return f"L_{base}_{self.uid}"
    def comment(self, s): self.lines.append("; " + s)

def kernel_text(name, asm, vgpr, sgpr=96):
    body, n = fix_hazards(asm.lines)
    txt = f".text\n.globl {name}\n.p2align 8\n.type {name},@function\n{name}:\n" + "\n".join(body) + "\n"
    desc = f""".section .rodata,"a"
.p2align 6
.amdhsa_kernel {name}
  .amdhsa_next_free_vgpr {vgpr}
  .amdhsa_next_free_sgpr {sgpr}
  .amdhsa_accum_offset {((vgpr + 3) // 4) * 4}
  .amdhsa_group_segment_fixed_size 0
  .amdhsa_kernarg_size 120
  .amdhsa_user_sgpr_count 2
  .amdhsa_user_sgpr_kernarg_segment_ptr 1
  .amdhsa_system_sgpr_workgroup_id_x 1
.end_amdhsa_kernel
"""
    return txt, desc, n
```

```python
from asmgen import Asm, kernel_text
import math

WS_H    = 0x000000
WS_W2F  = 0x700000
WS_W1F  = 0x900000
WS_XNF  = 0xB00000
WS_XNT  = 0xD00000
WS_KREV = 0xF00000
WS_AOUT = 0x1100000
SZ_H = 64*112*1024; SZ_WF = 1568*1024; SZ_X = 2048*448*2

def load_ptrs(a):
    a("""s_load_dwordx16 s[16:31], s[0:1], 0
    s_load_dwordx8 s[32:39], s[0:1], 64
    s_load_dwordx4 s[40:43], s[0:1], 96
    s_load_dwordx2 s[44:45], s[0:1], 112""")

def srd(a, dst, ptr, size, off=0):
    if off:
        a(f"s_add_u32 s{dst}, s{ptr}, {off:#x}")
        a(f"s_addc_u32 s{dst+1}, s{ptr+1}, 0")
    else:
        a(f"s_mov_b32 s{dst}, s{ptr}")
        a(f"s_mov_b32 s{dst+1}, s{ptr+1}")
    a(f"s_mov_b32 s{dst+2}, {size:#x}")
    a(f"s_mov_b32 s{dst+3}, 0x00020000")

def f32bits(x):
    import struct
    return struct.unpack("<I", struct.pack("<f", x))[0]

def bf_round(a, dst, src):
    a(f"v_cvt_pk_bf16_f32 v{dst}, v{src}, v{src}")
    a(f"v_lshlrev_b32 v{dst}, 16, v{dst}")

def unpack(a, lo, hi, src):
    a(f"v_lshlrev_b32 v{lo}, 16, v{src}")
    a(f"v_and_b32 v{hi}, 0xffff0000, v{src}")

def body_ln(a, sc=""):
    X = 8; F = 40
    srd(a, 48, 16, SZ_X)
    srd(a, 52, 44, SZ_X, WS_XNF)
    srd(a, 56, 44, SZ_X, WS_XNT)
    a("v_lshrrev_b32 v1, 3, v0")
    a("v_and_b32 v2, 7, v0")
    a("s_mul_i32 s4, s3, 28672")
    a("v_mul_u32_u24 v3, 896, v1")
    a("v_lshl_add_u32 v3, v2, 4, v3")
    for j in range(7):
        a(f"buffer_load_dwordx4 v[{X+4*j}:{X+4*j+3}], v3, s[48:51], s4 offen offset:{128*j}")
    a("v_lshrrev_b32 v4, 1, v2")
    a("v_lshlrev_b32 v4, 10, v4")
    a("v_and_b32 v5, 1, v2")
    a("v_lshl_add_u32 v4, v5, 9, v4")
    a("v_lshl_add_u32 v4, v1, 4, v4")
    a("v_mul_u32_u24 v5, 912, v1")
    a("v_lshl_add_u32 v5, v2, 4, v5")
    for j in range(7):
        a(f"s_waitcnt vmcnt({6-j})")
        for k in range(4):
            unpack(a, F+8*j+2*k, F+8*j+2*k+1, X+4*j+k)
    a(f"v_add_f32 v6, v{F}, v{F+1}")
    a(f"v_add_f32 v7, v{F+2}, v{F+3}")
    a(f"v_add_f32 v96, v{F+4}, v{F+5}")
    a(f"v_add_f32 v97, v{F+6}, v{F+7}")
    accs = [6, 7, 96, 97]
    for i in range(8, 56):
        r = accs[i % 4]
        a(f"v_add_f32 v{r}, v{r}, v{F+i}")
    a("v_add_f32 v6, v6, v7")
    a("v_add_f32 v96, v96, v97")
    a("v_add_f32 v6, v6, v96")
    def red8(r):
        a(f"v_add_f32_dpp v{r}, v{r}, v{r} quad_perm:[1,0,3,2] row_mask:0xf bank_mask:0xf")
        a(f"v_add_f32_dpp v{r}, v{r}, v{r} quad_perm:[2,3,0,1] row_mask:0xf bank_mask:0xf")
        a(f"v_add_f32_dpp v{r}, v{r}, v{r} row_half_mirror row_mask:0xf bank_mask:0xf")
    red8(6)
    a(f"s_mov_b32 s5, {f32bits(1.0/448):#x}")
    a("v_mul_f32 v6, s5, v6")
    bf_round(a, 98, 6)
    for i in range(4):
        a(f"v_mov_b32 v{[7,96,97,99][i]}, 0")
    accs = [7, 96, 97, 99]
    for i in range(56):
        t = 100 + (i % 4)
        a(f"v_sub_f32 v{t}, v{F+i}, v6")
        a(f"v_fmac_f32 v{accs[i%4]}, v{t}, v{t}")
    a("v_add_f32 v7, v7, v96")
    a("v_add_f32 v97, v97, v99")
    a("v_add_f32 v7, v7, v97")
    red8(7)
    a("v_mul_f32 v7, s5, v7")
    bf_round(a, 7, 7)
    a(f"v_add_f32 v7, {f32bits(1e-5):#x}, v7")
    bf_round(a, 7, 7)
    a("v_sqrt_f32 v7, v7")
    bf_round(a, 7, 7)
    a("v_rcp_f32 v7, v7")
    for j in range(7):
        for k in range(4):
            lo = F+8*j+2*k; hi = lo+1; d = X+4*j+k
            a(f"v_sub_f32 v{lo}, v{lo}, v98")
            a(f"v_sub_f32 v{hi}, v{hi}, v98")
            a(f"v_cvt_pk_bf16_f32 v{d}, v{lo}, v{hi}")
            unpack(a, lo, hi, d)
            a(f"v_mul_f32 v{lo}, v{lo}, v7")
            a(f"v_mul_f32 v{hi}, v{hi}, v7")
            a(f"v_cvt_pk_bf16_f32 v{d}, v{lo}, v{hi}")
        a(f"s_add_u32 s6, s4, {4096*j}")
        a(f"buffer_store_dwordx4 v[{X+4*j}:{X+4*j+3}], v4, s[52:55], s6 offen {sc}")
        a(f"ds_write_b128 v5, v[{X+4*j}:{X+4*j+3}] offset:{128*j}")
    a("v_and_b32 v1, 63, v0")
    a("v_lshrrev_b32 v2, 4, v1")
    a("v_bfe_u32 v3, v1, 2, 2")
    a("v_and_b32 v6, 3, v1")
    a("v_lshl_add_u32 v7, v2, 3, v3")
    a("v_mul_u32_u24 v7, 912, v7")
    a("v_lshl_add_u32 v7, v6, 3, v7")
    a("v_lshrrev_b32 v6, 6, v0")
    a("v_lshl_add_u32 v7, v6, 5, v7")
    a("v_and_b32 v3, 15, v1")
    a("v_lshl_add_u32 v3, v6, 4, v3")
    a("v_lshlrev_b32 v3, 12, v3")
    a("v_lshl_add_u32 v3, v2, 4, v3")
    a("s_lshl_b32 s6, s3, 6")
    a("s_waitcnt lgkmcnt(0)")
    a("s_barrier")
    for t in range(7):
        r = X + 4*t
        a(f"ds_read_b64_tr_b16 v[{r}:{r+1}], v7 offset:{128*t}")
        a(f"ds_read_b64_tr_b16 v[{r+2}:{r+3}], v7 offset:{128*t+4*912}")
    for t in range(7):
        r = X + 4*t
        a(f"s_waitcnt lgkmcnt({2*(6-t)})")
        a(f"buffer_store_dwordx4 v[{r}:{r+3}], v3, s[56:59], s6 offen {sc}")
        if t < 6: a(f"v_add_u32 v3, {64*4096}, v3")
    a("s_endpgm")

def relayout_issue(a, W):
    srd(a, 48, 36, SZ_WF)
    srd(a, 52, 38, SZ_WF)
    a("v_lshrrev_b32 v1, 5, v0")
    a("v_and_b32 v2, 31, v0")
    a("s_lshr_b32 s4, s3, 3")
    a("s_mul_i32 s4, s4, 57344")
    a("s_and_b32 s5, s3, 7")
    a("s_mul_i32 s5, s5, 448")
    a("s_add_u32 s4, s4, s5")
    a("v_mul_u32_u24 v3, 3584, v1")
    a("v_lshl_add_u32 v3, v2, 4, v3")
    a(f"buffer_load_dwordx4 v[{W}:{W+3}], v3, s[48:51], s4 offen")
    a("s_add_u32 s4, s4, 28672")
    a(f"buffer_load_dwordx4 v[{W+4}:{W+7}], v3, s[48:51], s4 offen")
    a("s_lshr_b32 s4, s3, 1")
    a("s_mul_i32 s4, s4, 14336")
    a("s_and_b32 s5, s3, 1")
    a("s_mul_i32 s5, s5, 448")
    a("s_add_u32 s4, s4, s5")
    a("v_mul_u32_u24 v3, 896, v1")
    a("v_lshl_add_u32 v3, v2, 4, v3")
    a(f"buffer_load_dwordx4 v[{W+8}:{W+11}], v3, s[52:55], s4 offen")
    a("s_add_u32 s4, s4, 7168")
    a(f"buffer_load_dwordx4 v[{W+12}:{W+15}], v3, s[52:55], s4 offen")

def relayout_finish(a, W, ldsb, sc="", do_w1=True):
    srd(a, 48, 44, SZ_WF, WS_W1F)
    srd(a, 52, 44, SZ_WF, WS_W2F)
    a("v_lshrrev_b32 v1, 5, v0")
    a("v_and_b32 v2, 31, v0")
    a("v_mul_u32_u24 v3, 528, v1")
    a("v_lshl_add_u32 v3, v2, 4, v3")
    a(f"ds_write_b128 v3, v[{W}:{W+3}] offset:{ldsb}")
    a(f"ds_write_b128 v3, v[{W+4}:{W+7}] offset:{ldsb+8*528}")
    a(f"ds_write_b128 v3, v[{W+8}:{W+11}] offset:{ldsb+16*528}")
    a(f"ds_write_b128 v3, v[{W+12}:{W+15}] offset:{ldsb+24*528}")
    a("v_and_b32 v1, 63, v0")
    a("v_lshrrev_b32 v2, 5, v1")
    a("v_bfe_u32 v3, v1, 2, 2")
    a("v_bfe_u32 v4, v1, 4, 1")
    a("v_and_b32 v5, 3, v1")
    a("v_lshlrev_b32 v4, 5, v4")
    a("v_lshl_add_u32 v4, v5, 3, v4")
    a("v_lshrrev_b32 v6, 6, v0")
    a("v_lshl_add_u32 v4, v6, 6, v4")
    a("v_lshl_add_u32 v5, v2, 3, v3")
    a("v_mul_u32_u24 v5, 528, v5")
    a("v_add_u32 v5, v5, v4")
    a("v_lshl_add_u32 v7, v2, 2, v3")
    a("v_mul_u32_u24 v7, 528, v7")
    a("v_add_u32 v7, v7, v4")
    a("v_lshlrev_b32 v1, 4, v1")
    a("v_readfirstlane_b32 s7, v6")
    a("s_waitcnt lgkmcnt(0)")
    a("s_barrier")
    for rnd in range(2):
        if rnd == 1:
            lab = a.newlabel("rl_skip")
            a("s_cmp_eq_u32 s7, 3")
            a(f"s_cbranch_scc1 {lab}")
        o = 256*rnd
        a(f"ds_read_b64_tr_b16 v[{W}:{W+1}], v5 offset:{ldsb+o}")
        a(f"ds_read_b64_tr_b16 v[{W+2}:{W+3}], v5 offset:{ldsb+o+4*528}")
        a(f"ds_read_b64_tr_b16 v[{W+4}:{W+5}], v7 offset:{ldsb+16*528+o}")
        a(f"ds_read_b64_tr_b16 v[{W+6}:{W+7}], v7 offset:{ldsb+16*528+o+8*528}")
        a("s_and_b32 s4, s3, 7")
        a("s_mul_i32 s4, s4, 7")
        a("s_add_u32 s4, s4, s7")
        if rnd: a("s_add_u32 s4, s4, 4")
        a("s_mul_i32 s4, s4, 28")
        a("s_lshr_b32 s5, s3, 3")
        a("s_add_u32 s4, s4, s5")
        a("s_lshl_b32 s4, s4, 10")
        a("s_and_b32 s5, s3, 1")
        a("s_mul_i32 s5, s5, 7")
        a("s_add_u32 s5, s5, s7")
        if rnd: a("s_add_u32 s5, s5, 4")
        a("s_mul_i32 s5, s5, 112")
        a("s_lshr_b32 s6, s3, 1")
        a("s_add_u32 s5, s5, s6")
        a("s_lshl_b32 s5, s5, 10")
        a("s_waitcnt lgkmcnt(2)")
        a(f"buffer_store_dwordx4 v[{W}:{W+3}], v1, s[48:51], s4 offen {sc}")
        a("s_waitcnt lgkmcnt(0)")
        a(f"buffer_store_dwordx4 v[{W+4}:{W+7}], v1, s[52:55], s5 offen {sc}")
        if rnd == 1:
            a.label(lab)

KG_RS = 272
KG_WLDS = 64 * KG_RS
def kg_row(reg, gp):
    return (reg & 3) + 8 * (reg >> 2) + 4 * gp
KG_H = {}
for i in range(8): KG_H[i] = kg_row(i, 0)
for i, h in enumerate([256, 258, 260, 262, 264]): KG_H[h] = kg_row(8 + i, 0)
for i, h in enumerate([512, 516, 520, 768, 772, 776, 1024, 1032, 1280, 1288, 1536, 1544, 1792, 1800]): KG_H[h] = kg_row(i, 1)

def interleave(chains):
    out = []
    chains = [list(c) for c in chains if c]
    while chains:
        for c in chains:
            out.append(c.pop(0))
        chains = [c for c in chains if c]
    return out

def kgen_issue(a, P):
    SZP = 448*256*2
    for i, ptr in enumerate([18, 20, 22, 24, 26, 28]):
        srd(a, 60 + 4*i, ptr, SZP)
    a("v_lshrrev_b32 v1, 6, v0")
    a("v_and_b32 v2, 63, v0")
    a("s_lshl_b32 s4, s3, 10")
    a("v_lshlrev_b32 v3, 2, v0")
    for i in range(6):
        a(f"buffer_load_dword v{P+i}, v3, s[{60+4*i}:{63+4*i}], s4 offen")
    a("s_lshl_b32 s5, s3, 2")
    a("s_load_dword s8, s[30:31], s5")

def kgen_compute(a, P, ACC, ldsb=0):
    LOG2E = 1.4426950408889634
    T = 112
    a("v_lshrrev_b32 v1, 6, v0")
    a("v_lshrrev_b32 v4, 7, v0")
    a("v_mov_b32 v5, s8")
    a("v_lshlrev_b32 v6, 16, v5")
    a("v_and_b32 v5, 0xffff0000, v5")
    a("v_cmp_eq_u32 vcc, 0, v4")
    a("v_cndmask_b32 v5, v5, v6, vcc")
    a(f"v_mul_f32 v5, {f32bits(LOG2E):#x}, v5")
    a("v_exp_f32 v5, v5")
    bf_round(a, 5, 5)
    a("v_and_b32 v2, 63, v0")
    a(f"v_mul_u32_u24 v6, {KG_WLDS}, v1")
    if ldsb: a(f"v_add_u32 v6, {ldsb}, v6")
    a("v_lshl_add_u32 v7, v2, 2, v6")
    a("v_and_b32 v3, 31, v2")
    a(f"v_mul_u32_u24 v3, {KG_RS}, v3")
    a("v_add_u32 v6, v6, v3")
    a("v_lshrrev_b32 v3, 5, v2")
    a("v_lshl_add_u32 v6, v3, 4, v6")
    for i in range(16):
        a(f"v_mov_b32 v{ACC+i}, 0")
    for p in range(2):
        U = 24
        for i in range(6):
            if p == 0: a(f"v_lshlrev_b32 v{U+i}, 16, v{P+i}")
            else: a(f"v_and_b32 v{U+i}, 0xffff0000, v{P+i}")
        a(f"v_mul_f32 v30, v5, v{U}")
        a(f"v_mul_f32 v31, v5, v{U+1}")
        a(f"v_mul_f32 v30, {f32bits(LOG2E):#x}, v30")
        a("v_mul_f32 v31, 0.15915494, v31")
        a(f"v_mul_f32 v{U+2}, v5, v{U+2}")
        a(f"v_mul_f32 v{U+3}, v5, v{U+3}")
        regs = {}
        nxt = [32]
        def alloc(name):
            r = nxt[0]; nxt[0] += 2
            assert nxt[0] <= T
            regs[name] = (r, r + 1); return regs[name]
        def cmul(dst, x, w):
            (dr, di), (xr, xi), (wr, wi) = dst, x, w
            return [f"v_mul_f32 v{dr}, v{xi}, v{wi}", f"v_mul_f32 v{di}, v{xi}, v{wr}",
                    f"v_fma_f32 v{dr}, v{xr}, v{wr}, -v{dr}", f"v_fma_f32 v{di}, v{xr}, v{wi}, v{di}"]
        tcount = [0, 0, 0, 0]
        cur = [0]
        def emitrow(row, z, neg):
            t = T + 2*cur[0] + (tcount[cur[0]] % 2); tcount[cur[0]] += 1
            n = "-" if neg else ""
            return [f"v_cvt_pk_bf16_f32 v{t}, v{z[0]}, {n}v{z[1]}", f"ds_write_b32 v7, v{t} offset:{row*KG_RS}"]
        def direct(dst, tmul, tmp):
            (dr, di) = dst
            return [f"v_mul_f32 v{tmp}, {f32bits(float(tmul)):#x}, v30", f"v_mul_f32 v{tmp+1}, {f32bits(float(tmul)):#x}, v31",
                    f"v_exp_f32 v{tmp}, v{tmp}", f"v_fract_f32 v{tmp+1}, v{tmp+1}",
                    f"v_cos_f32 v{dr}, v{tmp+1}", f"v_sin_f32 v{di}, v{tmp+1}",
                    f"v_mul_f32 v{dr}, v{dr}, v{tmp}", f"v_mul_f32 v{di}, v{di}, v{tmp}"]
        X0 = alloc("X0")
        c0 = cmul(X0, (U+4, U+5), (U+2, U+3))
        w1 = alloc("w1"); w8 = alloc("w8"); w16 = alloc("w16"); w256 = alloc("w256"); w512 = alloc("w512"); w1024 = alloc("w1024")
        for ins in interleave([c0, direct(w1, 1, T+8), direct(w8, 8, T+10), direct(w16, 16, T+12), direct(w256, 256, T+14)]):
            a(ins)
        X = {0: X0}
        for h in [1,2,3,4,5,6,7,8,256,260,264,512,520,768,776]:
            X[h] = alloc(f"X{h}")
        tx = alloc("tx"); tx2 = alloc("tx2")
        ya = [alloc("ya0"), alloc("ya1")]; yb = [alloc("yb0"), alloc("yb1")]
        cur[0] = 0
        chA = emitrow(KG_H[0], X0, True)
        for h in range(1, 8):
            chA += cmul(X[h], X[h-1], w1) + emitrow(KG_H[h], X[h], True)
        cur[0] = 1
        chB = cmul(w512, w256, w256) + cmul(X[8], X0, w8) + cmul(w1024, w512, w512)
        chB += cmul(X[256], X0, w256) + emitrow(KG_H[256], X[256], True)
        chB += cmul(X[264], X[8], w256) + emitrow(KG_H[264], X[264], True)
        chB += cmul(X[512], X0, w512) + emitrow(KG_H[512], X[512], True)
        chB += cmul(X[520], X[8], w512) + emitrow(KG_H[520], X[520], True)
        chB += cmul(X[768], X[256], w512) + emitrow(KG_H[768], X[768], True)
        chB += cmul(X[776], X[264], w512) + emitrow(KG_H[776], X[776], True)
        for (h, src) in [(1024, 0), (1032, 8), (1280, 256), (1288, 264), (1536, 512), (1544, 520), (1792, 768), (1800, 776)]:
            t = tx if (h // 8) % 2 == 0 else tx2
            chB += cmul(t, X[src], w1024) + emitrow(KG_H[h], t, True)
        cur[0] = 2
        chY0 = [f"v_mov_b32 v{T+16}, 0x3f80", f"ds_write_b32 v7, v{T+16} offset:{32*KG_RS}"]
        chY0 += emitrow(32 + 2, w16, False)
        prev = w16
        for k, j in enumerate(range(4, 32, 2)):
            d = ya[k % 2]; chY0 += cmul(d, prev, w16) + emitrow(32 + j, d, False); prev = d
        cur[0] = 3
        chY1 = emitrow(32 + 1, w8, False)
        prev = w8
        for k, j in enumerate(range(3, 32, 2)):
            d = yb[k % 2]; chY1 += cmul(d, prev, w16) + emitrow(32 + j, d, False); prev = d
        for ins in interleave([chA, chB, chY0, chY1]):
            a(ins)
        cur[0] = 0
        chC = cmul(tx, X[2], w256) + emitrow(KG_H[258], tx, True)
        cur[0] = 1
        chD = cmul(X[260], X[4], w256) + emitrow(KG_H[260], X[260], True) + cmul(tx2, X[260], w512) + emitrow(KG_H[772], tx2, True)
        cur[0] = 2
        chE = cmul(ya[0], X[6], w256) + emitrow(KG_H[262], ya[0], True)
        cur[0] = 3
        chF = cmul(yb[0], X[4], w512) + emitrow(KG_H[516], yb[0], True)
        for ins in interleave([chC, chD, chE, chF]):
            a(ins)
        FR = 32
        a("s_waitcnt lgkmcnt(0)")
        for ks in range(8):
            a(f"ds_read_b128 v[{FR+8*ks}:{FR+8*ks+3}], v6 offset:{ks*32}")
            a(f"ds_read_b128 v[{FR+8*ks+4}:{FR+8*ks+7}], v6 offset:{32*KG_RS+ks*32}")
            if ks == 6: pass
        for ks in range(8):
            a(f"s_waitcnt lgkmcnt({min(15, 2*(7-ks))})")
            a(f"v_mfma_f32_32x32x16_bf16 v[{ACC}:{ACC+15}], v[{FR+8*ks}:{FR+8*ks+3}], v[{FR+8*ks+4}:{FR+8*ks+7}], v[{ACC}:{ACC+15}]")

def kgen_finish(a, ACC, red_lds, sc=""):
    srd(a, 48, 44, SZ_X, WS_KREV)
    a("v_lshrrev_b32 v1, 6, v0")
    a("v_and_b32 v2, 63, v0")
    a("v_lshrrev_b32 v3, 7, v0")
    a("v_lshlrev_b32 v4, 12, v3")
    a("v_lshl_add_u32 v4, v2, 4, v4")
    a("v_readfirstlane_b32 s7, v1")
    a("s_barrier")
    lab1 = a.newlabel("kg_nw"); lab2 = a.newlabel("kg_done")
    a("s_bitcmp1_b32 s7, 0")
    a(f"s_cbranch_scc0 {lab1}")
    for q in range(4):
        a(f"ds_write_b128 v4, v[{ACC+4*q}:{ACC+4*q+3}] offset:{red_lds+1024*q}")
    a("s_waitcnt lgkmcnt(0)")
    a.label(lab1)
    a("s_barrier")
    a("s_bitcmp1_b32 s7, 0")
    a(f"s_cbranch_scc1 {lab2}")
    R = 32
    for q in range(4):
        a(f"ds_read_b128 v[{R+4*q}:{R+4*q+3}], v4 offset:{red_lds+1024*q}")
    a("s_waitcnt lgkmcnt(0)")
    for i in range(16):
        a(f"v_add_f32 v{ACC+i}, v{ACC+i}, v{R+i}")
    a("s_lshl_b32 s4, s3, 13")
    a("v_and_b32 v5, 31, v2")
    a("v_lshlrev_b32 v5, 4, v5")
    a("v_lshlrev_b32 v6, 12, v3")
    a("v_sub_u32 v6, v6, v5")
    a("v_add_u32 v6, 4080, v6")
    def pk(d, lo, hi): a(f"v_cvt_pk_bf16_f32 v{d}, v{ACC+lo}, v{ACC+hi}")
    def store(base, d):
        a(f"v_subrev_u32 v7, {2*base}, v6")
        a(f"buffer_store_dwordx4 v[{d}:{d+3}], v7, s[48:51], s4 offen {sc}")
    O = 48
    a("s_mov_b64 s[10:11], exec")
    a("s_mov_b32 exec_lo, -1")
    a("s_mov_b32 exec_hi, 0")
    pk(O, 7, 6); pk(O+1, 5, 4); pk(O+2, 3, 2); pk(O+3, 1, 0); store(0, O)
    pk(O+4, 12, 11); pk(O+5, 10, 10); pk(O+6, 10, 9); pk(O+7, 8, 8); store(256, O+4)
    a("s_mov_b32 exec_lo, 0")
    a("s_mov_b32 exec_hi, -1")
    for b in range(2):
        o = O + 8 + 4*b; r0 = 3*b
        pk(o, r0+2, r0+2); pk(o+1, r0+1, r0+1); pk(o+2, r0+1, r0); pk(o+3, r0, r0); store(512 + 256*b, o)
    a("v_and_b32 v5, 1, v2")
    a("v_cmp_eq_u32 vcc, 0, v5")
    for b in range(4):
        o = O + 16 + 4*b; r0 = 6 + 2*b
        a(f"v_cndmask_b32 v{R}, v{ACC+r0+1}, v{ACC+r0}, vcc")
        pk(o, r0+1, r0+1)
        a(f"v_cvt_pk_bf16_f32 v{o+1}, v{ACC+r0+1}, v{R}")
        pk(o+2, r0, r0); pk(o+3, r0, r0); store(1024 + 256*b, o)
    a("s_mov_b64 exec, s[10:11]")
    a.label(lab2)


def body_gemm1(a, sc="", rbfq_done=False):
    NB = 4; NCH = 14
    srd(a, 48, 44, SZ_WF, WS_W1F)
    srd(a, 52, 44, SZ_X, WS_XNF)
    srd(a, 56, 44, SZ_H, WS_H)
    if not rbfq_done:
        a("s_mul_hi_u32 s12, s3, 0x12492493")
        a("s_mul_i32 s13, s12, 14")
        a("s_sub_u32 s13, s3, s13")
    a("v_lshrrev_b32 v1, 6, v0")
    a("v_and_b32 v2, 63, v0")
    a("v_readfirstlane_b32 s7, v1")
    a("v_lshlrev_b32 v3, 4, v2")
    a("s_lshl_b32 s4, s13, 2")
    a("s_add_u32 s4, s4, s7")
    a("s_mul_i32 s4, s4, 28672")
    a("s_lshl_b32 s5, s12, 2")
    a("s_add_u32 s5, s5, s7")
    a("s_mul_i32 s5, s5, 28672")
    a("s_lshl_b32 s6, s7, 11")
    def dma(c):
        buf = c % NB
        a(f"s_add_u32 m0, s6, {buf*16384}")
        a(f"buffer_load_dwordx4 v3, s[48:51], s4 offen lds")
        a(f"buffer_load_dwordx4 v3, s[48:51], s4 offen offset:1024 lds")
        a(f"s_add_u32 m0, s6, {buf*16384+8192}")
        a(f"buffer_load_dwordx4 v3, s[52:55], s5 offen lds")
        a(f"buffer_load_dwordx4 v3, s[52:55], s5 offen offset:1024 lds")
        a("s_add_u32 s4, s4, 2048")
        a("s_add_u32 s5, s5, 2048")
    for c in range(3): dma(c)
    a("s_and_b32 s8, s7, 1")
    a("s_lshr_b32 s9, s7, 1")
    a("s_lshl_b32 s10, s8, 12")
    a("s_lshl_b32 s11, s9, 12")
    a("s_add_u32 s11, s11, 8192")
    a("v_add_u32 v4, s10, v3")
    a("v_add_u32 v5, s11, v3")
    ACC = 64; S0 = 16; S1 = 32
    for i in range(64): a(f"v_mov_b32 v{ACC+i}, 0")
    def reads(c, st, S):
        o = (c % NB)*16384 + st*1024
        a(f"ds_read_b128 v[{S}:{S+3}], v4 offset:{o}")
        a(f"ds_read_b128 v[{S+4}:{S+7}], v4 offset:{o+2048}")
        a(f"ds_read_b128 v[{S+8}:{S+11}], v5 offset:{o}")
        a(f"ds_read_b128 v[{S+12}:{S+15}], v5 offset:{o+2048}")
    def mfmas(S):
        for aa in range(2):
            for b in range(2):
                d = ACC + 16*(2*aa+b)
                a(f"v_mfma_f32_32x32x16_bf16 v[{d}:{d+15}], v[{S+4*aa}:{S+4*aa+3}], v[{S+8+4*b}:{S+8+4*b+3}], v[{d}:{d+15}]")
    for c in range(NCH):
        rem = min(NCH - 1 - c, 2)
        a(f"s_waitcnt vmcnt({4*rem})")
        a("s_barrier")
        if c + 3 < NCH: dma(c + 3)
        reads(c, 0, S0)
        if c > 0: mfmas(S1)
        reads(c, 1, S1)
        a("s_waitcnt lgkmcnt(4)")
        mfmas(S0)
        a("s_waitcnt lgkmcnt(0)")
    mfmas(S1)
    a("s_lshl_b32 s4, s12, 2")
    a("s_lshl_b32 s5, s9, 1")
    a("s_add_u32 s4, s4, s5")
    a("s_mul_i32 s4, s4, 112")
    a("s_lshl_b32 s5, s13, 3")
    a("s_lshl_b32 s6, s8, 2")
    a("s_add_u32 s5, s5, s6")
    a("s_add_u32 s4, s4, s5")
    a("s_lshl_b32 s4, s4, 10")
    for aa in range(2):
        for b in range(2):
            d = ACC + 16*(2*aa+b)
            o = S0 + 8*((2*aa+b) % 2) + (0 if (2*aa+b) < 2 else 16)
            for k in range(8):
                a(f"v_cvt_pk_bf16_f32 v{o+k}, v{d+2*k}, v{d+2*k+1}")
                a(f"v_pk_max_i16 v{o+k}, v{o+k}, 0")
            a(f"s_add_u32 s5, s4, {(b*112 + 2*aa)*1024}")
            a(f"buffer_store_dwordx4 v[{o}:{o+3}], v3, s[56:59], s5 offen {sc}")
            a(f"buffer_store_dwordx4 v[{o+4}:{o+7}], v3, s[56:59], s5 offen offset:1024 {sc}")

CV_BS = 320; CV_CS = 7376; CV_K = 4*CV_CS; CV_CH = CV_K + 4352
def body_conv(a, sc_in="", sc_out=""):
    srd(a, 48, 44, SZ_X, WS_XNT)
    srd(a, 52, 44, SZ_X, WS_KREV)
    srd(a, 56, 44, SZ_X, WS_AOUT)
    a("s_lshl_b32 s5, s3, 2")
    a("s_load_dword s8, s[32:33], s5")
    a("v_lshrrev_b32 v1, 7, v0")
    a("v_and_b32 v2, 127, v0")
    a("s_lshl_b32 s4, s3, 13")
    a("v_lshlrev_b32 v3, 12, v1")
    a("v_lshl_add_u32 v3, v2, 4, v3")
    D = 16
    for k in range(2):
        a(f"buffer_load_dwordx4 v[{D+8*k}:{D+8*k+3}], v3, s[48:51], s4 offen offset:{2048*k} {sc_in}")
    a("v_add_u32 v4, -8, v3")
    a("v_max_i32 v4, 0, v4")
    a(f"buffer_load_dwordx2 v[{D+4}:{D+5}], v4, s[48:51], s4 offen {sc_in}")
    a(f"buffer_load_dwordx2 v[{D+12}:{D+13}], v3, s[48:51], s4 offen offset:2040 {sc_in}")
    for k in range(2):
        a(f"buffer_load_dwordx4 v[{40+4*k}:{40+4*k+3}], v3, s[52:55], s4 offen offset:{2048*k} {sc_in}")
    a(f"v_mul_u32_u24 v5, {CV_CH}, v1")
    for i in range(4): a(f"v_mov_b32 v{48+i}, 0")
    a("v_lshl_add_u32 v6, v2, 4, v5")
    for rho in range(4):
        a(f"ds_write_b128 v6, v[48:51] offset:{rho*CV_CS}")
    a("v_cmp_gt_u32 vcc, 12, v2")
    a("s_and_saveexec_b64 s[10:11], vcc")
    for rho in range(4):
        a(f"ds_write_b128 v6, v[48:51] offset:{rho*CV_CS+2048}")
    a("s_mov_b64 exec, s[10:11]")
    a("v_cmp_gt_u32 vcc, 16, v2")
    a("s_and_saveexec_b64 s[10:11], vcc")
    a(f"ds_write_b128 v6, v[48:51] offset:{CV_K+4096}")
    a("s_mov_b64 exec, s[10:11]")
    a("v_lshrrev_b32 v7, 4, v2")
    a(f"v_mul_u32_u24 v7, {CV_BS}, v7")
    a("v_and_b32 v8, 15, v2")
    a("v_lshl_add_u32 v7, v8, 4, v7")
    a("v_add_u32 v7, v7, v5")
    a("v_cmp_eq_u32 vcc, 0, v2")
    a("s_waitcnt vmcnt(2)")
    a(f"v_cndmask_b32_e64 v{D+4}, v{D+4}, 0, vcc")
    a(f"v_cndmask_b32_e64 v{D+5}, v{D+5}, 0, vcc")
    for k in range(2):
        d = D + 8*k; p = d + 4
        ob = 7*CV_BS + k*8*CV_BS
        E = 52
        a(f"ds_write_b128 v7, v[{d}:{d+3}] offset:{3*CV_CS+ob}")
        a(f"v_mov_b32 v{E}, v{p+1}"); a(f"v_mov_b32 v{E+1}, v{d}"); a(f"v_mov_b32 v{E+2}, v{d+1}"); a(f"v_mov_b32 v{E+3}, v{d+2}")
        a(f"ds_write_b128 v7, v[{E}:{E+3}] offset:{1*CV_CS+ob}")
        a(f"v_alignbit_b32 v{E+4}, v{d}, v{p+1}, 16")
        a(f"v_alignbit_b32 v{E+5}, v{d+1}, v{d}, 16")
        a(f"v_alignbit_b32 v{E+6}, v{d+2}, v{d+1}, 16")
        a(f"v_alignbit_b32 v{E+7}, v{d+3}, v{d+2}, 16")
        a(f"ds_write_b128 v7, v[{E+4}:{E+7}] offset:{2*CV_CS+ob}")
        a(f"v_alignbit_b32 v{E+8}, v{p+1}, v{p}, 16")
        a(f"v_mov_b32 v{E+9}, v{E+4}"); a(f"v_mov_b32 v{E+10}, v{E+5}"); a(f"v_mov_b32 v{E+11}, v{E+6}")
        a(f"ds_write_b128 v7, v[{E+8}:{E+11}] offset:{0*CV_CS+ob}")
    a("s_waitcnt vmcnt(0)")
    for k in range(2):
        a(f"ds_write_b128 v6, v[{40+4*k}:{40+4*k+3}] offset:{CV_K+2048*k}")
    a("v_and_b32 v1, 63, v0")
    a("v_bfe_u32 v2, v0, 6, 1")
    a("v_lshrrev_b32 v3, 5, v1")
    a("v_and_b32 v4, 3, v1")
    a("v_bfe_u32 v6, v1, 2, 3")
    a(f"v_mul_u32_u24 v8, {CV_CS}, v4")
    a(f"v_mul_u32_u24 v9, {CV_BS}, v6")
    a("v_add3_u32 v8, v8, v9, v5")
    a("v_lshl_add_u32 v8, v3, 4, v8")
    a(f"v_mul_u32_u24 v9, {4*CV_BS}, v2")
    a("v_sub_u32 v8, v8, v9")
    a("v_and_b32 v4, 31, v1")
    a("v_lshlrev_b32 v9, 3, v4")
    a("v_sub_u32 v9, v5, v9")
    a("v_lshl_add_u32 v9, v3, 4, v9")
    a("v_lshlrev_b32 v10, 10, v2")
    a("v_sub_u32 v9, v9, v10")
    a(f"v_add_u32 v9, {CV_K + 2*(2156-496)}, v9")
    a("v_add_u32 v10, -2048, v9")
    A0 = 64; A1 = 80
    for i in range(32): a(f"v_mov_b32 v{A0+i}, 0")
    a("s_waitcnt lgkmcnt(0)")
    a("s_barrier")
    NS = 3
    def rd(sp):
        S = 16 + 16*(sp % NS)
        z = 1008 - 16*sp
        ou = (z >> 7)*CV_BS + (z & 127)*2
        ok = 32*(31 - sp)
        a(f"ds_read_b128 v[{S}:{S+3}], v8 offset:{ou}")
        a(f"ds_read_b64 v[{S+8}:{S+9}], v9 offset:{ok}")
        a(f"ds_read_b64 v[{S+10}:{S+11}], v9 offset:{ok+8}")
        a(f"ds_read_b128 v[{S+4}:{S+7}], v8 offset:{ou+8*CV_BS}")
        a(f"ds_read_b64 v[{S+12}:{S+13}], v10 offset:{ok}")
        a(f"ds_read_b64 v[{S+14}:{S+15}], v10 offset:{ok+8}")
    rd(0); rd(1)
    for sp in range(32):
        if sp + 2 < 32: rd(sp + 2)
        left = min(2, 31 - sp)
        a(f"s_waitcnt lgkmcnt({6*left})")
        S = 16 + 16*(sp % NS)
        a(f"v_mfma_f32_32x32x16_bf16 v[{A0}:{A0+15}], v[{S}:{S+3}], v[{S+8}:{S+11}], v[{A0}:{A0+15}]")
        a(f"v_mfma_f32_32x32x16_bf16 v[{A1}:{A1+15}], v[{S+4}:{S+7}], v[{S+8}:{S+11}], v[{A1}:{A1+15}]")
        a(f"v_mfma_f32_32x32x16_bf16 v[{A1}:{A1+15}], v[{S}:{S+3}], v[{S+12}:{S+15}], v[{A1}:{A1+15}]")
    a("v_readfirstlane_b32 s7, v2")
    a("v_lshlrev_b32 v3, 4, v1")
    a("v_add_u32 v3, v3, v5")
    a("s_barrier")
    l1 = a.newlabel("cv_x1"); l2 = a.newlabel("cv_x2"); l3 = a.newlabel("cv_x3"); l4 = a.newlabel("cv_x4")
    a("s_cmp_eq_u32 s7, 0")
    a(f"s_cbranch_scc0 {l1}")
    for q in range(4): a(f"ds_write_b128 v3, v[{A1+4*q}:{A1+4*q+3}] offset:{1024*q}")
    a(f"s_branch {l2}")
    a.label(l1)
    for q in range(4): a(f"ds_write_b128 v3, v[{A0+4*q}:{A0+4*q+3}] offset:{CV_CS+1024*q}")
    for i in range(16): a(f"v_mov_b32 v{A0+i}, v{A1+i}")
    a.label(l2)
    a("s_waitcnt lgkmcnt(0)")
    a("s_barrier")
    a("v_sub_u32 v4, 1, v2")
    a(f"v_mul_u32_u24 v4, {CV_CS}, v4")
    a("v_add_u32 v3, v3, v4")
    R = 16
    for q in range(4): a(f"ds_read_b128 v[{R+4*q}:{R+4*q+3}], v3 offset:{1024*q}")
    a("v_lshrrev_b32 v3, 5, v1")
    a("v_lshl_add_u32 v4, v2, 3, v3")
    a(f"v_mul_u32_u24 v6, {CV_BS}, v4")
    a("v_and_b32 v7, 31, v1")
    a("v_lshl_add_u32 v6, v7, 3, v6")
    a("v_add_u32 v6, v6, v5")
    X = 32
    for q in range(4): a(f"ds_read_b64 v[{X+2*q}:{X+2*q+1}], v6 offset:{3*CV_CS + (7+2*q)*CV_BS}")
    a("v_lshrrev_b32 v8, 7, v0")
    a("v_lshlrev_b32 v8, 12, v8")
    a("v_lshl_add_u32 v8, v4, 8, v8")
    a("v_lshl_add_u32 v8, v7, 3, v8")
    a("v_lshrrev_b32 v9, 7, v0")
    a("v_mov_b32 v10, s8")
    a("v_lshlrev_b32 v11, 16, v10")
    a("v_and_b32 v10, 0xffff0000, v10")
    a("v_cmp_eq_u32 vcc, 0, v9")
    a("v_cndmask_b32 v10, v10, v11, vcc")
    a("s_waitcnt lgkmcnt(0)")
    for i in range(16): a(f"v_add_f32 v{A0+i}, v{A0+i}, v{R+i}")
    T = 40
    for q in range(4):
        for hh in range(2):
            y0 = A0 + 4*q + 2*hh; x = X + 2*q + hh
            a(f"v_cvt_pk_bf16_f32 v{T}, v{y0}, v{y0+1}")
            unpack(a, T+1, T+2, T)
            unpack(a, T+3, T+4, x)
            a(f"v_mul_f32 v{T+3}, v{T+3}, v10")
            a(f"v_mul_f32 v{T+4}, v{T+4}, v10")
            a(f"v_cvt_pk_bf16_f32 v{T}, v{T+3}, v{T+4}")
            unpack(a, T+3, T+4, T)
            a(f"v_add_f32 v{T+1}, v{T+1}, v{T+3}")
            a(f"v_add_f32 v{T+2}, v{T+2}, v{T+4}")
            a(f"v_cvt_pk_bf16_f32 v{48+2*q+hh}, v{T+1}, v{T+2}")
        a(f"buffer_store_dwordx2 v[{48+2*q}:{48+2*q+1}], v8, s[56:59], s4 offen offset:{512*q} {sc_out}")


def body_gemm2(a, sc_in="", wait_aout=None, rbdq_done=False):
    PF = 8
    srd(a, 48, 44, SZ_WF, WS_W2F)
    srd(a, 52, 44, SZ_H, WS_H)
    srd(a, 56, 44, SZ_X, WS_AOUT)
    srd(a, 60, 16, SZ_X)
    srd(a, 64, 40, SZ_X)
    if not rbdq_done:
        a("s_mul_hi_u32 s12, s3, 0x24924925")
        a("s_mul_i32 s13, s12, 7")
        a("s_sub_u32 s13, s3, s13")
    a("v_lshrrev_b32 v1, 6, v0")
    a("v_and_b32 v2, 63, v0")
    a("v_readfirstlane_b32 s7, v1")
    a("v_lshlrev_b32 v3, 4, v2")
    a("s_mul_i32 s4, s7, 28")
    a("s_lshl_b32 s5, s13, 1")
    a("s_mul_i32 s5, s5, 112")
    a("s_add_u32 s5, s5, s4")
    a("s_lshl_b32 s68, s5, 10")
    a(f"s_add_u32 s69, s68, {112*1024}")
    a("s_lshl_b32 s5, s12, 1")
    a("s_mul_i32 s5, s5, 112")
    a("s_add_u32 s5, s5, s4")
    a("s_lshl_b32 s70, s5, 10")
    a(f"s_add_u32 s71, s70, {112*1024}")
    ACC = 0 + 16; FR = 80; XR = 208; AR = 216
    def ld(ks):
        S = FR + 16*(ks % PF); o = (ks % 4)*1024
        a(f"buffer_load_dwordx4 v[{S}:{S+3}], v3, s[48:51], s68 offen offset:{o}")
        a(f"buffer_load_dwordx4 v[{S+8}:{S+11}], v3, s[52:55], s70 offen offset:{o} {sc_in}")
        a(f"buffer_load_dwordx4 v[{S+4}:{S+7}], v3, s[48:51], s69 offen offset:{o}")
        a(f"buffer_load_dwordx4 v[{S+12}:{S+15}], v3, s[52:55], s71 offen offset:{o} {sc_in}")
        if ks % 4 == 3:
            for r in (68, 69, 70, 71): a(f"s_add_u32 s{r}, s{r}, 4096")
    for ks in range(PF): ld(ks)
    a("s_lshr_b32 s8, s7, 1")
    a("s_and_b32 s9, s7, 1")
    a("s_lshl_b32 s4, s12, 6")
    a("s_lshl_b32 s5, s9, 5")
    a("s_add_u32 s4, s4, s5")
    a("s_lshl_b32 s5, s13, 6")
    a("s_lshl_b32 s6, s8, 5")
    a("s_add_u32 s5, s5, s6")
    a("s_mul_i32 s10, s4, 896")
    a("s_lshl_b32 s6, s5, 1")
    a("s_add_u32 s10, s10, s6")
    a("s_lshl_b32 s11, s5, 12")
    a("s_lshl_b32 s6, s4, 1")
    a("s_add_u32 s11, s11, s6")
    a("v_and_b32 v4, 31, v2")
    a("v_lshrrev_b32 v5, 5, v2")
    a("v_mul_u32_u24 v6, 896, v4")
    a("v_lshl_add_u32 v6, v5, 3, v6")
    a("v_lshlrev_b32 v7, 14, v5")
    a("v_lshl_add_u32 v7, v4, 1, v7")
    def ld_epi():
        for q in range(4):
            a(f"buffer_load_dwordx2 v[{XR+2*q}:{XR+2*q+1}], v6, s[60:63], s10 offen offset:{16*q}")
        for q in range(4):
            for r in range(4):
                a(f"s_add_u32 s6, s11, {(8*q+r)*4096}")
                a(f"buffer_load_ushort v{AR+4*q+r}, v7, s[56:59], s6 offen {sc_in}")
    for i in range(64): a(f"v_mov_b32 v{ACC+i}, 0")
    NK = 28
    EPI_AT = NK - PF - 1 if wait_aout is None else None
    issued_epi = False
    for ks in range(NK):
        later = min(ks + PF - 1, NK - 1) - ks
        n = 4*later + (20 if issued_epi and epi_after_step >= ks else 0)
        a(f"s_waitcnt vmcnt({min(n, 63)})")
        S = FR + 16*(ks % PF)
        for aa in range(2):
            for b in range(2):
                d = ACC + 16*(2*aa+b)
                a(f"v_mfma_f32_32x32x16_bf16 v[{d}:{d+15}], v[{S+4*aa}:{S+4*aa+3}], v[{S+8+4*b}:{S+8+4*b+3}], v[{d}:{d+15}]")
        if ks + PF < NK: ld(ks + PF)
        if wait_aout is None and ks + PF == NK - 1:
            ld_epi(); issued_epi = True; epi_after_step = NK - 1
    if wait_aout is not None:
        wait_aout(a); ld_epi()
    a("s_lshl_b32 s4, s7, 14")
    a("v_add_u32 v8, s4, v3")
    for t in range(4):
        lab = a.newlabel("g2w")
        a(f"s_cmp_eq_u32 s7, {t}")
        a(f"s_cbranch_scc1 {lab}")
        for q in range(4):
            a(f"ds_write_b128 v8, v[{ACC+16*t+4*q}:{ACC+16*t+4*q+3}] offset:{t*4096+q*1024}")
        a(f"s_branch {lab}_e")
        a.label(lab)
        for i in range(16): a(f"v_mov_b32 v{FR+i}, v{ACC+16*t+i}")
        a.label(lab + "_e")
    a("s_lshl_b32 s4, s7, 12")
    a("v_add_u32 v8, s4, v3")
    a("s_waitcnt lgkmcnt(0)")
    a("s_barrier")
    R = FR + 16
    for j in range(3):
        a(f"s_add_u32 s4, s7, {1+j}")
        a("s_and_b32 s4, s4, 3")
        a("s_lshl_b32 s4, s4, 14")
        a(f"v_add_u32 v{9+j}, s4, v8")
        for q in range(4):
            a(f"ds_read_b128 v[{R+16*j+4*q}:{R+16*j+4*q+3}], v{9+j} offset:{q*1024}")
    for j in range(3):
        a(f"s_waitcnt lgkmcnt({4*(2-j)})")
        for i in range(16): a(f"v_add_f32 v{FR+i}, v{FR+i}, v{R+16*j+i}")
    a("s_waitcnt vmcnt(0)")
    T = 16
    for q in range(4):
        for hh in range(2):
            f0 = FR + 4*q + 2*hh; x = XR + 2*q + hh; ao = AR + 4*q + 2*hh
            a(f"v_cvt_pk_bf16_f32 v{T}, v{f0}, v{f0+1}")
            unpack(a, T+1, T+2, T)
            unpack(a, T+3, T+4, x)
            a(f"v_lshlrev_b32 v{ao}, 16, v{ao}")
            a(f"v_lshlrev_b32 v{ao+1}, 16, v{ao+1}")
            a(f"v_add_f32 v{T+3}, v{T+3}, v{ao}")
            a(f"v_add_f32 v{T+4}, v{T+4}, v{ao+1}")
            a(f"v_cvt_pk_bf16_f32 v{T}, v{T+3}, v{T+4}")
            unpack(a, T+3, T+4, T)
            a(f"v_add_f32 v{T+1}, v{T+1}, v{T+3}")
            a(f"v_add_f32 v{T+2}, v{T+2}, v{T+4}")
            a(f"v_cvt_pk_bf16_f32 v{24+2*q+hh}, v{T+1}, v{T+2}")
        a(f"buffer_store_dwordx2 v[{24+2*q}:{24+2*q+1}], v6, s[64:67], s10 offen offset:{16*q}")

def build_k2():
    a = Asm()
    load_ptrs(a)
    a("s_cmp_ge_u32 s2, 224")
    a("s_cbranch_scc1 L_k2_end")
    a("s_waitcnt lgkmcnt(0)")
    a("s_mov_b32 s3, s2")
    body_gemm2(a)
    a.label("L_k2_end")
    a("s_endpgm")
    return a

def build_k1(sc=""):
    a = Asm()
    load_ptrs(a)
    a("s_cmp_ge_u32 s2, 448")
    a("s_cbranch_scc1 L_k1_end")
    a("s_waitcnt lgkmcnt(0)")
    a("s_cmp_ge_u32 s2, 224")
    a("s_cbranch_scc1 L_k1_conv")
    a("s_mov_b32 s3, s2")
    body_gemm1(a, sc)
    a("s_endpgm")
    a.label("L_k1_conv")
    a("s_sub_u32 s3, s2, 224")
    body_conv(a, "", sc)
    a.label("L_k1_end")
    a("s_endpgm")
    return a

def build_k0(sc=""):
    a = Asm()
    load_ptrs(a)
    lab_ln = "L_k0_ln"; lab_end = "L_k0_end"
    a("s_cmp_ge_u32 s2, 288")
    a(f"s_cbranch_scc1 {lab_end}")
    a("s_waitcnt lgkmcnt(0)")
    a("s_cmp_ge_u32 s2, 224")
    a(f"s_cbranch_scc1 {lab_ln}")
    a("s_mov_b32 s3, s2")
    P = 8; W = 96; ACC = 8
    kgen_issue(a, 16)
    relayout_issue(a, W)
    a("s_waitcnt vmcnt(0) lgkmcnt(0)")
    relayout_finish(a, W, 0, sc)
    a("s_barrier")
    kgen_compute(a, 16, 132)
    kgen_finish(a, 132, 0, sc)
    a("s_endpgm")
    a.label(lab_ln)
    a("s_sub_u32 s3, s2, 224")
    body_ln(a, sc)
    a.label(lab_end)
    a("s_endpgm")
    return a

def assemble(kernels, path):
    hdr = "; generated by dev/kern.py\n"
    for name, asm, vgpr, grid, lds in kernels:
        hdr += f"; @launch kernel={name} grid=({grid},1,1) block=(256,1,1) lds={lds}\n"
    hdr += '.amdgcn_target "amdgcn-amd-amdhsa--gfx950"\n'
    txt = ""; desc = ""
    for name, asm, vgpr, grid, lds in kernels:
        t, d, n = kernel_text(name, asm, vgpr)
        txt += t; desc += d
        print(f"{name}: {len(t.splitlines())} lines, {n} hazard pads")
    open(path, "w").write(hdr + txt + desc)

if __name__ == "__main__":
    assemble([("k0_kernel", build_k0(), 148, 288, 4*KG_WLDS)], "k0.s")
    assemble([("k0_kernel", build_k0(), 148, 288, 4*KG_WLDS), ("k1_kernel", build_k1(), 128, 448, 2*CV_CH)], "k01.s")
    assemble([("k0_kernel", build_k0(), 148, 288, 4*KG_WLDS), ("k1_kernel", build_k1(), 128, 448, 2*CV_CH), ("k2_kernel", build_k2(), 232, 224, 65536)], "k012.s")
```

```python
import re

TRANS = ("v_exp_f32", "v_log_f32", "v_rcp_f32", "v_rsq_f32", "v_sqrt_f32", "v_sin_f32", "v_cos_f32", "v_rcp_iflag_f32")
VCC = (106, 107); EXEC = (126, 127); M0 = 124

def split_ops(s):
    out = []; depth = 0; cur = ""
    for ch in s:
        if ch == "[": depth += 1
        if ch == "]": depth -= 1
        if ch == "," and depth == 0:
            out.append(cur.strip()); cur = ""
        else:
            cur += ch
    if cur.strip(): out.append(cur.strip())
    return out

def regs_of(tok):
    t = tok.strip()
    t = t.split()[0] if t else t
    t = t.lstrip("-")
    if t.startswith("abs(") : t = t[4:-1]
    if t.startswith("|"): t = t.strip("|")
    m = re.fullmatch(r"([vsa])\[(\d+):(\d+)\]", t)
    if m: return m.group(1), set(range(int(m.group(2)), int(m.group(3)) + 1))
    m = re.fullmatch(r"([vsa])(\d+)", t)
    if m: return m.group(1), {int(m.group(2))}
    if t == "vcc": return "s", set(VCC)
    if t == "vcc_lo": return "s", {106}
    if t == "vcc_hi": return "s", {107}
    if t == "exec": return "s", set(EXEC)
    if t == "exec_lo": return "s", {126}
    if t == "exec_hi": return "s", {127}
    if t == "m0": return "s", {M0}
    return None, set()

class Ins:
    __slots__ = ("text", "mn", "cls", "vw", "vr", "sw", "sr", "states", "passes", "mA", "mB", "mC", "dpp", "target", "uncond", "wide_store", "lds_dma", "trans", "labels", "ends", "lanesel", "perm", "rdlane", "sdata")
    def __init__(self, text):
        self.text = text; self.labels = []
        t = text.split(";")[0].strip()
        parts = t.split(None, 1)
        mn = parts[0]; rest = parts[1] if len(parts) > 1 else ""
        for suf in ("_e32", "_e64", "_dpp", "_sdwa"):
            if mn.endswith(suf): mn = mn[: -len(suf)]
        self.mn = mn
        ops = split_ops(rest)
        self.vw = set(); self.vr = set(); self.sw = set(); self.sr = set()
        self.states = 1; self.passes = 0; self.mA = self.mB = self.mC = set()
        self.dpp = any(k in rest for k in ("quad_perm", "row_shl", "row_shr", "row_ror", "wave_shl", "wave_shr", "wave_rol", "wave_ror", "row_mirror", "row_half_mirror", "row_bcast", "row_newbcast"))
        self.target = None; self.uncond = False; self.wide_store = False; self.lds_dma = False
        self.trans = False; self.ends = False; self.lanesel = set(); self.perm = False; self.rdlane = False; self.sdata = set()
        def rd(tok):
            k, r = regs_of(tok)
            if k == "v": self.vr |= r
            elif k == "a": self.vr |= {x + 1000 for x in r}
            elif k == "s": self.sr |= r
        def wr(tok):
            k, r = regs_of(tok)
            if k == "v": self.vw |= r
            elif k == "a": self.vw |= {x + 1000 for x in r}
            elif k == "s": self.sw |= r
        def vset(tok):
            k, r = regs_of(tok)
            if k == "v": return set(r)
            if k == "a": return {x + 1000 for x in r}
            return set()
        if mn.startswith("v_mfma"):
            self.cls = "mfma"
            wr(ops[0]); [rd(o) for o in ops[1:4]]
            self.mA = vset(ops[1]); self.mB = vset(ops[2]); self.mC = vset(ops[3])
            self.passes = 8 if "32x32" in mn else 4
        elif mn.startswith("v_"):
            self.cls = "valu"
            self.trans = mn in TRANS
            if mn.startswith("v_cmp"):
                wr(ops[0]); [rd(o) for o in ops[1:]]
                if mn.startswith("v_cmpx"): self.sw |= set(EXEC)
            elif mn in ("v_readfirstlane_b32", "v_readlane_b32"):
                wr(ops[0]); [rd(o) for o in ops[1:]]; self.rdlane = True
                if mn == "v_readlane_b32": self.lanesel = regs_of(ops[2])[1] if regs_of(ops[2])[0] == "s" else set()
            elif mn == "v_writelane_b32":
                wr(ops[0]); rd(ops[0]); [rd(o) for o in ops[1:]]
                self.lanesel = regs_of(ops[2])[1] if regs_of(ops[2])[0] == "s" else set()
            elif mn in ("v_add_co_u32", "v_sub_co_u32", "v_subrev_co_u32", "v_addc_co_u32", "v_subb_co_u32", "v_mad_u64_u32", "v_div_scale_f32"):
                wr(ops[0]); wr(ops[1]); [rd(o) for o in ops[2:]]
            elif mn.startswith("v_permlane") and "swap" in mn:
                wr(ops[0]); wr(ops[1]); rd(ops[0]); rd(ops[1]); self.perm = True
            else:
                wr(ops[0]); [rd(o) for o in ops[1:]]
                if mn.startswith(("v_fmac", "v_dot2c", "v_mac", "v_pk_fmac")) or self.dpp or "op_sel" in rest and mn.startswith("v_cvt"):
                    rd(ops[0])
                if mn == "v_cndmask_b32" and len(ops) == 3: self.sr |= set(VCC)
        elif mn.startswith("buffer_") or mn.startswith("global_") or mn.startswith("flat_"):
            self.cls = "vmem"
            mods = rest
            if mn in ("buffer_wbl2", "buffer_inv"):
                pass
            elif mn.startswith("buffer_load"):
                if re.search(r"\blds\b", mods):
                    self.lds_dma = True; [rd(o) for o in ops]; self.sr.add(M0)
                else:
                    wr(ops[0]); [rd(o) for o in ops[1:]]
            elif mn.startswith("buffer_store"):
                [rd(o) for o in ops]; self.sdata = vset(ops[0])
                self.wide_store = mn.endswith(("x3", "x4"))
            elif mn.startswith("buffer_atomic"):
                [rd(o) for o in ops]
                if re.search(r"\bsc0\b", mods): wr(ops[0])
            elif mn.startswith("global_load_lds"):
                self.lds_dma = True; [rd(o) for o in ops]; self.sr.add(M0)
            elif mn.startswith("global_load"):
                wr(ops[0]); [rd(o) for o in ops[1:]]
            elif mn.startswith("global_store"):
                [rd(o) for o in ops]; self.sdata = vset(ops[1]); self.wide_store = mn.endswith(("x3", "x4"))
            elif mn.startswith("global_atomic"):
                if re.search(r"\bsc0\b", mods): wr(ops[0]); [rd(o) for o in ops[1:]]
                else: [rd(o) for o in ops]
            else:
                raise ValueError("unknown vmem " + text)
        elif mn.startswith("ds_"):
            self.cls = "ds"
            if mn.startswith(("ds_read", "ds_bpermute", "ds_permute", "ds_swizzle")) or "_rtn" in mn:
                wr(ops[0]); [rd(o) for o in ops[1:]]
                if "d16" in mn: rd(ops[0])
            else:
                [rd(o) for o in ops]
        elif mn.startswith("s_"):
            if mn == "s_nop":
                self.cls = "nop"; self.states = int(ops[0], 0) + 1
            elif mn in ("s_branch",) or mn.startswith("s_cbranch"):
                self.cls = "branch"; self.target = ops[0]; self.uncond = mn == "s_branch"
                if "vcc" in mn: self.sr |= set(VCC)
                if "exec" in mn: self.sr |= set(EXEC)
            elif mn == "s_endpgm":
                self.cls = "salu"; self.ends = True
            elif mn in ("s_waitcnt", "s_barrier", "s_setprio", "s_sleep", "s_sethalt", "s_setreg_imm32_b32"):
                self.cls = "salu"
            elif mn.startswith(("s_load", "s_buffer_load", "s_memtime", "s_memrealtime", "s_atomic")):
                self.cls = "smem"; wr(ops[0]); [rd(o) for o in ops[1:]]
            elif mn.startswith("s_cmp") or mn.startswith("s_bitcmp"):
                self.cls = "salu"; [rd(o) for o in ops]
            else:
                self.cls = "salu"; wr(ops[0]); [rd(o) for o in ops[1:]]
                if "saveexec" in mn: self.sw |= set(EXEC); self.sr |= set(EXEC)
                if mn in ("s_addk_i32", "s_mulk_i32", "s_cmov_b32", "s_cmov_b64"): rd(ops[0])
        else:
            raise ValueError("unknown instr: " + text)

def need(p, c):
    n = 0
    pv = p.cls == "valu"; cv = c.cls == "valu"
    if pv:
        if c.cls == "mfma" and (p.vw & c.vr): n = max(n, 2)
        if c.cls == "mfma" and (p.sw & set(EXEC)): n = max(n, 4)
        if p.trans and cv and not c.trans and (p.vw & c.vr): n = max(n, 1)
        if p.trans and cv and c.trans and (p.vw & c.vr): n = max(n, 1)
        if p.sw:
            if cv and (p.sw & c.lanesel): n = max(n, 4)
            if cv and (p.sw & c.sr): n = max(n, 2)
            if c.cls == "vmem" and (p.sw & c.sr): n = max(n, 5)
            if cv and (p.sw & set(EXEC)) and (c.rdlane or c.perm): n = max(n, 4)
            if cv and (p.sw & set(EXEC)) and c.dpp: n = max(n, 5)
            if c.cls == "branch" and (p.sw & c.sr): n = max(n, 5 if (p.sw & (set(EXEC) | set(VCC))) else 0)
            if c.cls in ("salu", "smem") and (p.sw & c.sr): n = max(n, 1)
        if cv and c.rdlane and (p.vw & c.vr): n = max(n, 1)
        if cv and c.dpp and (p.vw & c.vr): n = max(n, 2)
        if cv and c.perm and (p.vw & c.vr): n = max(n, 2)
    if p.cls == "mfma":
        big = p.passes == 8
        if c.cls == "mfma":
            if p.vw & (c.mA | c.mB): n = max(n, 12 if big else 8)
            if p.vw & c.mC:
                if not (p.vw == c.mC and p.passes == c.passes): n = max(n, 10 if big else 6)
            if (p.vw & c.vw) and not (p.vw == c.vw and p.passes == c.passes): n = max(n, 10 if big else 6)
        elif c.cls in ("valu", "vmem", "ds"):
            if p.vw & (c.vr | c.vw): n = max(n, 12 if big else 8)
            if cv and (p.mC & c.vw): n = max(n, 7 if big else 3)
    if p.cls == "salu" and M0 in p.sw and (c.lds_dma or "addtid" in c.mn or c.mn.startswith("s_movrel")): n = max(n, 1)
    if p.wide_store:
        if cv and (p.sdata & c.vw): n = max(n, 2)
        elif (p.sdata & c.vw): n = max(n, 1)
    return n

MAXD = 13
def fix_hazards(lines):
    items = []
    pend_labels = []
    for ln in lines:
        s = ln.strip()
        if not s or s.startswith(";") or s.startswith("."):
            items.append(("raw", ln)); continue
        m = re.fullmatch(r"([A-Za-z_.$][\w.$]*):", s.split(";")[0].strip())
        if m:
            items.append(("label", m.group(1))); continue
        items.append(("ins", Ins(s)))
    insl = [o for k, o in items if k == "ins"]
    idx = {id(o): i for i, o in enumerate(insl)}
    label_at = {}
    i = 0
    for k, o in items:
        if k == "label": label_at[o] = i
        elif k == "ins": i += 1
    branch_preds = {}
    for i, o in enumerate(insl):
        if o.target is not None:
            if o.target not in label_at: raise ValueError("unknown label " + o.target)
            branch_preds.setdefault(label_at[o.target], []).append(i)
    pad = [0] * len(insl)
    nins = 0
    for ci, c in enumerate(insl):
        if c.cls in ("nop",): continue
        worst = 0
        stack = [(ci, 0)]
        seen = {}
        while stack:
            j, dist = stack.pop()
            preds = []
            if j > 0 and not insl[j - 1].uncond and not insl[j - 1].ends: preds.append(j - 1)
            preds += branch_preds.get(j, [])
            dist_j = dist + (pad[j] if j != ci else 0)
            for p in preds:
                if dist_j >= MAXD: continue
                if seen.get(p, 99) <= dist_j: continue
                seen[p] = dist_j
                n = need(insl[p], c)
                if n > dist_j: worst = max(worst, n - dist_j)
                stack.append((p, dist_j + insl[p].states))
        if worst > 0:
            pad[ci] = worst; nins += 1
    out = []
    i = 0
    for k, o in items:
        if k == "raw": out.append(o)
        elif k == "label": out.append(o + ":")
        else:
            p = pad[i]
            while p > 0:
                q = min(p, 16); out.append(f"  s_nop {q-1}"); p -= q
            out.append("  " + o.text); i += 1
    return out, nins

class Asm:
    def __init__(self):
        self.lines = []; self.uid = 0
    def __call__(self, s):
        for ln in s.strip("\n").split("\n"):
            self.lines.append(ln.strip())
    def label(self, name): self.lines.append(name + ":")
    G = [0]
    def newlabel(self, base):
        Asm.G[0] += 1
        return f"L_{base}_{Asm.G[0]}"
    def comment(self, s): self.lines.append("; " + s)

def kernel_text(name, asm, vgpr, sgpr=96):
    body, n = fix_hazards(asm.lines)
    txt = f".text\n.globl {name}\n.p2align 8\n.type {name},@function\n{name}:\n" + "\n".join(body) + "\n"
    desc = f""".section .rodata,"a"
.p2align 6
.amdhsa_kernel {name}
  .amdhsa_next_free_vgpr {vgpr}
  .amdhsa_next_free_sgpr {sgpr}
  .amdhsa_accum_offset {((vgpr + 3) // 4) * 4}
  .amdhsa_group_segment_fixed_size 0
  .amdhsa_kernarg_size 120
  .amdhsa_user_sgpr_count 2
  .amdhsa_user_sgpr_kernarg_segment_ptr 1
  .amdhsa_system_sgpr_workgroup_id_x 1
.end_amdhsa_kernel
"""
    return txt, desc, n
```

```python
from asmgen import Asm, kernel_text
import math

WS_H    = 0x000000
WS_W2F  = 0x700000
WS_W1F  = 0x900000
WS_XNF  = 0xB00000
WS_XNT  = 0xD00000
WS_KREV = 0xF00000
WS_AOUT = 0x1100000
SZ_H = 64*112*1024; SZ_WF = 1568*1024; SZ_X = 2048*448*2

def load_ptrs(a):
    a("""s_load_dwordx16 s[16:31], s[0:1], 0
    s_load_dwordx8 s[32:39], s[0:1], 64
    s_load_dwordx4 s[40:43], s[0:1], 96
    s_load_dwordx2 s[44:45], s[0:1], 112""")

def srd(a, dst, ptr, size, off=0):
    if off:
        a(f"s_add_u32 s{dst}, s{ptr}, {off:#x}")
        a(f"s_addc_u32 s{dst+1}, s{ptr+1}, 0")
    else:
        a(f"s_mov_b32 s{dst}, s{ptr}")
        a(f"s_mov_b32 s{dst+1}, s{ptr+1}")
    a(f"s_mov_b32 s{dst+2}, {size:#x}")
    a(f"s_mov_b32 s{dst+3}, 0x00020000")

XCDMAP = True
PERT = 0.0
HALFFOLD = False
WS_R = 0x1300000
PROF = False
WS_PROF = 0x2000000
PROF_V = 159
def stamp(a, i):
    if not PROF: return
    a("s_memrealtime s[84:85]")
    a("s_waitcnt lgkmcnt(0)")
    a(f"v_writelane_b32 v{PROF_V}, s84, {i}")
def prof_flush(a, kid, n):
    if not PROF: return
    lab = a.newlabel("pf")
    a("v_readfirstlane_b32 s4, v0")
    a("s_cmp_lt_u32 s4, 64")
    a(f"s_cbranch_scc0 {lab}")
    a("s_mov_b64 exec, -1")
    srd(a, 76, 44, 0x100000, WS_PROF)
    a(f"s_add_u32 s4, s2, {kid*1024}")
    a("s_lshl_b32 s4, s4, 7")
    a("v_and_b32 v2, 31, v0")
    a("v_lshlrev_b32 v2, 2, v2")
    a("s_mov_b64 exec, 0xffffffff")
    a(f"buffer_store_dword v{PROF_V}, v2, s[76:79], s4 offen")
    a("s_waitcnt vmcnt(0)")
    a.label(lab)

PROF2 = False
NKER = 2
def prof2_end(a, kid, launch_idx):
    if not PROF2: return
    lab = a.newlabel("p2"); lab2 = a.newlabel("p2b")
    a("s_waitcnt vmcnt(0) lgkmcnt(0)")
    a("v_readfirstlane_b32 s4, v0")
    a("s_cmp_lt_u32 s4, 64")
    a(f"s_cbranch_scc0 {lab}")
    a("s_memrealtime s[90:91]")
    a("s_memtime s[88:89]")
    a(f"s_add_u32 s76, s42, {512*(NKER-1-launch_idx)}")
    a("s_addc_u32 s77, s43, 0")
    a("s_mov_b32 s78, 256")
    a("s_mov_b32 s79, 0x00020000")
    a("s_waitcnt lgkmcnt(0)")
    a("v_mov_b32 v1, 0")
    a("v_mov_b32 v2, s90")
    a("s_mov_b64 exec, 1")
    a(f"buffer_atomic_umax v2, v1, s[76:79], 0 offen offset:{8*kid+4}")
    a("s_cmp_eq_u32 s2, 0")
    a(f"s_cbranch_scc0 {lab2}")
    a("v_mov_b32 v2, s94")
    a(f"buffer_store_dword v2, v1, s[76:79], 0 offen offset:{8*kid}")
    a("s_sub_u32 s88, s88, s92")
    a("s_sub_u32 s90, s90, s94")
    a("v_mov_b32 v2, s88")
    a(f"buffer_store_dword v2, v1, s[76:79], 0 offen offset:{32+8*kid}")
    a("v_mov_b32 v3, s90")
    a(f"buffer_store_dword v3, v1, s[76:79], 0 offen offset:{36+8*kid}")
    a.label(lab2)
    a("s_waitcnt vmcnt(0)")
    a.label(lab)
def prof2_start(a):
    if not PROF2: return
    a("s_memrealtime s[94:95]")
    a("s_memtime s[92:93]")
    a("s_waitcnt lgkmcnt(0)")

def f32bits(x):
    import struct
    return struct.unpack("<I", struct.pack("<f", x))[0]

def bf_round(a, dst, src):
    a(f"v_cvt_pk_bf16_f32 v{dst}, v{src}, v{src}")
    a(f"v_lshlrev_b32 v{dst}, 16, v{dst}")

def unpack(a, lo, hi, src):
    a(f"v_lshlrev_b32 v{lo}, 16, v{src}")
    a(f"v_and_b32 v{hi}, 0xffff0000, v{src}")

def body_ln(a, sc=""):
    X = 8; F = 40
    srd(a, 48, 16, SZ_X)
    srd(a, 52, 44, SZ_X, WS_XNF)
    srd(a, 56, 44, SZ_X, WS_XNT)
    a("v_lshrrev_b32 v1, 3, v0")
    a("v_and_b32 v2, 7, v0")
    a("s_mul_i32 s4, s3, 28672")
    a("v_mul_u32_u24 v3, 896, v1")
    a("v_lshl_add_u32 v3, v2, 4, v3")
    for j in range(7):
        a(f"buffer_load_dwordx4 v[{X+4*j}:{X+4*j+3}], v3, s[48:51], s4 offen offset:{128*j}")
    a("v_lshrrev_b32 v4, 1, v2")
    a("v_lshlrev_b32 v4, 10, v4")
    a("v_and_b32 v5, 1, v2")
    a("v_lshl_add_u32 v4, v5, 9, v4")
    a("v_lshl_add_u32 v4, v1, 4, v4")
    a("v_mul_u32_u24 v5, 912, v1")
    a("v_lshl_add_u32 v5, v2, 4, v5")
    for j in range(7):
        a(f"s_waitcnt vmcnt({6-j})")
        if j == 6: stamp(a, 1)
        for k in range(4):
            unpack(a, F+8*j+2*k, F+8*j+2*k+1, X+4*j+k)
    a(f"v_add_f32 v6, v{F}, v{F+1}")
    a(f"v_add_f32 v7, v{F+2}, v{F+3}")
    a(f"v_add_f32 v96, v{F+4}, v{F+5}")
    a(f"v_add_f32 v97, v{F+6}, v{F+7}")
    accs = [6, 7, 96, 97]
    for i in range(8, 56):
        r = accs[i % 4]
        a(f"v_add_f32 v{r}, v{r}, v{F+i}")
    a("v_add_f32 v6, v6, v7")
    a("v_add_f32 v96, v96, v97")
    a("v_add_f32 v6, v6, v96")
    def red8(r):
        a(f"v_add_f32_dpp v{r}, v{r}, v{r} quad_perm:[1,0,3,2] row_mask:0xf bank_mask:0xf")
        a(f"v_add_f32_dpp v{r}, v{r}, v{r} quad_perm:[2,3,0,1] row_mask:0xf bank_mask:0xf")
        a(f"v_add_f32_dpp v{r}, v{r}, v{r} row_half_mirror row_mask:0xf bank_mask:0xf")
    red8(6)
    a(f"s_mov_b32 s5, {f32bits(1.0/448):#x}")
    a("v_mul_f32 v6, s5, v6")
    bf_round(a, 98, 6)
    for i in range(4):
        a(f"v_mov_b32 v{[7,96,97,99][i]}, 0")
    accs = [7, 96, 97, 99]
    for i in range(56):
        t = 100 + (i % 4)
        a(f"v_sub_f32 v{t}, v{F+i}, v6")
        a(f"v_fmac_f32 v{accs[i%4]}, v{t}, v{t}")
    a("v_add_f32 v7, v7, v96")
    a("v_add_f32 v97, v97, v99")
    a("v_add_f32 v7, v7, v97")
    red8(7)
    a("v_mul_f32 v7, s5, v7")
    bf_round(a, 7, 7)
    a(f"v_add_f32 v7, {f32bits(1e-5):#x}, v7")
    bf_round(a, 7, 7)
    a("v_sqrt_f32 v7, v7")
    bf_round(a, 7, 7)
    a("v_rcp_f32 v7, v7")
    if HALFFOLD:
        srd(a, 60, 44, 8192, WS_R)
        a("s_lshl_b32 s6, s3, 7")
        a("v_lshlrev_b32 v100, 2, v1")
        a("buffer_store_dword v7, v100, s[60:63], s6 offen")
    for j in range(7):
        for k in range(4):
            lo = F+8*j+2*k; hi = lo+1; d = X+4*j+k
            a(f"v_sub_f32 v{lo}, v{lo}, v98")
            a(f"v_sub_f32 v{hi}, v{hi}, v98")
            a(f"v_cvt_pk_bf16_f32 v{d}, v{lo}, v{hi}")
            if HALFFOLD and k == 3:
                a(f"s_add_u32 s6, s4, {4096*j}")
                a(f"buffer_store_dwordx4 v[{X+4*j}:{X+4*j+3}], v4, s[52:55], s6 offen {sc}")
                a("s_nop 4")
        for k in range(4):
            lo = F+8*j+2*k; hi = lo+1; d = X+4*j+k
            unpack(a, lo, hi, d)
            a(f"v_mul_f32 v{lo}, v{lo}, v7")
            a(f"v_mul_f32 v{hi}, v{hi}, v7")
            a(f"v_cvt_pk_bf16_f32 v{d}, v{lo}, v{hi}")
        if not HALFFOLD:
            a(f"s_add_u32 s6, s4, {4096*j}")
            a(f"buffer_store_dwordx4 v[{X+4*j}:{X+4*j+3}], v4, s[52:55], s6 offen {sc}")
        a(f"ds_write_b128 v5, v[{X+4*j}:{X+4*j+3}] offset:{128*j}")
    a("v_and_b32 v1, 63, v0")
    a("v_lshrrev_b32 v2, 4, v1")
    a("v_bfe_u32 v3, v1, 2, 2")
    a("v_and_b32 v6, 3, v1")
    a("v_lshl_add_u32 v7, v2, 3, v3")
    a("v_mul_u32_u24 v7, 912, v7")
    a("v_lshl_add_u32 v7, v6, 3, v7")
    a("v_lshrrev_b32 v6, 6, v0")
    a("v_lshl_add_u32 v7, v6, 5, v7")
    a("v_and_b32 v3, 15, v1")
    a("v_lshl_add_u32 v3, v6, 4, v3")
    a("v_lshlrev_b32 v3, 12, v3")
    a("v_lshl_add_u32 v3, v2, 4, v3")
    a("s_lshl_b32 s6, s3, 6")
    a("s_waitcnt lgkmcnt(0)")
    a("s_barrier")
    for t in range(7):
        r = X + 4*t
        a(f"ds_read_b64_tr_b16 v[{r}:{r+1}], v7 offset:{128*t}")
        a(f"ds_read_b64_tr_b16 v[{r+2}:{r+3}], v7 offset:{128*t+4*912}")
    for t in range(7):
        r = X + 4*t
        a(f"s_waitcnt lgkmcnt({2*(6-t)})")
        a(f"buffer_store_dwordx4 v[{r}:{r+3}], v3, s[56:59], s6 offen {sc}")
        if t < 6: a(f"v_add_u32 v3, {64*4096}, v3")
    if PROF: a("s_waitcnt vmcnt(0)")
    stamp(a, 4); prof_flush(a, 0, 5); prof2_end(a, 0, 0)
    a("s_endpgm")

def relayout_issue(a, W):
    srd(a, 48, 36, SZ_WF)
    srd(a, 52, 38, SZ_WF)
    a("v_lshrrev_b32 v1, 5, v0")
    a("v_and_b32 v2, 31, v0")
    a("s_lshr_b32 s4, s3, 3")
    a("s_mul_i32 s4, s4, 57344")
    a("s_and_b32 s5, s3, 7")
    a("s_mul_i32 s5, s5, 448")
    a("s_add_u32 s4, s4, s5")
    a("v_mul_u32_u24 v3, 3584, v1")
    a("v_lshl_add_u32 v3, v2, 4, v3")
    a(f"buffer_load_dwordx4 v[{W}:{W+3}], v3, s[48:51], s4 offen")
    a("s_add_u32 s4, s4, 28672")
    a(f"buffer_load_dwordx4 v[{W+4}:{W+7}], v3, s[48:51], s4 offen")
    a("s_lshr_b32 s4, s3, 1")
    a("s_mul_i32 s4, s4, 14336")
    a("s_and_b32 s5, s3, 1")
    a("s_mul_i32 s5, s5, 448")
    a("s_add_u32 s4, s4, s5")
    a("v_mul_u32_u24 v3, 896, v1")
    a("v_lshl_add_u32 v3, v2, 4, v3")
    a(f"buffer_load_dwordx4 v[{W+8}:{W+11}], v3, s[52:55], s4 offen")
    a("s_add_u32 s4, s4, 7168")
    a(f"buffer_load_dwordx4 v[{W+12}:{W+15}], v3, s[52:55], s4 offen")

def relayout_finish(a, W, ldsb, sc="", do_w1=True):
    srd(a, 48, 44, SZ_WF, WS_W1F)
    srd(a, 52, 44, SZ_WF, WS_W2F)
    a("v_lshrrev_b32 v1, 5, v0")
    a("v_and_b32 v2, 31, v0")
    a("v_mul_u32_u24 v3, 528, v1")
    a("v_lshl_add_u32 v3, v2, 4, v3")
    a(f"ds_write_b128 v3, v[{W}:{W+3}] offset:{ldsb}")
    a(f"ds_write_b128 v3, v[{W+4}:{W+7}] offset:{ldsb+8*528}")
    a(f"ds_write_b128 v3, v[{W+8}:{W+11}] offset:{ldsb+16*528}")
    a(f"ds_write_b128 v3, v[{W+12}:{W+15}] offset:{ldsb+24*528}")
    a("v_and_b32 v1, 63, v0")
    a("v_lshrrev_b32 v2, 5, v1")
    a("v_bfe_u32 v3, v1, 2, 2")
    a("v_bfe_u32 v4, v1, 4, 1")
    a("v_and_b32 v5, 3, v1")
    a("v_lshlrev_b32 v4, 5, v4")
    a("v_lshl_add_u32 v4, v5, 3, v4")
    a("v_lshrrev_b32 v6, 6, v0")
    a("v_lshl_add_u32 v4, v6, 6, v4")
    a("v_lshl_add_u32 v5, v2, 3, v3")
    a("v_mul_u32_u24 v5, 528, v5")
    a("v_add_u32 v5, v5, v4")
    a("v_lshl_add_u32 v7, v2, 2, v3")
    a("v_mul_u32_u24 v7, 528, v7")
    a("v_add_u32 v7, v7, v4")
    a("v_lshlrev_b32 v1, 4, v1")
    a("v_readfirstlane_b32 s7, v6")
    a("s_waitcnt lgkmcnt(0)")
    a("s_barrier")
    for rnd in range(2):
        if rnd == 1:
            lab = a.newlabel("rl_skip")
            a("s_cmp_eq_u32 s7, 3")
            a(f"s_cbranch_scc1 {lab}")
        o = 256*rnd
        a(f"ds_read_b64_tr_b16 v[{W}:{W+1}], v5 offset:{ldsb+o}")
        a(f"ds_read_b64_tr_b16 v[{W+2}:{W+3}], v5 offset:{ldsb+o+4*528}")
        a(f"ds_read_b64_tr_b16 v[{W+4}:{W+5}], v7 offset:{ldsb+16*528+o}")
        a(f"ds_read_b64_tr_b16 v[{W+6}:{W+7}], v7 offset:{ldsb+16*528+o+8*528}")
        a("s_and_b32 s4, s3, 7")
        a("s_mul_i32 s4, s4, 7")
        a("s_add_u32 s4, s4, s7")
        if rnd: a("s_add_u32 s4, s4, 4")
        a("s_mul_i32 s4, s4, 28")
        a("s_lshr_b32 s5, s3, 3")
        a("s_add_u32 s4, s4, s5")
        a("s_lshl_b32 s4, s4, 10")
        a("s_and_b32 s5, s3, 1")
        a("s_mul_i32 s5, s5, 7")
        a("s_add_u32 s5, s5, s7")
        if rnd: a("s_add_u32 s5, s5, 4")
        a("s_mul_i32 s5, s5, 112")
        a("s_lshr_b32 s6, s3, 1")
        a("s_add_u32 s5, s5, s6")
        a("s_lshl_b32 s5, s5, 10")
        a("s_waitcnt lgkmcnt(2)")
        a(f"buffer_store_dwordx4 v[{W}:{W+3}], v1, s[48:51], s4 offen {sc}")
        a("s_waitcnt lgkmcnt(0)")
        a(f"buffer_store_dwordx4 v[{W+4}:{W+7}], v1, s[52:55], s5 offen {sc}")
        if rnd == 1:
            a.label(lab)

KG_RS = 272
KG_WLDS = 64 * KG_RS
def kg_row(reg, gp):
    return (reg & 3) + 8 * (reg >> 2) + 4 * gp
KG_H = {}
for i in range(8): KG_H[i] = kg_row(i, 0)
for i, h in enumerate([256, 258, 260, 262, 264]): KG_H[h] = kg_row(8 + i, 0)
for i, h in enumerate([512, 516, 520, 768, 772, 776, 1024, 1032, 1280, 1288, 1536, 1544, 1792, 1800]): KG_H[h] = kg_row(i, 1)

def interleave(chains):
    out = []
    chains = [list(c) for c in chains if c]
    while chains:
        for c in chains:
            out.append(c.pop(0))
        chains = [c for c in chains if c]
    return out

def kgen_issue(a, P):
    SZP = 448*256*2
    for i, ptr in enumerate([18, 20, 22, 24, 26, 28]):
        srd(a, 60 + 4*i, ptr, SZP)
    a("v_lshrrev_b32 v1, 6, v0")
    a("v_and_b32 v2, 63, v0")
    a("s_lshl_b32 s4, s3, 10")
    a("v_lshlrev_b32 v3, 2, v0")
    for i in range(6):
        a(f"buffer_load_dword v{P+i}, v3, s[{60+4*i}:{63+4*i}], s4 offen")
    a("s_lshl_b32 s5, s3, 2")
    a("s_load_dword s8, s[30:31], s5")

def kgen_compute(a, P, ACC, ldsb=0):
    LOG2E = 1.4426950408889634
    T = 112
    a("v_lshrrev_b32 v1, 6, v0")
    a("v_lshrrev_b32 v4, 7, v0")
    a("v_mov_b32 v5, s8")
    a("v_lshlrev_b32 v6, 16, v5")
    a("v_and_b32 v5, 0xffff0000, v5")
    a("v_cmp_eq_u32 vcc, 0, v4")
    a("v_cndmask_b32 v5, v5, v6, vcc")
    a(f"v_mul_f32 v5, {f32bits(LOG2E):#x}, v5")
    a("v_exp_f32 v5, v5")
    bf_round(a, 5, 5)
    a("v_and_b32 v2, 63, v0")
    a(f"v_mul_u32_u24 v6, {KG_WLDS}, v1")
    if ldsb: a(f"v_add_u32 v6, {ldsb}, v6")
    a("v_lshl_add_u32 v7, v2, 2, v6")
    a("v_and_b32 v3, 31, v2")
    a(f"v_mul_u32_u24 v3, {KG_RS}, v3")
    a("v_add_u32 v6, v6, v3")
    a("v_lshrrev_b32 v3, 5, v2")
    a("v_lshl_add_u32 v6, v3, 4, v6")
    for i in range(16):
        a(f"v_mov_b32 v{ACC+i}, 0")
    for p in range(2):
        U = 24
        for i in range(6):
            if p == 0: a(f"v_lshlrev_b32 v{U+i}, 16, v{P+i}")
            else: a(f"v_and_b32 v{U+i}, 0xffff0000, v{P+i}")
        a(f"v_mul_f32 v30, v5, v{U}")
        a(f"v_mul_f32 v31, v5, v{U+1}")
        a(f"v_mul_f32 v30, {f32bits(LOG2E):#x}, v30")
        a("v_mul_f32 v31, 0.15915494, v31")
        a(f"v_mul_f32 v{U+2}, v5, v{U+2}")
        a(f"v_mul_f32 v{U+3}, v5, v{U+3}")
        regs = {}
        nxt = [32]
        def alloc(name):
            r = nxt[0]; nxt[0] += 2
            assert nxt[0] <= T
            regs[name] = (r, r + 1); return regs[name]
        def cmul(dst, x, w):
            (dr, di), (xr, xi), (wr, wi) = dst, x, w
            return [f"v_mul_f32 v{dr}, v{xi}, v{wi}", f"v_mul_f32 v{di}, v{xi}, v{wr}",
                    f"v_fma_f32 v{dr}, v{xr}, v{wr}, -v{dr}", f"v_fma_f32 v{di}, v{xr}, v{wi}, v{di}"]
        tcount = [0, 0, 0, 0]
        cur = [0]
        def emitrow(row, z, neg):
            t = T + 2*cur[0] + (tcount[cur[0]] % 2); tcount[cur[0]] += 1
            n = "-" if neg else ""
            return [f"v_cvt_pk_bf16_f32 v{t}, v{z[0]}, {n}v{z[1]}", f"ds_write_b32 v7, v{t} offset:{row*KG_RS}"]
        def direct(dst, tmul, tmp):
            (dr, di) = dst
            return [f"v_mul_f32 v{tmp}, {f32bits(float(tmul)):#x}, v30", f"v_mul_f32 v{tmp+1}, {f32bits(float(tmul)):#x}, v31",
                    f"v_exp_f32 v{tmp}, v{tmp}", f"v_fract_f32 v{tmp+1}, v{tmp+1}",
                    f"v_cos_f32 v{dr}, v{tmp+1}", f"v_sin_f32 v{di}, v{tmp+1}",
                    f"v_mul_f32 v{dr}, v{dr}, v{tmp}", f"v_mul_f32 v{di}, v{di}, v{tmp}"]
        X0 = alloc("X0")
        c0 = cmul(X0, (U+4, U+5), (U+2, U+3))
        w1 = alloc("w1"); w8 = alloc("w8"); w16 = alloc("w16"); w256 = alloc("w256"); w512 = alloc("w512"); w1024 = alloc("w1024")
        for ins in interleave([c0, direct(w1, 1, T+8), direct(w8, 8, T+10), direct(w16, 16, T+12), direct(w256, 256, T+14)]):
            a(ins)
        X = {0: X0}
        for h in [1,2,3,4,5,6,7,8,256,260,264,512,520,768,776]:
            X[h] = alloc(f"X{h}")
        tx = alloc("tx"); tx2 = alloc("tx2")
        ya = [alloc("ya0"), alloc("ya1")]; yb = [alloc("yb0"), alloc("yb1")]
        cur[0] = 0
        chA = emitrow(KG_H[0], X0, True)
        for h in range(1, 8):
            chA += cmul(X[h], X[h-1], w1) + emitrow(KG_H[h], X[h], True)
        cur[0] = 1
        chB = cmul(w512, w256, w256) + cmul(X[8], X0, w8) + cmul(w1024, w512, w512)
        chB += cmul(X[256], X0, w256) + emitrow(KG_H[256], X[256], True)
        chB += cmul(X[264], X[8], w256) + emitrow(KG_H[264], X[264], True)
        chB += cmul(X[512], X0, w512) + emitrow(KG_H[512], X[512], True)
        chB += cmul(X[520], X[8], w512) + emitrow(KG_H[520], X[520], True)
        chB += cmul(X[768], X[256], w512) + emitrow(KG_H[768], X[768], True)
        chB += cmul(X[776], X[264], w512) + emitrow(KG_H[776], X[776], True)
        for (h, src) in [(1024, 0), (1032, 8), (1280, 256), (1288, 264), (1536, 512), (1544, 520), (1792, 768), (1800, 776)]:
            t = tx if (h // 8) % 2 == 0 else tx2
            chB += cmul(t, X[src], w1024) + emitrow(KG_H[h], t, True)
        cur[0] = 2
        chY0 = [f"v_mov_b32 v{T+16}, 0x3f80", f"ds_write_b32 v7, v{T+16} offset:{32*KG_RS}"]
        chY0 += emitrow(32 + 2, w16, False)
        prev = w16
        for k, j in enumerate(range(4, 32, 2)):
            d = ya[k % 2]; chY0 += cmul(d, prev, w16) + emitrow(32 + j, d, False); prev = d
        cur[0] = 3
        chY1 = emitrow(32 + 1, w8, False)
        prev = w8
        for k, j in enumerate(range(3, 32, 2)):
            d = yb[k % 2]; chY1 += cmul(d, prev, w16) + emitrow(32 + j, d, False); prev = d
        for ins in interleave([chA, chB, chY0, chY1]):
            a(ins)
        cur[0] = 0
        chC = cmul(tx, X[2], w256) + emitrow(KG_H[258], tx, True)
        cur[0] = 1
        chD = cmul(X[260], X[4], w256) + emitrow(KG_H[260], X[260], True) + cmul(tx2, X[260], w512) + emitrow(KG_H[772], tx2, True)
        cur[0] = 2
        chE = cmul(ya[0], X[6], w256) + emitrow(KG_H[262], ya[0], True)
        cur[0] = 3
        chF = cmul(yb[0], X[4], w512) + emitrow(KG_H[516], yb[0], True)
        for ins in interleave([chC, chD, chE, chF]):
            a(ins)
        FR = 32
        a("s_waitcnt lgkmcnt(0)")
        for ks in range(8):
            a(f"ds_read_b128 v[{FR+8*ks}:{FR+8*ks+3}], v6 offset:{ks*32}")
            a(f"ds_read_b128 v[{FR+8*ks+4}:{FR+8*ks+7}], v6 offset:{32*KG_RS+ks*32}")
            if ks == 6: pass
        for ks in range(8):
            a(f"s_waitcnt lgkmcnt({min(15, 2*(7-ks))})")
            a(f"v_mfma_f32_32x32x16_bf16 v[{ACC}:{ACC+15}], v[{FR+8*ks}:{FR+8*ks+3}], v[{FR+8*ks+4}:{FR+8*ks+7}], v[{ACC}:{ACC+15}]")

def kgen_finish(a, ACC, red_lds, sc=""):
    srd(a, 48, 44, SZ_X, WS_KREV)
    a("v_lshrrev_b32 v1, 6, v0")
    a("v_and_b32 v2, 63, v0")
    a("v_lshrrev_b32 v3, 7, v0")
    a("v_lshlrev_b32 v4, 12, v3")
    a("v_lshl_add_u32 v4, v2, 4, v4")
    a("v_readfirstlane_b32 s7, v1")
    a("s_barrier")
    lab1 = a.newlabel("kg_nw"); lab2 = a.newlabel("kg_done")
    a("s_bitcmp1_b32 s7, 0")
    a(f"s_cbranch_scc0 {lab1}")
    for q in range(4):
        a(f"ds_write_b128 v4, v[{ACC+4*q}:{ACC+4*q+3}] offset:{red_lds+1024*q}")
    a("s_waitcnt lgkmcnt(0)")
    a.label(lab1)
    a("s_barrier")
    a("s_bitcmp1_b32 s7, 0")
    a(f"s_cbranch_scc1 {lab2}")
    R = 32
    for q in range(4):
        a(f"ds_read_b128 v[{R+4*q}:{R+4*q+3}], v4 offset:{red_lds+1024*q}")
    a("s_waitcnt lgkmcnt(0)")
    for i in range(16):
        a(f"v_add_f32 v{ACC+i}, v{ACC+i}, v{R+i}")
    a("s_lshl_b32 s4, s3, 13")
    a("v_and_b32 v5, 31, v2")
    a("v_lshlrev_b32 v5, 4, v5")
    a("v_lshlrev_b32 v6, 12, v3")
    a("v_sub_u32 v6, v6, v5")
    a("v_add_u32 v6, 4080, v6")
    def pk(d, lo, hi): a(f"v_cvt_pk_bf16_f32 v{d}, v{ACC+lo}, v{ACC+hi}")
    def store(base, d):
        a(f"v_subrev_u32 v7, {2*base}, v6")
        a(f"buffer_store_dwordx4 v[{d}:{d+3}], v7, s[48:51], s4 offen {sc}")
    O = 48
    a("s_mov_b64 s[10:11], exec")
    a("s_mov_b32 exec_lo, -1")
    a("s_mov_b32 exec_hi, 0")
    pk(O, 7, 6); pk(O+1, 5, 4); pk(O+2, 3, 2); pk(O+3, 1, 0); store(0, O)
    pk(O+4, 12, 11); pk(O+5, 10, 10); pk(O+6, 10, 9); pk(O+7, 8, 8); store(256, O+4)
    a("s_mov_b32 exec_lo, 0")
    a("s_mov_b32 exec_hi, -1")
    for b in range(2):
        o = O + 8 + 4*b; r0 = 3*b
        pk(o, r0+2, r0+2); pk(o+1, r0+1, r0+1); pk(o+2, r0+1, r0); pk(o+3, r0, r0); store(512 + 256*b, o)
    a("v_and_b32 v5, 1, v2")
    a("v_cmp_eq_u32 vcc, 0, v5")
    for b in range(4):
        o = O + 16 + 4*b; r0 = 6 + 2*b
        a(f"v_cndmask_b32 v{R}, v{ACC+r0+1}, v{ACC+r0}, vcc")
        pk(o, r0+1, r0+1)
        a(f"v_cvt_pk_bf16_f32 v{o+1}, v{ACC+r0+1}, v{R}")
        pk(o+2, r0, r0); pk(o+3, r0, r0); store(1024 + 256*b, o)
    a("s_mov_b64 exec, s[10:11]")
    a.label(lab2)


def body_gemm1(a, sc="", rbfq_done=False):
    NB = 4; NCH = 14
    srd(a, 48, 44, SZ_WF, WS_W1F)
    srd(a, 52, 44, SZ_X, WS_XNF)
    srd(a, 56, 44, SZ_H, WS_H)
    if not rbfq_done:
        a("s_mul_hi_u32 s12, s3, 0x12492493")
        a("s_mul_i32 s13, s12, 14")
        a("s_sub_u32 s13, s3, s13")
    a("v_lshrrev_b32 v1, 6, v0")
    a("v_and_b32 v2, 63, v0")
    a("v_readfirstlane_b32 s7, v1")
    a("v_lshlrev_b32 v3, 4, v2")
    a("s_lshl_b32 s4, s13, 2")
    a("s_add_u32 s4, s4, s7")
    a("s_mul_i32 s4, s4, 28672")
    a("s_lshl_b32 s5, s12, 2")
    a("s_add_u32 s5, s5, s7")
    a("s_mul_i32 s5, s5, 28672")
    a("s_lshl_b32 s6, s7, 11")
    def dma(c):
        buf = c % NB
        a(f"s_add_u32 m0, s6, {buf*16384}")
        a(f"buffer_load_dwordx4 v3, s[48:51], s4 offen lds")
        a(f"buffer_load_dwordx4 v3, s[48:51], s4 offen offset:1024 lds")
        a(f"s_add_u32 m0, s6, {buf*16384+8192}")
        a(f"buffer_load_dwordx4 v3, s[52:55], s5 offen lds")
        a(f"buffer_load_dwordx4 v3, s[52:55], s5 offen offset:1024 lds")
        a("s_add_u32 s4, s4, 2048")
        a("s_add_u32 s5, s5, 2048")
    for c in range(3): dma(c)
    a("s_and_b32 s8, s7, 1")
    a("s_lshr_b32 s9, s7, 1")
    a("s_lshl_b32 s10, s8, 12")
    a("s_lshl_b32 s11, s9, 12")
    a("s_add_u32 s11, s11, 8192")
    a("v_add_u32 v4, s10, v3")
    a("v_add_u32 v5, s11, v3")
    ACC = 64; S0 = 16; S1 = 32
    for i in range(64): a(f"v_mov_b32 v{ACC+i}, 0")
    def reads(c, st, S):
        o = (c % NB)*16384 + st*1024
        a(f"ds_read_b128 v[{S}:{S+3}], v4 offset:{o}")
        a(f"ds_read_b128 v[{S+4}:{S+7}], v4 offset:{o+2048}")
        a(f"ds_read_b128 v[{S+8}:{S+11}], v5 offset:{o}")
        a(f"ds_read_b128 v[{S+12}:{S+15}], v5 offset:{o+2048}")
    def mfmas(S):
        for aa in range(2):
            for b in range(2):
                d = ACC + 16*(2*aa+b)
                a(f"v_mfma_f32_32x32x16_bf16 v[{d}:{d+15}], v[{S+4*aa}:{S+4*aa+3}], v[{S+8+4*b}:{S+8+4*b+3}], v[{d}:{d+15}]")
    for c in range(NCH):
        rem = min(NCH - 1 - c, 2)
        a(f"s_waitcnt vmcnt({4*rem})")
        a("s_barrier")
        if c == 0: stamp(a, 1)
        if c + 3 < NCH: dma(c + 3)
        reads(c, 0, S0)
        if c > 0: mfmas(S1)
        reads(c, 1, S1)
        a("s_waitcnt lgkmcnt(4)")
        mfmas(S0)
        a("s_waitcnt lgkmcnt(0)")
    mfmas(S1)
    stamp(a, 2)
    a("s_lshl_b32 s4, s12, 2")
    a("s_lshl_b32 s5, s9, 1")
    a("s_add_u32 s4, s4, s5")
    a("s_mul_i32 s4, s4, 112")
    a("s_lshl_b32 s5, s13, 3")
    a("s_lshl_b32 s6, s8, 2")
    a("s_add_u32 s5, s5, s6")
    a("s_add_u32 s4, s4, s5")
    a("s_lshl_b32 s4, s4, 10")
    if HALFFOLD:
        srd(a, 60, 44, 8192, WS_R)
        a("s_lshl_b32 s5, s12, 9")
        a("s_lshl_b32 s6, s9, 8")
        a("s_add_u32 s5, s5, s6")
        a("v_and_b32 v6, 31, v2")
        a("v_lshlrev_b32 v6, 2, v6")
        a("buffer_load_dword v8, v6, s[60:63], s5 offen")
        a("buffer_load_dword v9, v6, s[60:63], s5 offen offset:128")
        a("s_waitcnt vmcnt(0)")
    for aa in range(2):
        for b in range(2):
            d = ACC + 16*(2*aa+b)
            o = S0 + 8*((2*aa+b) % 2) + (0 if (2*aa+b) < 2 else 16)
            if HALFFOLD:
                for k in range(16): a(f"v_mul_f32 v{d+k}, v{d+k}, v{8+b}")
            for k in range(8):
                a(f"v_cvt_pk_bf16_f32 v{o+k}, v{d+2*k}, v{d+2*k+1}")
                a(f"v_pk_max_i16 v{o+k}, v{o+k}, 0")
            a(f"s_add_u32 s5, s4, {(b*112 + 2*aa)*1024}")
            a(f"buffer_store_dwordx4 v[{o}:{o+3}], v3, s[56:59], s5 offen {sc}")
            a(f"buffer_store_dwordx4 v[{o+4}:{o+7}], v3, s[56:59], s5 offen offset:1024 {sc}")

CV_BS = 320; CV_CS = 7376; CV_K = 4*CV_CS; CV_CH = CV_K + 4352
def body_conv(a, sc_in="", sc_out=""):
    srd(a, 48, 44, SZ_X, WS_XNT)
    srd(a, 52, 44, SZ_X, WS_KREV)
    srd(a, 56, 44, SZ_X, WS_AOUT)
    a("s_lshl_b32 s5, s3, 2")
    a("s_load_dword s8, s[32:33], s5")
    a("v_lshrrev_b32 v1, 7, v0")
    a("v_and_b32 v2, 127, v0")
    a("s_lshl_b32 s4, s3, 13")
    a("v_lshlrev_b32 v3, 12, v1")
    a("v_lshl_add_u32 v3, v2, 4, v3")
    D = 16
    for k in range(2):
        a(f"buffer_load_dwordx4 v[{D+8*k}:{D+8*k+3}], v3, s[48:51], s4 offen offset:{2048*k} {sc_in}")
    a("v_add_u32 v4, -8, v3")
    a("v_max_i32 v4, 0, v4")
    a(f"buffer_load_dwordx2 v[{D+4}:{D+5}], v4, s[48:51], s4 offen {sc_in}")
    a(f"buffer_load_dwordx2 v[{D+12}:{D+13}], v3, s[48:51], s4 offen offset:2040 {sc_in}")
    for k in range(2):
        a(f"buffer_load_dwordx4 v[{40+4*k}:{40+4*k+3}], v3, s[52:55], s4 offen offset:{2048*k} {sc_in}")
    a(f"v_mul_u32_u24 v5, {CV_CH}, v1")
    for i in range(4): a(f"v_mov_b32 v{48+i}, 0")
    a("v_lshl_add_u32 v6, v2, 4, v5")
    for rho in range(4):
        a(f"ds_write_b128 v6, v[48:51] offset:{rho*CV_CS}")
    a("v_cmp_gt_u32 vcc, 12, v2")
    a("s_and_saveexec_b64 s[10:11], vcc")
    for rho in range(4):
        a(f"ds_write_b128 v6, v[48:51] offset:{rho*CV_CS+2048}")
    a("s_mov_b64 exec, s[10:11]")
    a("v_cmp_gt_u32 vcc, 16, v2")
    a("s_and_saveexec_b64 s[10:11], vcc")
    a(f"ds_write_b128 v6, v[48:51] offset:{CV_K+4096}")
    a("s_mov_b64 exec, s[10:11]")
    a("v_lshrrev_b32 v7, 4, v2")
    a(f"v_mul_u32_u24 v7, {CV_BS}, v7")
    a("v_and_b32 v8, 15, v2")
    a("v_lshl_add_u32 v7, v8, 4, v7")
    a("v_add_u32 v7, v7, v5")
    a("v_cmp_eq_u32 vcc, 0, v2")
    a("s_waitcnt vmcnt(2)")
    a(f"v_cndmask_b32_e64 v{D+4}, v{D+4}, 0, vcc")
    a(f"v_cndmask_b32_e64 v{D+5}, v{D+5}, 0, vcc")
    for k in range(2):
        d = D + 8*k; p = d + 4
        ob = 7*CV_BS + k*8*CV_BS
        E = 52
        a(f"ds_write_b128 v7, v[{d}:{d+3}] offset:{3*CV_CS+ob}")
        a(f"v_mov_b32 v{E}, v{p+1}"); a(f"v_mov_b32 v{E+1}, v{d}"); a(f"v_mov_b32 v{E+2}, v{d+1}"); a(f"v_mov_b32 v{E+3}, v{d+2}")
        a(f"ds_write_b128 v7, v[{E}:{E+3}] offset:{1*CV_CS+ob}")
        a(f"v_alignbit_b32 v{E+4}, v{d}, v{p+1}, 16")
        a(f"v_alignbit_b32 v{E+5}, v{d+1}, v{d}, 16")
        a(f"v_alignbit_b32 v{E+6}, v{d+2}, v{d+1}, 16")
        a(f"v_alignbit_b32 v{E+7}, v{d+3}, v{d+2}, 16")
        a(f"ds_write_b128 v7, v[{E+4}:{E+7}] offset:{2*CV_CS+ob}")
        a(f"v_alignbit_b32 v{E+8}, v{p+1}, v{p}, 16")
        a(f"v_mov_b32 v{E+9}, v{E+4}"); a(f"v_mov_b32 v{E+10}, v{E+5}"); a(f"v_mov_b32 v{E+11}, v{E+6}")
        a(f"ds_write_b128 v7, v[{E+8}:{E+11}] offset:{0*CV_CS+ob}")
    a("s_waitcnt vmcnt(0)")
    for k in range(2):
        a(f"ds_write_b128 v6, v[{40+4*k}:{40+4*k+3}] offset:{CV_K+2048*k}")
    a("v_and_b32 v1, 63, v0")
    a("v_bfe_u32 v2, v0, 6, 1")
    a("v_lshrrev_b32 v3, 5, v1")
    a("v_and_b32 v4, 3, v1")
    a("v_bfe_u32 v6, v1, 2, 3")
    a(f"v_mul_u32_u24 v8, {CV_CS}, v4")
    a(f"v_mul_u32_u24 v9, {CV_BS}, v6")
    a("v_add3_u32 v8, v8, v9, v5")
    a("v_lshl_add_u32 v8, v3, 4, v8")
    a(f"v_mul_u32_u24 v9, {4*CV_BS}, v2")
    a("v_sub_u32 v8, v8, v9")
    a("v_and_b32 v4, 31, v1")
    a("v_lshlrev_b32 v9, 3, v4")
    a("v_sub_u32 v9, v5, v9")
    a("v_lshl_add_u32 v9, v3, 4, v9")
    a("v_lshlrev_b32 v10, 10, v2")
    a("v_sub_u32 v9, v9, v10")
    a(f"v_add_u32 v9, {CV_K + 2*(2156-496)}, v9")
    a("v_add_u32 v10, -2048, v9")
    A0 = 64; A1 = 80
    for i in range(32): a(f"v_mov_b32 v{A0+i}, 0")
    a("s_waitcnt lgkmcnt(0)")
    a("s_barrier")
    stamp(a, 1)
    NS = 3
    def rd(sp):
        S = 16 + 16*(sp % NS)
        z = 1008 - 16*sp
        ou = (z >> 7)*CV_BS + (z & 127)*2
        ok = 32*(31 - sp)
        a(f"ds_read_b128 v[{S}:{S+3}], v8 offset:{ou}")
        a(f"ds_read_b64 v[{S+8}:{S+9}], v9 offset:{ok}")
        a(f"ds_read_b64 v[{S+10}:{S+11}], v9 offset:{ok+8}")
        a(f"ds_read_b128 v[{S+4}:{S+7}], v8 offset:{ou+8*CV_BS}")
        a(f"ds_read_b64 v[{S+12}:{S+13}], v10 offset:{ok}")
        a(f"ds_read_b64 v[{S+14}:{S+15}], v10 offset:{ok+8}")
    rd(0); rd(1)
    for sp in range(32):
        if sp + 2 < 32: rd(sp + 2)
        left = min(2, 31 - sp)
        a(f"s_waitcnt lgkmcnt({6*left})")
        S = 16 + 16*(sp % NS)
        a(f"v_mfma_f32_32x32x16_bf16 v[{A0}:{A0+15}], v[{S}:{S+3}], v[{S+8}:{S+11}], v[{A0}:{A0+15}]")
        a(f"v_mfma_f32_32x32x16_bf16 v[{A1}:{A1+15}], v[{S+4}:{S+7}], v[{S+8}:{S+11}], v[{A1}:{A1+15}]")
        a(f"v_mfma_f32_32x32x16_bf16 v[{A1}:{A1+15}], v[{S}:{S+3}], v[{S+12}:{S+15}], v[{A1}:{A1+15}]")
    stamp(a, 2)
    a("v_readfirstlane_b32 s7, v2")
    a("v_lshlrev_b32 v3, 4, v1")
    a("v_add_u32 v3, v3, v5")
    a("s_barrier")
    l1 = a.newlabel("cv_x1"); l2 = a.newlabel("cv_x2"); l3 = a.newlabel("cv_x3"); l4 = a.newlabel("cv_x4")
    a("s_cmp_eq_u32 s7, 0")
    a(f"s_cbranch_scc0 {l1}")
    for q in range(4): a(f"ds_write_b128 v3, v[{A1+4*q}:{A1+4*q+3}] offset:{1024*q}")
    a(f"s_branch {l2}")
    a.label(l1)
    for q in range(4): a(f"ds_write_b128 v3, v[{A0+4*q}:{A0+4*q+3}] offset:{CV_CS+1024*q}")
    for i in range(16): a(f"v_mov_b32 v{A0+i}, v{A1+i}")
    a.label(l2)
    a("s_waitcnt lgkmcnt(0)")
    a("s_barrier")
    a("v_sub_u32 v4, 1, v2")
    a(f"v_mul_u32_u24 v4, {CV_CS}, v4")
    a("v_add_u32 v3, v3, v4")
    R = 16
    for q in range(4): a(f"ds_read_b128 v[{R+4*q}:{R+4*q+3}], v3 offset:{1024*q}")
    a("v_lshrrev_b32 v3, 5, v1")
    a("v_lshl_add_u32 v4, v2, 3, v3")
    a(f"v_mul_u32_u24 v6, {CV_BS}, v4")
    a("v_and_b32 v7, 31, v1")
    a("v_lshl_add_u32 v6, v7, 3, v6")
    a("v_add_u32 v6, v6, v5")
    X = 32
    for q in range(4): a(f"ds_read_b64 v[{X+2*q}:{X+2*q+1}], v6 offset:{3*CV_CS + (7+2*q)*CV_BS}")
    a("v_lshrrev_b32 v8, 7, v0")
    a("v_lshlrev_b32 v8, 12, v8")
    a("v_lshl_add_u32 v8, v4, 8, v8")
    a("v_lshl_add_u32 v8, v7, 3, v8")
    a("v_lshrrev_b32 v9, 7, v0")
    a("v_mov_b32 v10, s8")
    a("v_lshlrev_b32 v11, 16, v10")
    a("v_and_b32 v10, 0xffff0000, v10")
    a("v_cmp_eq_u32 vcc, 0, v9")
    a("v_cndmask_b32 v10, v10, v11, vcc")
    a("s_waitcnt lgkmcnt(0)")
    for i in range(16): a(f"v_add_f32 v{A0+i}, v{A0+i}, v{R+i}")
    T = 40
    for q in range(4):
        for hh in range(2):
            y0 = A0 + 4*q + 2*hh; x = X + 2*q + hh
            a(f"v_cvt_pk_bf16_f32 v{T}, v{y0}, v{y0+1}")
            unpack(a, T+1, T+2, T)
            unpack(a, T+3, T+4, x)
            a(f"v_mul_f32 v{T+3}, v{T+3}, v10")
            a(f"v_mul_f32 v{T+4}, v{T+4}, v10")
            a(f"v_cvt_pk_bf16_f32 v{T}, v{T+3}, v{T+4}")
            unpack(a, T+3, T+4, T)
            a(f"v_add_f32 v{T+1}, v{T+1}, v{T+3}")
            a(f"v_add_f32 v{T+2}, v{T+2}, v{T+4}")
            a(f"v_cvt_pk_bf16_f32 v{48+2*q+hh}, v{T+1}, v{T+2}")
        a(f"buffer_store_dwordx2 v[{48+2*q}:{48+2*q+1}], v8, s[56:59], s4 offen offset:{512*q} {sc_out}")


def body_gemm2(a, sc_in="", wait_aout=None, rbdq_done=False):
    PF = 8
    srd(a, 48, 44, SZ_WF, WS_W2F)
    srd(a, 52, 44, SZ_H, WS_H)
    srd(a, 56, 44, SZ_X, WS_AOUT)
    srd(a, 60, 16, SZ_X)
    srd(a, 64, 40, SZ_X)
    if not rbdq_done:
        a("s_mul_hi_u32 s12, s3, 0x24924925")
        a("s_mul_i32 s13, s12, 7")
        a("s_sub_u32 s13, s3, s13")
    a("v_lshrrev_b32 v1, 6, v0")
    a("v_and_b32 v2, 63, v0")
    a("v_readfirstlane_b32 s7, v1")
    a("v_lshlrev_b32 v3, 4, v2")
    a("s_mul_i32 s4, s7, 28")
    a("s_lshl_b32 s5, s13, 1")
    a("s_mul_i32 s5, s5, 112")
    a("s_add_u32 s5, s5, s4")
    a("s_lshl_b32 s68, s5, 10")
    a(f"s_add_u32 s69, s68, {112*1024}")
    a("s_lshl_b32 s5, s12, 1")
    a("s_mul_i32 s5, s5, 112")
    a("s_add_u32 s5, s5, s4")
    a("s_lshl_b32 s70, s5, 10")
    a(f"s_add_u32 s71, s70, {112*1024}")
    ACC = 0 + 16; FR = 80; XR = 208; AR = 216
    def ld(ks):
        S = FR + 16*(ks % PF); o = (ks % 4)*1024
        a(f"buffer_load_dwordx4 v[{S}:{S+3}], v3, s[48:51], s68 offen offset:{o}")
        a(f"buffer_load_dwordx4 v[{S+8}:{S+11}], v3, s[52:55], s70 offen offset:{o} {sc_in}")
        a(f"buffer_load_dwordx4 v[{S+4}:{S+7}], v3, s[48:51], s69 offen offset:{o}")
        a(f"buffer_load_dwordx4 v[{S+12}:{S+15}], v3, s[52:55], s71 offen offset:{o} {sc_in}")
        if ks % 4 == 3:
            for r in (68, 69, 70, 71): a(f"s_add_u32 s{r}, s{r}, 4096")
    for ks in range(PF): ld(ks)
    a("s_lshr_b32 s8, s7, 1")
    a("s_and_b32 s9, s7, 1")
    a("s_lshl_b32 s4, s12, 6")
    a("s_lshl_b32 s5, s9, 5")
    a("s_add_u32 s4, s4, s5")
    a("s_lshl_b32 s5, s13, 6")
    a("s_lshl_b32 s6, s8, 5")
    a("s_add_u32 s5, s5, s6")
    a("s_mul_i32 s10, s4, 896")
    a("s_lshl_b32 s6, s5, 1")
    a("s_add_u32 s10, s10, s6")
    a("s_lshl_b32 s11, s5, 12")
    a("s_lshl_b32 s6, s4, 1")
    a("s_add_u32 s11, s11, s6")
    a("v_and_b32 v4, 31, v2")
    a("v_lshrrev_b32 v5, 5, v2")
    a("v_mul_u32_u24 v6, 896, v4")
    a("v_lshl_add_u32 v6, v5, 3, v6")
    a("v_lshlrev_b32 v7, 14, v5")
    a("v_lshl_add_u32 v7, v4, 1, v7")
    def ld_epi():
        for q in range(4):
            a(f"buffer_load_dwordx2 v[{XR+2*q}:{XR+2*q+1}], v6, s[60:63], s10 offen offset:{16*q}")
        for q in range(4):
            for r in range(4):
                a(f"s_add_u32 s6, s11, {(8*q+r)*4096}")
                a(f"buffer_load_ushort v{AR+4*q+r}, v7, s[56:59], s6 offen {sc_in}")
    for i in range(64): a(f"v_mov_b32 v{ACC+i}, 0")
    NK = 28
    EPI_AT = NK - PF - 1 if wait_aout is None else None
    issued_epi = False
    for ks in range(NK):
        later = min(ks + PF - 1, NK - 1) - ks
        n = 4*later + (20 if issued_epi and epi_after_step >= ks else 0)
        a(f"s_waitcnt vmcnt({min(n, 63)})")
        if ks == 0: stamp(a, 1)
        S = FR + 16*(ks % PF)
        for aa in range(2):
            for b in range(2):
                d = ACC + 16*(2*aa+b)
                a(f"v_mfma_f32_32x32x16_bf16 v[{d}:{d+15}], v[{S+4*aa}:{S+4*aa+3}], v[{S+8+4*b}:{S+8+4*b+3}], v[{d}:{d+15}]")
        if ks + PF < NK: ld(ks + PF)
        if wait_aout is None and ks + PF == NK - 1:
            ld_epi(); issued_epi = True; epi_after_step = NK - 1
    stamp(a, 2)
    if wait_aout is not None:
        wait_aout(a); ld_epi()
    a("s_lshl_b32 s4, s7, 14")
    a("v_add_u32 v8, s4, v3")
    for t in range(4):
        lab = a.newlabel("g2w")
        a(f"s_cmp_eq_u32 s7, {t}")
        a(f"s_cbranch_scc1 {lab}")
        for q in range(4):
            a(f"ds_write_b128 v8, v[{ACC+16*t+4*q}:{ACC+16*t+4*q+3}] offset:{t*4096+q*1024}")
        a(f"s_branch {lab}_e")
        a.label(lab)
        for i in range(16): a(f"v_mov_b32 v{FR+i}, v{ACC+16*t+i}")
        a.label(lab + "_e")
    a("s_lshl_b32 s4, s7, 12")
    a("v_add_u32 v8, s4, v3")
    a("s_waitcnt lgkmcnt(0)")
    a("s_barrier")
    R = FR + 16
    for j in range(3):
        a(f"s_add_u32 s4, s7, {1+j}")
        a("s_and_b32 s4, s4, 3")
        a("s_lshl_b32 s4, s4, 14")
        a(f"v_add_u32 v{9+j}, s4, v8")
        for q in range(4):
            a(f"ds_read_b128 v[{R+16*j+4*q}:{R+16*j+4*q+3}], v{9+j} offset:{q*1024}")
    for j in range(3):
        a(f"s_waitcnt lgkmcnt({4*(2-j)})")
        for i in range(16): a(f"v_add_f32 v{FR+i}, v{FR+i}, v{R+16*j+i}")
    a("s_waitcnt vmcnt(0)")
    T = 16
    for q in range(4):
        for hh in range(2):
            f0 = FR + 4*q + 2*hh; x = XR + 2*q + hh; ao = AR + 4*q + 2*hh
            a(f"v_cvt_pk_bf16_f32 v{T}, v{f0}, v{f0+1}")
            unpack(a, T+1, T+2, T)
            unpack(a, T+3, T+4, x)
            a(f"v_lshlrev_b32 v{ao}, 16, v{ao}")
            a(f"v_lshlrev_b32 v{ao+1}, 16, v{ao+1}")
            a(f"v_add_f32 v{T+3}, v{T+3}, v{ao}")
            a(f"v_add_f32 v{T+4}, v{T+4}, v{ao+1}")
            a(f"v_cvt_pk_bf16_f32 v{T}, v{T+3}, v{T+4}")
            unpack(a, T+3, T+4, T)
            a(f"v_add_f32 v{T+1}, v{T+1}, v{T+3}")
            a(f"v_add_f32 v{T+2}, v{T+2}, v{T+4}")
            if PERT and q == 0 and hh == 0:
                lab = a.newlabel("pert")
                a("s_cmp_eq_u32 s2, 0")
                a(f"s_cbranch_scc0 {lab}")
                a(f"v_add_f32 v{T+1}, {f32bits(PERT):#x}, v{T+1}")
                a.label(lab)
            a(f"v_cvt_pk_bf16_f32 v{24+2*q+hh}, v{T+1}, v{T+2}")
        a(f"buffer_store_dwordx2 v[{24+2*q}:{24+2*q+1}], v6, s[64:67], s10 offen offset:{16*q}")

def build_k2():
    a = Asm()
    load_ptrs(a)
    a("s_cmp_ge_u32 s2, 224")
    a("s_cbranch_scc1 L_k2_end")
    a("s_waitcnt lgkmcnt(0)")
    a("s_mov_b32 s3, s2")
    stamp(a, 0); prof2_start(a)
    if XCDMAP:
        a("s_lshr_b32 s4, s2, 3")
        a("s_mul_hi_u32 s5, s4, 0x24924925")
        a("s_mul_i32 s13, s5, 7")
        a("s_sub_u32 s13, s4, s13")
        a("s_and_b32 s12, s2, 7")
        a("s_lshl_b32 s12, s12, 2")
        a("s_add_u32 s12, s12, s5")
    body_gemm2(a, rbdq_done=XCDMAP)
    if PROF: a("s_waitcnt vmcnt(0)")
    stamp(a, 3); prof_flush(a, 2, 4); prof2_end(a, 2, 2)
    a.label("L_k2_end")
    a("s_endpgm")
    return a

def build_k1(sc=""):
    a = Asm()
    load_ptrs(a)
    a("s_cmp_ge_u32 s2, 448")
    a("s_cbranch_scc1 L_k1_end")
    a("s_waitcnt lgkmcnt(0)")
    stamp(a, 0); prof2_start(a)
    a("s_cmp_ge_u32 s2, 224")
    a("s_cbranch_scc1 L_k1_conv")
    a("s_mov_b32 s3, s2")
    if XCDMAP:
        a("s_lshr_b32 s4, s2, 3")
        a("s_mul_hi_u32 s5, s4, 0x12492493")
        a("s_mul_i32 s13, s5, 14")
        a("s_sub_u32 s13, s4, s13")
        a("s_and_b32 s12, s2, 7")
        a("s_lshl_b32 s12, s12, 1")
        a("s_add_u32 s12, s12, s5")
    body_gemm1(a, sc, rbfq_done=XCDMAP)
    if PROF: a("s_waitcnt vmcnt(0)")
    stamp(a, 3); prof_flush(a, 1, 4); prof2_end(a, 1, 1)
    a("s_endpgm")
    a.label("L_k1_conv")
    a("s_sub_u32 s3, s2, 224")
    body_conv(a, "", sc)
    if PROF: a("s_waitcnt vmcnt(0)")
    stamp(a, 3); prof_flush(a, 1, 4); prof2_end(a, 1, 1)
    a.label("L_k1_end")
    a("s_endpgm")
    return a

def build_k0(sc=""):
    a = Asm()
    load_ptrs(a)
    lab_ln = "L_k0_ln"; lab_end = "L_k0_end"
    a("s_cmp_ge_u32 s2, 288")
    a(f"s_cbranch_scc1 {lab_end}")
    a("s_waitcnt lgkmcnt(0)")
    stamp(a, 0); prof2_start(a)
    a("s_cmp_ge_u32 s2, 224")
    a(f"s_cbranch_scc1 {lab_ln}")
    a("s_mov_b32 s3, s2")
    P = 8; W = 96; ACC = 8
    kgen_issue(a, 16)
    relayout_issue(a, W)
    a("s_waitcnt vmcnt(0) lgkmcnt(0)")
    stamp(a, 1)
    relayout_finish(a, W, 0, sc)
    a("s_barrier")
    stamp(a, 2)
    kgen_compute(a, 16, 132)
    stamp(a, 3)
    kgen_finish(a, 132, 0, sc)
    if PROF: a("s_waitcnt vmcnt(0)")
    stamp(a, 4); prof_flush(a, 0, 5); prof2_end(a, 0, 0)
    a("s_endpgm")
    a.label(lab_ln)
    a("s_sub_u32 s3, s2, 224")
    body_ln(a, sc)
    a.label(lab_end)
    a("s_endpgm")
    return a

def assemble(kernels, path):
    hdr = "; generated by dev/kern.py\n"
    for name, asm, vgpr, grid, lds in kernels:
        hdr += f"; @launch kernel={name} grid=({grid},1,1) block=(256,1,1) lds={lds}\n"
    hdr += '.amdgcn_target "amdgcn-amd-amdhsa--gfx950"\n'
    txt = ""; desc = ""
    for name, asm, vgpr, grid, lds in kernels:
        t, d, n = kernel_text(name, asm, vgpr)
        txt += t; desc += d
        print(f"{name}: {len(t.splitlines())} lines, {n} hazard pads")
    open(path, "w").write(hdr + txt + desc)

def build_all(path, sc=""):
    assemble([("k0_kernel", build_k0(sc), 148, 288, 4*KG_WLDS), ("k1_kernel", build_k1(sc), 128, 448, 2*CV_CH), ("k2_kernel", build_k2(), 232, 224, 65536)], path)

if __name__ == "__main__":
    PROF = True
    build_all("k012p.s")
    PROF = False
    PROF = True
    build_all("k012p_sc1.s", "sc1")
    build_all("k012p_sc01.s", "sc0 sc1")
    build_all("k012p_nt.s", "nt")
    PROF = False
    build_all("k012.s")
    build_all("k012_sc1.s", "sc1")
    for i, p in enumerate([0.08, 0.11, 0.2, 0.4, 1.0]):
        PERT = p
        build_all(f"k012_pert{i}.s", "sc1")
    PERT = 0.0
    HALFFOLD = True
    build_all("k012_hf.s", "sc1")
    HALFFOLD = False
    assemble([("k0_kernel", build_k0(), 148, 288, 4*KG_WLDS)], "k0.s")
    assemble([("k0_kernel", build_k0(), 148, 288, 4*KG_WLDS), ("k1_kernel", build_k1(), 128, 448, 2*CV_CH)], "k01.s")
    assemble([("k0_kernel", build_k0(), 148, 288, 4*KG_WLDS), ("k1_kernel", build_k1(), 128, 448, 2*CV_CH), ("k2_kernel", build_k2(), 232, 224, 65536)], "k012.s")
```

```python
from asmgen import Asm, kernel_text
import kern
from kern import (srd, load_ptrs, f32bits, bf_round, unpack, interleave, kg_row, KG_H, KG_RS, KG_WLDS,
                  kgen_issue, kgen_compute, kgen_finish, CV_BS, CV_CS, CV_K, CV_CH,
                  WS_H, WS_W2F, WS_XNT, WS_KREV, WS_AOUT, SZ_H, SZ_WF, SZ_X, stamp, prof_flush, assemble)
WS_ST = 0x1300000
WS_FLAG = 0x1400000
SC = "sc1"
ROLES = {"g1","ln","kg","g2","cv"}
NOWAIT = False
TOUCH1 = True
FINE = False
NOMFMA = False
SWAP = True
G1MAP47 = True

class VM:
    def __init__(self): self.q = []
    def issue(self, tag, n=1): self.q += [tag] * n
    def wait_for(self, tag):
        last = max(i for i, t in enumerate(self.q) if t == tag)
        return len(self.q) - 1 - last

def xcd_idx(a, div, magic, mul):
    a("s_lshr_b32 s14, s3, 3")
    a(f"s_mul_hi_u32 s5, s14, {magic:#x}")
    a(f"s_mul_i32 s13, s5, {div}")
    a("s_sub_u32 s13, s14, s13")
    a("s_and_b32 s12, s3, 7")
    a(f"s_mul_i32 s12, s12, {mul}")
    a("s_add_u32 s12, s12, s5")

def body_g1(a):
    NB = 5; NCH = 14; WB = NB*8192
    vm = VM()
    srd(a, 48, 16, SZ_X)
    srd(a, 52, 36, SZ_WF)
    if G1MAP47:
        a("s_lshr_b32 s14, s3, 3")
        a("s_mul_hi_u32 s5, s14, 0x24924925")
        a("s_mul_i32 s13, s5, 7")
        a("s_sub_u32 s13, s14, s13")
        a("s_and_b32 s6, s3, 1")
        a("s_mul_i32 s6, s6, 7")
        a("s_add_u32 s13, s13, s6")
        a("s_bfe_u32 s12, s3, 0x20001")
        a("s_lshl_b32 s12, s12, 2")
        a("s_add_u32 s12, s12, s5")
    else:
        xcd_idx(a, 14, 0x12492493, 2)
    a("v_lshrrev_b32 v1, 6, v0")
    a("v_and_b32 v2, 63, v0")
    a("v_readfirstlane_b32 s7, v1")
    a("v_lshrrev_b32 v3, 2, v2")
    a("v_and_b32 v4, 3, v2")
    a("v_bfe_u32 v5, v2, 4, 2")
    a("v_xor_b32 v4, v4, v5")
    a("v_mul_u32_u24 v3, 896, v3")
    a("v_lshl_add_u32 v3, v4, 4, v3")
    a("v_lshrrev_b32 v4, 4, v2")
    a("v_and_b32 v5, 15, v2")
    a("v_lshlrev_b32 v6, 2, v4")
    a("v_xor_b32 v5, v5, v6")
    a("v_mul_u32_u24 v4, 3584, v4")
    a("v_lshl_add_u32 v4, v5, 4, v4")
    a("s_lshl_b32 s8, s12, 2")
    a("s_add_u32 s8, s8, s7")
    a("s_mul_i32 s8, s8, 28672")
    a("s_mul_i32 s9, s7, 28672")
    a("s_lshl_b32 s5, s13, 8")
    a("s_add_u32 s9, s9, s5")
    a("s_lshl_b32 s10, s7, 11")
    def dma(c):
        buf = (c % NB) * 8192
        a(f"s_add_u32 m0, s10, {buf}")
        a(f"buffer_load_dwordx4 v3, s[48:51], s8 offen lds")
        a(f"s_add_u32 m0, s10, {buf+WB}")
        a(f"buffer_load_dwordx4 v4, s[52:55], s9 offen lds")
        a("s_add_u32 s5, s8, 14336")
        a(f"s_add_u32 m0, s10, {buf+1024}")
        a(f"buffer_load_dwordx4 v3, s[48:51], s5 offen lds")
        a("s_add_u32 s5, s9, 14336")
        a(f"s_add_u32 m0, s10, {buf+WB+1024}")
        a(f"buffer_load_dwordx4 v4, s[52:55], s5 offen lds")
        a("s_add_u32 s8, s8, 64")
        a("s_add_u32 s9, s9, 114688")
        vm.issue(("c", c), 4)
    dma(0); dma(1)
    if TOUCH1 and G1MAP47:
        a("s_mul_i32 s5, s14, 224")
        a("v_add_u32 v5, s5, v0")
        a("s_mov_b32 s6, 0x12492493")
        a("v_mul_hi_u32 v6, v5, s6")
        a("v_mul_u32_u24 v7, 14, v6")
        a("v_sub_u32 v7, v5, v7")
        a("v_mul_u32_u24 v6, 3584, v6")
        a("v_lshl_add_u32 v6, v7, 7, v6")
        a("s_and_b32 s6, s3, 1")
        a("s_mul_i32 s6, s6, 1792")
        a("v_cmp_gt_u32 vcc, 224, v0")
        a("v_mov_b32 v7, 0x7ffffff0")
        a("v_cndmask_b32 v6, v7, v6, vcc")
        a("buffer_load_dword v10, v6, s[52:55], s6 offen")
        a("s_bfe_u32 s5, s3, 0x20001")
        a("s_mul_i32 s5, s5, 458752")
        a("s_lshl_b32 s6, s14, 14")
        a("s_add_u32 s5, s5, s6")
        a("v_lshlrev_b32 v5, 7, v0")
        a("v_cmp_gt_u32 vcc, 128, v0")
        a("v_mov_b32 v7, 0x7ffffff0")
        a("v_cndmask_b32 v6, v7, v5, vcc")
        a("buffer_load_dword v11, v6, s[48:51], s5 offen")
        vm.issue("touch", 2)
    dma(2); dma(3)
    srd(a, 56, 44, SZ_H, WS_H)
    srd(a, 60, 44, 16384, WS_ST)
    srd(a, 64, 42, 256)
    a("s_and_b32 s15, s7, 1")
    a("s_lshr_b32 s11, s7, 1")
    a("v_and_b32 v5, 31, v2")
    a("v_lshrrev_b32 v6, 5, v2")
    a("v_bfe_u32 v7, v2, 2, 2")
    a("v_xor_b32 v7, v7, v6")
    a("v_lshlrev_b32 v5, 6, v5")
    a("v_lshl_add_u32 v5, v7, 4, v5")
    a("s_lshl_b32 s5, s11, 12")
    a("v_add_u32 v5, s5, v5")
    a("v_xor_b32 v13, 32, v5")
    a("v_bfe_u32 v7, v2, 2, 2")
    a("v_lshl_add_u32 v8, v6, 3, v7")
    a("v_lshlrev_b32 v8, 8, v8")
    a("v_bfe_u32 v9, v2, 4, 1")
    a("v_lshl_add_u32 v8, v9, 5, v8")
    a("v_and_b32 v9, 3, v2")
    a("v_lshl_add_u32 v8, v9, 3, v8")
    a(f"v_add_u32 v8, {WB}, v8")
    a("s_lshl_b32 s5, s15, 1")
    a("s_add_u32 s68, s5, s11")
    a("s_xor_b32 s69, s68, 1")
    a("v_xor_b32 v9, s68, v7")
    a("v_lshl_add_u32 v14, v9, 6, v8")
    a("v_xor_b32 v9, s69, v7")
    a("v_lshl_add_u32 v15, v9, 6, v8")
    SEL = 48; WACC = 52; ACC = 64; S0 = 16; S1 = 32
    a("v_and_b32 v9, 31, v2")
    a("v_cmp_eq_u32 vcc, 0, v9")
    a("v_cmp_eq_u32 s[70:71], 17, v9")
    a("s_or_b64 vcc, vcc, s[70:71]")
    a("v_mov_b32 v9, 0x3f803f80")
    a(f"v_cndmask_b32 v{SEL}, 0, v9, vcc")
    for i in range(1, 4): a(f"v_mov_b32 v{SEL+i}, v{SEL}")
    for i in range(4): a(f"v_mov_b32 v{WACC+i}, 0")
    for i in range(64): a(f"v_mov_b32 v{ACC+i}, 0")
    def reads(c, st, S):
        o = (c % NB) * 8192
        vb = 5 if st == 0 else 13
        a(f"ds_read_b64_tr_b16 v[{S}:{S+1}], v14 offset:{o+st*4096}")
        a(f"ds_read_b64_tr_b16 v[{S+2}:{S+3}], v14 offset:{o+st*4096+1024}")
        a(f"ds_read_b128 v[{S+8}:{S+11}], v{vb} offset:{o}")
        a(f"ds_read_b64_tr_b16 v[{S+4}:{S+5}], v15 offset:{o+st*4096}")
        a(f"ds_read_b64_tr_b16 v[{S+6}:{S+7}], v15 offset:{o+st*4096+1024}")
        a(f"ds_read_b128 v[{S+12}:{S+15}], v{vb} offset:{o+2048}")
    def mfmas(S):
        if NOMFMA: return
        for aa in range(2):
            for b in range(2):
                d = ACC + 16*(2*aa+b)
                a(f"v_mfma_f32_32x32x16_bf16 v[{d}:{d+15}], v[{S+4*aa}:{S+4*aa+3}], v[{S+8+4*b}:{S+8+4*b+3}], v[{d}:{d+15}]")
        a(f"v_mfma_f32_16x16x32_bf16 v[{WACC}:{WACC+3}], v[{SEL}:{SEL+3}], v[{S}:{S+3}], v[{WACC}:{WACC+3}]")
    ST = 56
    for c in range(NCH):
        a(f"s_waitcnt vmcnt({vm.wait_for(('c', c))})")
        a("s_barrier")
        if c == 0: stamp(a, 1)
        if FINE: stamp(a, 8 + c)
        if c == 9:
            a("v_mov_b32 v61, 0")
            a("s_lshl_b32 s72, s12, 2")
            a(f"buffer_load_dword v60, v61, s[64:67], s72 offen {SC}")
            vm.issue("poll")
        if c + 4 < NCH: dma(c + 4)
        reads(c, 0, S0)
        if c > 0: mfmas(S1)
        reads(c, 1, S1)
        a("s_waitcnt lgkmcnt(6)")
        mfmas(S0)
        if c == 10:
            lab = a.newlabel("g1poll"); ok = a.newlabel("g1ok")
            a(f"s_waitcnt vmcnt({vm.wait_for('poll')})")
            a("v_readfirstlane_b32 s73, v60")
            a("s_cmp_ge_u32 s73, 4")
            a(f"s_cbranch_scc1 {ok}")
            if NOWAIT: a(f"s_branch {ok}")
            a("s_mov_b32 s77, 0")
            a.label(lab)
            a("s_add_u32 s77, s77, 1")
            a("s_cmp_ge_u32 s77, 0x40000")
            a(f"s_cbranch_scc1 {ok}")
            a("s_sleep 2")
            a(f"buffer_load_dword v60, v61, s[64:67], s72 offen {SC}")
            a("s_waitcnt vmcnt(0)")
            a("v_readfirstlane_b32 s73, v60")
            a("s_cmp_ge_u32 s73, 4")
            a(f"s_cbranch_scc0 {lab}")
            a.label(ok)
            a("s_lshl_b32 s5, s12, 10")
            a("s_lshl_b32 s6, s11, 9")
            a("s_add_u32 s5, s5, s6")
            a("v_and_b32 v61, 31, v2")
            a("v_lshlrev_b32 v61, 3, v61")
            a(f"buffer_load_dwordx2 v[{ST}:{ST+1}], v61, s[60:63], s5 offen {SC}")
            a(f"buffer_load_dwordx2 v[{ST+2}:{ST+3}], v61, s[60:63], s5 offen offset:256 {SC}")
            vm.issue("stats", 2)
        a("s_waitcnt lgkmcnt(0)")
    mfmas(S1)
    stamp(a, 2)
    WL = 4*8192
    a("s_lshl_b32 s5, s68, 7")
    a("v_and_b32 v9, 15, v2")
    a("v_lshlrev_b32 v9, 2, v9")
    a("v_add_u32 v9, s5, v9")
    a("s_mov_b64 s[70:71], exec")
    a("s_mov_b64 exec, 0xffff")
    a(f"ds_write_b32 v9, v{WACC} offset:{WL}")
    a(f"ds_write_b32 v9, v{WACC+1} offset:{WL+64}")
    a("s_mov_b64 exec, s[70:71]")
    a("s_waitcnt lgkmcnt(0)")
    a("s_barrier")
    WR = 16
    a("v_lshrrev_b32 v9, 5, v2")
    a("v_lshlrev_b32 v9, 4, v9")
    a("s_lshl_b32 s5, s68, 7")
    a("v_add_u32 v10, s5, v9")
    a("s_lshl_b32 s5, s69, 7")
    a("v_add_u32 v11, s5, v9")
    for aa in range(2):
        for q in range(4):
            a(f"ds_read_b128 v[{WR+16*aa+4*q}:{WR+16*aa+4*q+3}], v{10+aa} offset:{WL+32*q}")
    a("s_waitcnt vmcnt(0)")
    a(f"v_mul_f32 v{ST}, v{ST}, v{ST+1}")
    a(f"v_mul_f32 v{ST+2}, v{ST+2}, v{ST+3}")
    a("s_lshl_b32 s4, s12, 2")
    a("s_lshl_b32 s5, s11, 1")
    a("s_add_u32 s4, s4, s5")
    a("s_mul_i32 s4, s4, 112")
    a("s_lshl_b32 s5, s13, 3")
    a("s_add_u32 s4, s4, s5")
    a("s_lshl_b32 s5, s68, 1")
    a("s_add_u32 s74, s4, s5")
    a("s_lshl_b32 s74, s74, 10")
    a("s_lshl_b32 s5, s69, 1")
    a("s_add_u32 s75, s4, s5")
    a("s_lshl_b32 s75, s75, 10")
    a("v_lshlrev_b32 v3, 4, v2")
    a("s_waitcnt lgkmcnt(0)")
    O = 48
    for aa in range(2):
        for b in range(2):
            d = ACC + 16*(2*aa+b); w = WR + 16*aa
            for k in range(8):
                a(f"v_pk_mul_f32 v[{4+2*(k%2)}:{5+2*(k%2)}], v[{w+2*k}:{w+2*k+1}], v[{ST+2*b}:{ST+2*b+1}] op_sel_hi:[1,0]")
                a(f"v_pk_fma_f32 v[{d+2*k}:{d+2*k+1}], v[{d+2*k}:{d+2*k+1}], v[{ST+2*b}:{ST+2*b+1}], v[{4+2*(k%2)}:{5+2*(k%2)}] op_sel:[0,1,0] op_sel_hi:[1,1,1] neg_lo:[0,0,1] neg_hi:[0,0,1]")
            o = d
            for k in range(8):
                a(f"v_cvt_pk_bf16_f32 v{o+k}, v{d+2*k}, v{d+2*k+1}")
                a(f"v_pk_max_i16 v{o+k}, v{o+k}, 0")
            a(f"s_add_u32 s5, s{74+aa}, {b*112*1024}")
            a(f"buffer_store_dwordx4 v[{o}:{o+3}], v3, s[56:59], s5 offen {SC}")
            a(f"buffer_store_dwordx4 v[{o+4}:{o+7}], v3, s[56:59], s5 offen offset:1024 {SC}")

def body_ln2(a):
    X = 8; F = 40
    srd(a, 48, 16, SZ_X)
    srd(a, 56, 44, SZ_X, WS_XNT)
    srd(a, 60, 44, 16384, WS_ST)
    srd(a, 64, 42, 256)
    a("v_lshrrev_b32 v1, 3, v0")
    a("v_and_b32 v2, 7, v0")
    a("s_mul_i32 s4, s3, 28672")
    a("v_mul_u32_u24 v3, 896, v1")
    a("v_lshl_add_u32 v3, v2, 4, v3")
    for j in range(7):
        a(f"buffer_load_dwordx4 v[{X+4*j}:{X+4*j+3}], v3, s[48:51], s4 offen offset:{128*j}")
    a("v_mul_u32_u24 v5, 912, v1")
    a("v_lshl_add_u32 v5, v2, 4, v5")
    for j in range(7):
        a(f"s_waitcnt vmcnt({6-j})")
        if j == 6: stamp(a, 1)
        for k in range(4):
            unpack(a, F+8*j+2*k, F+8*j+2*k+1, X+4*j+k)
    a(f"v_add_f32 v6, v{F}, v{F+1}")
    a(f"v_add_f32 v7, v{F+2}, v{F+3}")
    a(f"v_add_f32 v96, v{F+4}, v{F+5}")
    a(f"v_add_f32 v97, v{F+6}, v{F+7}")
    accs = [6, 7, 96, 97]
    for i in range(8, 56):
        r = accs[i % 4]
        a(f"v_add_f32 v{r}, v{r}, v{F+i}")
    a("v_add_f32 v6, v6, v7")
    a("v_add_f32 v96, v96, v97")
    a("v_add_f32 v6, v6, v96")
    def red8(r):
        a(f"v_add_f32_dpp v{r}, v{r}, v{r} quad_perm:[1,0,3,2] row_mask:0xf bank_mask:0xf")
        a(f"v_add_f32_dpp v{r}, v{r}, v{r} quad_perm:[2,3,0,1] row_mask:0xf bank_mask:0xf")
        a(f"v_add_f32_dpp v{r}, v{r}, v{r} row_half_mirror row_mask:0xf bank_mask:0xf")
    red8(6)
    a(f"s_mov_b32 s5, {f32bits(1.0/448):#x}")
    a("v_mul_f32 v6, s5, v6")
    bf_round(a, 98, 6)
    accs = [7, 96, 97, 99]
    for i in range(4): a(f"v_mov_b32 v{accs[i]}, 0")
    for i in range(56):
        t = 100 + (i % 4)
        a(f"v_sub_f32 v{t}, v{F+i}, v6")
        a(f"v_fmac_f32 v{accs[i%4]}, v{t}, v{t}")
    a("v_add_f32 v7, v7, v96")
    a("v_add_f32 v97, v97, v99")
    a("v_add_f32 v7, v7, v97")
    red8(7)
    a("v_mul_f32 v7, s5, v7")
    bf_round(a, 7, 7)
    a(f"v_add_f32 v7, {f32bits(1e-5):#x}, v7")
    bf_round(a, 7, 7)
    a("v_sqrt_f32 v7, v7")
    bf_round(a, 99, 7)
    a("v_rcp_f32 v99, v99")
    a("s_lshl_b32 s6, s3, 8")
    a("v_lshlrev_b32 v100, 3, v1")
    a(f"buffer_store_dwordx2 v[98:99], v100, s[60:63], s6 offen {SC}")
    a("s_waitcnt vmcnt(0)")
    a("s_barrier")
    lab = a.newlabel("lnpub")
    a("v_readfirstlane_b32 s7, v0")
    a("s_cmp_lt_u32 s7, 64")
    a(f"s_cbranch_scc0 {lab}")
    a("s_lshr_b32 s6, s3, 2")
    a("s_lshl_b32 s6, s6, 2")
    a("v_mov_b32 v100, 0")
    a("v_mov_b32 v101, 1")
    a("s_mov_b64 s[70:71], exec")
    a("s_mov_b64 exec, 1")
    a("buffer_atomic_add v101, v100, s[64:67], s6 offen")
    a("s_mov_b64 exec, s[70:71]")
    a.label(lab)
    stamp(a, 2)
    for j in range(7):
        for k in range(4):
            lo = F+8*j+2*k; hi = lo+1; d = X+4*j+k
            a(f"v_sub_f32 v{lo}, v{lo}, v98")
            a(f"v_sub_f32 v{hi}, v{hi}, v98")
            a(f"v_cvt_pk_bf16_f32 v{d}, v{lo}, v{hi}")
        for k in range(4):
            lo = F+8*j+2*k; hi = lo+1; d = X+4*j+k
            unpack(a, lo, hi, d)
            a(f"v_mul_f32 v{lo}, v{lo}, v99")
            a(f"v_mul_f32 v{hi}, v{hi}, v99")
            a(f"v_cvt_pk_bf16_f32 v{d}, v{lo}, v{hi}")
        a(f"ds_write_b128 v5, v[{X+4*j}:{X+4*j+3}] offset:{128*j}")
    a("v_and_b32 v1, 63, v0")
    a("v_lshrrev_b32 v2, 4, v1")
    a("v_bfe_u32 v3, v1, 2, 2")
    a("v_and_b32 v6, 3, v1")
    a("v_lshl_add_u32 v7, v2, 3, v3")
    a("v_mul_u32_u24 v7, 912, v7")
    a("v_lshl_add_u32 v7, v6, 3, v7")
    a("v_lshrrev_b32 v6, 6, v0")
    a("v_lshl_add_u32 v7, v6, 5, v7")
    a("v_and_b32 v3, 15, v1")
    a("v_lshl_add_u32 v3, v6, 4, v3")
    a("v_lshlrev_b32 v3, 12, v3")
    a("v_lshl_add_u32 v3, v2, 4, v3")
    a("s_lshl_b32 s6, s3, 6")
    a("s_waitcnt lgkmcnt(0)")
    a("s_barrier")
    for t in range(7):
        r = X + 4*t
        a(f"ds_read_b64_tr_b16 v[{r}:{r+1}], v7 offset:{128*t}")
        a(f"ds_read_b64_tr_b16 v[{r+2}:{r+3}], v7 offset:{128*t+4*912}")
    for t in range(7):
        r = X + 4*t
        a(f"s_waitcnt lgkmcnt({2*(6-t)})")
        a(f"buffer_store_dwordx4 v[{r}:{r+3}], v3, s[56:59], s6 offen {SC}")
        if t < 6: a(f"v_add_u32 v3, {64*4096}, v3")

def w2_issue(a, W):
    srd(a, 52, 38, SZ_WF)
    a("v_lshrrev_b32 v1, 5, v0")
    a("v_and_b32 v2, 31, v0")
    a("s_lshr_b32 s4, s3, 1")
    a("s_mul_i32 s4, s4, 14336")
    a("s_and_b32 s5, s3, 1")
    a("s_mul_i32 s5, s5, 448")
    a("s_add_u32 s4, s4, s5")
    a("v_mul_u32_u24 v3, 896, v1")
    a("v_lshl_add_u32 v3, v2, 4, v3")
    a(f"buffer_load_dwordx4 v[{W}:{W+3}], v3, s[52:55], s4 offen")
    a("s_add_u32 s4, s4, 7168")
    a(f"buffer_load_dwordx4 v[{W+4}:{W+7}], v3, s[52:55], s4 offen")

def w2_finish(a, W, ldsb):
    srd(a, 52, 44, SZ_WF, WS_W2F)
    a("v_lshrrev_b32 v1, 5, v0")
    a("v_and_b32 v2, 31, v0")
    a("v_mul_u32_u24 v3, 528, v1")
    a("v_lshl_add_u32 v3, v2, 4, v3")
    a(f"ds_write_b128 v3, v[{W}:{W+3}] offset:{ldsb}")
    a(f"ds_write_b128 v3, v[{W+4}:{W+7}] offset:{ldsb+8*528}")
    a("v_and_b32 v1, 63, v0")
    a("v_lshrrev_b32 v2, 5, v1")
    a("v_bfe_u32 v3, v1, 2, 2")
    a("v_bfe_u32 v4, v1, 4, 1")
    a("v_and_b32 v5, 3, v1")
    a("v_lshlrev_b32 v4, 5, v4")
    a("v_lshl_add_u32 v4, v5, 3, v4")
    a("v_lshrrev_b32 v6, 6, v0")
    a("v_lshl_add_u32 v4, v6, 6, v4")
    a("v_lshl_add_u32 v7, v2, 2, v3")
    a("v_mul_u32_u24 v7, 528, v7")
    a("v_add_u32 v7, v7, v4")
    a("v_lshlrev_b32 v1, 4, v1")
    a("v_readfirstlane_b32 s7, v6")
    a("s_waitcnt lgkmcnt(0)")
    a("s_barrier")
    for rnd in range(2):
        if rnd == 1:
            lab = a.newlabel("rl_skip")
            a("s_cmp_eq_u32 s7, 3")
            a(f"s_cbranch_scc1 {lab}")
        o = 256*rnd; R = W + 4*rnd
        a(f"ds_read_b64_tr_b16 v[{R}:{R+1}], v7 offset:{ldsb+o}")
        a(f"ds_read_b64_tr_b16 v[{R+2}:{R+3}], v7 offset:{ldsb+o+8*528}")
        a("s_and_b32 s5, s3, 1")
        a("s_mul_i32 s5, s5, 7")
        a("s_add_u32 s5, s5, s7")
        if rnd: a("s_add_u32 s5, s5, 4")
        a("s_mul_i32 s5, s5, 112")
        a("s_lshr_b32 s6, s3, 1")
        a("s_add_u32 s5, s5, s6")
        a("s_lshl_b32 s5, s5, 10")
        a("s_waitcnt lgkmcnt(0)")
        a(f"buffer_store_dwordx4 v[{R}:{R+3}], v1, s[52:55], s5 offen {SC}")
        if rnd == 1: a.label(lab)

def body_kg(a):
    W = 148
    kgen_issue(a, 16)
    w2_issue(a, W)
    a("s_waitcnt vmcnt(2) lgkmcnt(0)")
    stamp(a, 1)
    kgen_compute(a, 16, 132)
    stamp(a, 2)
    a("s_waitcnt vmcnt(0)")
    kgen_finish(a, 132, 0, SC)
    w2_finish(a, W, 16384)

def build_k1():
    kern.PROF_V = 159
    a = Asm()
    load_ptrs(a)
    a("s_cmp_ge_u32 s2, 512")
    a("s_cbranch_scc1 L_k1_end")
    a("s_waitcnt lgkmcnt(0)")
    stamp(a, 0)
    a("s_cmp_lt_u32 s2, 224")
    a(f"s_cbranch_scc1 {'L_k1_kg' if SWAP else 'L_k1_g1'}")
    a("s_cmp_lt_u32 s2, 256")
    a("s_cbranch_scc1 L_k1_lna")
    a("s_cmp_lt_u32 s2, 480")
    a(f"s_cbranch_scc1 {'L_k1_g1' if SWAP else 'L_k1_kg'}")
    a("s_sub_u32 s3, s2, 448")
    a("s_branch L_k1_ln")
    a.label("L_k1_lna")
    a("s_sub_u32 s3, s2, 224")
    a.label("L_k1_ln")
    if "ln" not in ROLES: a("s_endpgm")
    body_ln2(a)
    if kern.PROF: a("s_waitcnt vmcnt(0)")
    stamp(a, 3); prof_flush(a, 0, 4)
    a("s_endpgm")
    a.label("L_k1_kg")
    a("s_mov_b32 s3, s2" if SWAP else "s_sub_u32 s3, s2, 256")
    if "kg" not in ROLES: a("s_endpgm")
    body_kg(a)
    if kern.PROF: a("s_waitcnt vmcnt(0)")
    stamp(a, 3); prof_flush(a, 0, 4)
    a("s_endpgm")
    a.label("L_k1_g1")
    a("s_sub_u32 s3, s2, 256" if SWAP else "s_mov_b32 s3, s2")
    if "g1" not in ROLES: a("s_endpgm")
    body_g1(a)
    if kern.PROF: a("s_waitcnt vmcnt(0)")
    stamp(a, 3); prof_flush(a, 0, 4)
    a.label("L_k1_end")
    a("s_endpgm")
    return a

def body_g2(a):
    PF = 8; NK = 28
    vm = VM()
    if G2PRIO: a(f"s_setprio {G2PRIO}")
    srd(a, 48, 44, SZ_WF, WS_W2F)
    srd(a, 52, 44, SZ_H, WS_H)
    xcd_idx(a, 7, 0x24924925, 4)
    if G2SAME == 1:
        a("s_and_b32 s12, s3, 7")
        a("s_mov_b32 s13, 0")
    if G2SAME == 2:
        a("s_and_b32 s12, s3, 7")
    if G2SAME == 3:
        a("s_mov_b32 s13, 0")
    a("v_lshrrev_b32 v1, 6, v0")
    a("v_and_b32 v2, 63, v0")
    a("v_readfirstlane_b32 s7, v1")
    a("v_lshlrev_b32 v3, 4, v2")
    a("s_mul_i32 s4, s7, 28")
    a("s_lshl_b32 s5, s13, 1")
    a("s_mul_i32 s5, s5, 112")
    a("s_add_u32 s5, s5, s4")
    a("s_lshl_b32 s68, s5, 10")
    a(f"s_add_u32 s69, s68, {112*1024}")
    a("s_lshl_b32 s5, s12, 1")
    a("s_mul_i32 s5, s5, 112")
    a("s_add_u32 s5, s5, s4")
    a("s_lshl_b32 s70, s5, 10")
    a(f"s_add_u32 s71, s70, {112*1024}")
    ACC = 16; FR = 80; XR = 208; AR = 216
    def ld(ks):
        S = FR + 16*(ks % PF); o = (ks % 4)*1024
        a(f"buffer_load_dwordx4 v[{S}:{S+3}], v3, s[48:51], s68 offen offset:{o}")
        a(f"buffer_load_dwordx4 v[{S+8}:{S+11}], v3, s[52:55], s70 offen offset:{o}")
        a(f"buffer_load_dwordx4 v[{S+4}:{S+7}], v3, s[48:51], s69 offen offset:{o}")
        a(f"buffer_load_dwordx4 v[{S+12}:{S+15}], v3, s[52:55], s71 offen offset:{o}")
        if ks % 4 == 3:
            for r in (68, 69, 70, 71): a(f"s_add_u32 s{r}, s{r}, 4096")
        vm.issue(("k", ks), 4)
    for ks in range(2): ld(ks)
    srd(a, 56, 44, SZ_X, WS_AOUT)
    srd(a, 60, 16, SZ_X)
    srd(a, 64, 40, SZ_X)
    srd(a, 72, 44, 8192, WS_FLAG)
    a("s_lshr_b32 s8, s7, 1")
    a("s_and_b32 s9, s7, 1")
    a("s_lshl_b32 s4, s12, 6")
    a("s_lshl_b32 s5, s9, 5")
    a("s_add_u32 s4, s4, s5")
    a("s_lshl_b32 s5, s13, 6")
    a("s_lshl_b32 s6, s8, 5")
    a("s_add_u32 s5, s5, s6")
    a("s_mul_i32 s10, s4, 896")
    a("s_lshl_b32 s6, s5, 1")
    a("s_add_u32 s10, s10, s6")
    a("s_lshl_b32 s11, s5, 12")
    a("s_lshl_b32 s6, s4, 1")
    a("s_add_u32 s11, s11, s6")
    a("v_and_b32 v4, 31, v2")
    a("v_lshrrev_b32 v5, 5, v2")
    a("v_mul_u32_u24 v6, 896, v4")
    a("v_lshl_add_u32 v6, v5, 3, v6")
    a("v_lshlrev_b32 v7, 14, v5")
    a("v_lshl_add_u32 v7, v4, 1, v7")
    for q in range(4):
        a(f"buffer_load_dwordx2 v[{XR+2*q}:{XR+2*q+1}], v6, s[60:63], s10 offen offset:{16*q}")
    vm.issue("x", 4)
    for ks in range(2, PF): ld(ks)
    a("v_mov_b32 v11, 0")
    a("s_lshl_b32 s15, s13, 3")
    a("s_and_b32 s5, s12, 7")
    a("s_add_u32 s15, s15, s5")
    a("s_lshl_b32 s15, s15, 7")
    for i in range(64): a(f"v_mov_b32 v{ACC+i}, 0")
    for ks in range(NK):
        a(f"s_waitcnt vmcnt({min(63, vm.wait_for(('k', ks)))})")
        if ks == 0: stamp(a, 1)
        if FINE and ks % 2 == 0: stamp(a, 8 + ks // 2)
        S = FR + 16*(ks % PF)
        for aa in range(2):
            for b in range(2):
                d = ACC + 16*(2*aa+b)
                a(f"v_mfma_f32_32x32x16_bf16 v[{d}:{d+15}], v[{S+4*aa}:{S+4*aa+3}], v[{S+8+4*b}:{S+8+4*b+3}], v[{d}:{d+15}]")
        if ks + PF < NK: ld(ks + PF)
        if ks + PF == NK - 1:
            a(f"buffer_load_dword v12, v11, s[72:75], s15 offen {SC}")
            vm.issue("poll")
        if ks == NK - 3:
            lab = a.newlabel("g2poll"); ok = a.newlabel("g2ok")
            a(f"s_waitcnt vmcnt({vm.wait_for('poll')})")
            a("v_readfirstlane_b32 s76, v12")
            a("s_cmp_ge_u32 s76, 32")
            a(f"s_cbranch_scc1 {ok}")
            if NOWAIT: a(f"s_branch {ok}")
            a("s_mov_b32 s77, 0")
            a.label(lab)
            a("s_add_u32 s77, s77, 1")
            a("s_cmp_ge_u32 s77, 0x40000")
            a(f"s_cbranch_scc1 {ok}")
            a("s_sleep 8")
            a(f"buffer_load_dword v12, v11, s[72:75], s15 offen {SC}")
            a("s_waitcnt vmcnt(0)")
            a("v_readfirstlane_b32 s76, v12")
            a("s_cmp_ge_u32 s76, 32")
            a(f"s_cbranch_scc0 {lab}")
            a.label(ok)
            for q in range(4):
                for r in range(4):
                    a(f"s_add_u32 s6, s11, {(8*q+r)*4096}")
                    a(f"buffer_load_ushort v{AR+4*q+r}, v7, s[56:59], s6 offen {SC}")
            vm.issue("aout", 16)
    stamp(a, 2)
    a("s_lshl_b32 s4, s7, 14")
    a("v_add_u32 v8, s4, v3")
    for t in range(4):
        lab = a.newlabel("g2w")
        a(f"s_cmp_eq_u32 s7, {t}")
        a(f"s_cbranch_scc1 {lab}")
        for q in range(4):
            a(f"ds_write_b128 v8, v[{ACC+16*t+4*q}:{ACC+16*t+4*q+3}] offset:{t*4096+q*1024}")
        a(f"s_branch {lab}_e")
        a.label(lab)
        for i in range(16): a(f"v_mov_b32 v{FR+i}, v{ACC+16*t+i}")
        a.label(lab + "_e")
    a("s_lshl_b32 s4, s7, 12")
    a("v_add_u32 v8, s4, v3")
    a("s_waitcnt lgkmcnt(0)")
    a("s_barrier")
    R = FR + 16
    for j in range(3):
        a(f"s_add_u32 s4, s7, {1+j}")
        a("s_and_b32 s4, s4, 3")
        a("s_lshl_b32 s4, s4, 14")
        a(f"v_add_u32 v{9+j}, s4, v8")
        for q in range(4):
            a(f"ds_read_b128 v[{R+16*j+4*q}:{R+16*j+4*q+3}], v{9+j} offset:{q*1024}")
    for j in range(3):
        a(f"s_waitcnt lgkmcnt({4*(2-j)})")
        for i in range(16): a(f"v_add_f32 v{FR+i}, v{FR+i}, v{R+16*j+i}")
    a("s_waitcnt vmcnt(0)")
    T = 16
    for q in range(4):
        for hh in range(2):
            f0 = FR + 4*q + 2*hh; x = XR + 2*q + hh; ao = AR + 4*q + 2*hh
            a(f"v_cvt_pk_bf16_f32 v{T}, v{f0}, v{f0+1}")
            unpack(a, T+1, T+2, T)
            unpack(a, T+3, T+4, x)
            a(f"v_lshlrev_b32 v{ao}, 16, v{ao}")
            a(f"v_lshlrev_b32 v{ao+1}, 16, v{ao+1}")
            a(f"v_add_f32 v{T+3}, v{T+3}, v{ao}")
            a(f"v_add_f32 v{T+4}, v{T+4}, v{ao+1}")
            a(f"v_cvt_pk_bf16_f32 v{T}, v{T+3}, v{T+4}")
            unpack(a, T+3, T+4, T)
            a(f"v_add_f32 v{T+1}, v{T+1}, v{T+3}")
            a(f"v_add_f32 v{T+2}, v{T+2}, v{T+4}")
            a(f"v_cvt_pk_bf16_f32 v{24+2*q+hh}, v{T+1}, v{T+2}")
        a(f"buffer_store_dwordx2 v[{24+2*q}:{24+2*q+1}], v6, s[64:67], s10 offen offset:{16*q}")

TOUCH2 = True
G2SAME = 0
G2PRIO = 0

def body_cv(a):
    kern.body_conv(a, "", SC)
    srd(a, 64, 44, 8192, WS_FLAG)
    a("s_waitcnt vmcnt(0)")
    a("s_barrier")
    lab = a.newlabel("cvpub")
    a("v_readfirstlane_b32 s7, v0")
    a("s_cmp_lt_u32 s7, 64")
    a(f"s_cbranch_scc0 {lab}")
    a("s_lshr_b32 s6, s3, 5")
    a("s_lshl_b32 s6, s6, 10")
    a("v_lshlrev_b32 v1, 7, v0")
    a("v_mov_b32 v2, 1")
    a("s_mov_b64 exec, 0xff")
    a("buffer_atomic_add v2, v1, s[64:67], s6 offen")
    a.label(lab)

def build_k2():
    kern.PROF_V = 233
    a = Asm()
    load_ptrs(a)
    a("s_cmp_ge_u32 s2, 480")
    a("s_cbranch_scc1 L_k2_end")
    if SWAP:
        a("s_cmp_ge_u32 s2, 256")
        a("s_cbranch_scc1 L_k2_g2")
        a("s_cmp_ge_u32 s2, 224")
        a("s_cbranch_scc1 L_k2_end")
    else:
        a("s_cmp_lt_u32 s2, 224")
        a("s_cbranch_scc1 L_k2_g2")
        a("s_cmp_lt_u32 s2, 256")
        a("s_cbranch_scc1 L_k2_end")
    a("s_waitcnt lgkmcnt(0)")
    stamp(a, 0)
    a("s_mov_b32 s3, s2" if SWAP else "s_sub_u32 s3, s2, 256")
    if "cv" not in ROLES: a("s_endpgm")
    body_cv(a)
    stamp(a, 3); prof_flush(a, 1, 4)
    a("s_endpgm")
    a.label("L_k2_g2")
    a("s_waitcnt lgkmcnt(0)")
    stamp(a, 0)
    a("s_sub_u32 s3, s2, 256" if SWAP else "s_mov_b32 s3, s2")
    if "g2" not in ROLES: a("s_endpgm")
    body_g2(a)
    if kern.PROF: a("s_waitcnt vmcnt(0)")
    stamp(a, 3); prof_flush(a, 1, 4)
    a.label("L_k2_end")
    a("s_endpgm")
    return a

def build(path):
    assemble([("k1_kernel", build_k1(), 160, 512, 81920), ("k2_kernel", build_k2(), 236, 480, 2*CV_CH)], path)

if __name__ == "__main__":
    kern.PROF = True
    FINE = True
    NOWAIT = True
    TOUCH2 = False
    ROLES = {"g1", "g2"}; build("qp_g.s")
    TOUCH1 = False
    build("qp_g_nt.s")
    NOMFMA = True
    build("qp_g_nt_nm.s")
    TOUCH1 = True
    build("qp_g_nm.s")
    NOMFMA = False
    ROLES = {"g1","ln","kg","g2","cv"}
    NOWAIT = False
    build("qp.s")
    kern.PROF = False
    FINE = False
    build("q.s")
```

```python
from asmgen import Asm, kernel_text
import kern, kern2
from kern import (srd, load_ptrs, f32bits, bf_round, unpack, interleave, kg_row, KG_H, KG_RS,
                  CV_BS, CV_CS, CV_K, CV_CH, WS_H, WS_W2F, WS_XNT, WS_KREV, WS_AOUT, SZ_H, SZ_WF, SZ_X, stamp, prof_flush)
from kern2 import VM, WS_ST, WS_FLAG
SC = "sc1"
ROLES = {"g1","ln","kg","g2","cv"}
NOWAIT = False; FINE = False; TOUCH1 = True; NOMFMA = False; NOREAD = False; NBUF = 5; PIPE3 = True; G1FIRST = False
SPIN = 0x40000

def spin_wait(a, vreg, vaddr, srdq, soff, target, first_checked=True):
    lab = a.newlabel("spin"); ok = a.newlabel("spinok")
    a(f"v_readfirstlane_b32 s73, v{vreg}")
    a(f"s_cmp_ge_u32 s73, {target}")
    a(f"s_cbranch_scc1 {ok}")
    if NOWAIT: a(f"s_branch {ok}")
    a("s_mov_b32 s77, 0")
    a.label(lab)
    a("s_add_u32 s77, s77, 1")
    a(f"s_cmp_ge_u32 s77, {SPIN:#x}")
    a(f"s_cbranch_scc1 {ok}")
    a("s_sleep 4")
    a(f"buffer_load_dword v{vreg}, v{vaddr}, s[{srdq}:{srdq+3}], {soff} offen {SC}")
    a("s_waitcnt vmcnt(0)")
    a(f"v_readfirstlane_b32 s73, v{vreg}")
    a(f"s_cmp_ge_u32 s73, {target}")
    a(f"s_cbranch_scc0 {lab}")
    a.label(ok)

def body_g1(a):
    NB = 5; NCH = 14; WB = NB*8192
    WL = 4*8192
    a("s_lshr_b32 s14, s3, 3")
    a("s_mul_hi_u32 s5, s14, 0x24924925")
    a("s_mul_i32 s13, s5, 7")
    a("s_sub_u32 s13, s14, s13")
    a("s_and_b32 s6, s3, 1")
    a("s_mul_i32 s6, s6, 7")
    a("s_add_u32 s13, s13, s6")
    a("s_bfe_u32 s12, s3, 0x20001")
    a("s_lshl_b32 s12, s12, 2")
    a("s_add_u32 s12, s12, s5")
    a("v_lshrrev_b32 v2, 6, v0")
    a("v_and_b32 v3, 63, v0")
    a("v_readfirstlane_b32 s7, v2")
    a("s_cmp_lt_u32 s7, 4")
    a("s_cbranch_scc1 L_g1_compute")
    vm = VM()
    srd(a, 48, 16, SZ_X)
    srd(a, 52, 36, SZ_WF)
    a("s_sub_u32 s7, s7, 4")
    a("v_lshrrev_b32 v8, 2, v3")
    a("v_and_b32 v4, 3, v3")
    a("v_bfe_u32 v5, v3, 4, 2")
    a("v_xor_b32 v4, v4, v5")
    a("v_mul_u32_u24 v8, 896, v8")
    a("v_lshl_add_u32 v8, v4, 4, v8")
    a("v_lshrrev_b32 v9, 4, v3")
    a("v_and_b32 v5, 15, v3")
    a("v_lshlrev_b32 v6, 2, v9")
    a("v_xor_b32 v5, v5, v6")
    a("v_mul_u32_u24 v9, 3584, v9")
    a("v_lshl_add_u32 v9, v5, 4, v9")
    a("s_lshl_b32 s8, s12, 2")
    a("s_add_u32 s8, s8, s7")
    a("s_mul_i32 s8, s8, 28672")
    a("s_mul_i32 s9, s7, 28672")
    a("s_lshl_b32 s5, s13, 8")
    a("s_add_u32 s9, s9, s5")
    a("s_lshl_b32 s10, s7, 11")
    def dma(c):
        buf = (c % NB) * 8192
        a(f"s_add_u32 m0, s10, {buf}")
        a("s_add_u32 s5, s8, 14336")
        a(f"buffer_load_dwordx4 v8, s[48:51], s8 offen lds")
        a(f"s_add_u32 m0, s10, {buf+WB}")
        a("s_add_u32 s6, s9, 14336")
        a(f"buffer_load_dwordx4 v9, s[52:55], s9 offen lds")
        a(f"s_add_u32 m0, s10, {buf+1024}")
        a("s_add_u32 s8, s8, 64")
        a(f"buffer_load_dwordx4 v8, s[48:51], s5 offen lds")
        a(f"s_add_u32 m0, s10, {buf+WB+1024}")
        a("s_add_u32 s9, s9, 114688")
        a(f"buffer_load_dwordx4 v9, s[52:55], s6 offen lds")
        vm.issue(("c", c), 4)
    for c in range(4): dma(c)
    if TOUCH1:
        a("v_add_u32 v10, -256, v0")
        a("s_mul_i32 s5, s14, 224")
        a("v_add_u32 v5, s5, v10")
        a("s_mov_b32 s6, 0x12492493")
        a("v_mul_hi_u32 v6, v5, s6")
        a("v_mul_u32_u24 v7, 14, v6")
        a("v_sub_u32 v7, v5, v7")
        a("v_mul_u32_u24 v6, 3584, v6")
        a("v_lshl_add_u32 v6, v7, 7, v6")
        a("s_and_b32 s6, s3, 1")
        a("s_mul_i32 s6, s6, 1792")
        a("v_cmp_gt_u32 vcc, 224, v10")
        a("v_mov_b32 v7, 0x7ffffff0")
        a("v_cndmask_b32 v6, v7, v6, vcc")
        a("buffer_load_dword v11, v6, s[52:55], s6 offen")
        a("s_bfe_u32 s5, s3, 0x20001")
        a("s_mul_i32 s5, s5, 458752")
        a("s_lshl_b32 s6, s14, 14")
        a("s_add_u32 s5, s5, s6")
        a("v_lshlrev_b32 v5, 7, v10")
        a("v_cmp_gt_u32 vcc, 128, v10")
        a("v_mov_b32 v7, 0x7ffffff0")
        a("v_cndmask_b32 v6, v7, v5, vcc")
        a("buffer_load_dword v12, v6, s[48:51], s5 offen")
        vm.issue("touch", 2)
    srd(a, 60, 44, 16384, WS_ST)
    srd(a, 64, 42, 256)
    a("s_cmp_eq_u32 s7, 0")
    a("s_cselect_b32 s5, 0, 0x7ffffff0")
    a("v_mov_b32 v13, s5")
    a("s_lshl_b32 s72, s12, 2")
    a(f"s_waitcnt vmcnt({vm.wait_for(('c', 0))})")
    a("s_barrier")
    for c in range(NCH - 1):
        a(f"s_waitcnt vmcnt({vm.wait_for(('c', c + 1))})")
        a("s_barrier")
        if c + 4 < NCH: dma(c + 4)
        if c == 8:
            a(f"buffer_load_dword v14, v13, s[64:67], s72 offen {SC}")
            vm.issue("poll")
        if c == 11:
            a(f"s_waitcnt vmcnt({vm.wait_for('poll')})")
            labs = a.newlabel("g1sk")
            a("s_cmp_eq_u32 s7, 0")
            a(f"s_cbranch_scc0 {labs}")
            spin_wait(a, 14, 13, 64, "s72", 2)
            a.label(labs)
            a("s_lshl_b32 s5, s12, 10")
            a("v_lshlrev_b32 v14, 4, v3")
            a("v_add_u32 v14, v13, v14")
            a(f"buffer_load_dwordx4 v[16:19], v14, s[60:63], s5 offen {SC}")
            vm.issue("stats")
    lab_end = a.newlabel("g1ldend")
    a("s_cmp_eq_u32 s7, 0")
    a(f"s_cbranch_scc0 {lab_end}")
    a("s_waitcnt vmcnt(0)")
    a(f"ds_write_b128 v14, v[16:19] offset:{WL+1024}")
    a("s_waitcnt lgkmcnt(0)")
    a("s_barrier")
    a.label(lab_end)
    a("s_endpgm")
    a.label("L_g1_compute")
    a("s_setprio 1")
    srd(a, 56, 44, SZ_H, WS_H)
    a("s_and_b32 s15, s7, 1")
    a("s_lshr_b32 s11, s7, 1")
    a("v_and_b32 v4, 31, v3")
    a("v_lshrrev_b32 v6, 5, v3")
    a("v_bfe_u32 v7, v3, 2, 2")
    a("v_xor_b32 v7, v7, v6")
    a("v_lshlrev_b32 v4, 6, v4")
    a("v_lshl_add_u32 v4, v7, 4, v4")
    a("s_lshl_b32 s5, s11, 12")
    a("v_add_u32 v4, s5, v4")
    a("v_xor_b32 v5, 32, v4")
    a("v_bfe_u32 v7, v3, 2, 2")
    a("v_lshl_add_u32 v8, v6, 3, v7")
    a("v_lshlrev_b32 v8, 8, v8")
    a("v_bfe_u32 v9, v3, 4, 1")
    a("v_lshl_add_u32 v8, v9, 5, v8")
    a("v_and_b32 v9, 3, v3")
    a("v_lshl_add_u32 v8, v9, 3, v8")
    a(f"v_add_u32 v8, {WB}, v8")
    a("s_lshl_b32 s5, s15, 1")
    a("s_add_u32 s68, s5, s11")
    a("s_xor_b32 s69, s68, 1")
    a("v_xor_b32 v9, s69, v7")
    a("v_xor_b32 v6, s68, v7")
    a("v_lshl_add_u32 v7, v9, 6, v8")
    a("v_lshl_add_u32 v6, v6, 6, v8")
    SEL = 8; WACC = 12; ACC = 64; SETS = [16, 32, 48]
    a("v_and_b32 v2, 31, v3")
    a("v_cmp_eq_u32 vcc, 0, v2")
    a("v_cmp_eq_u32 s[70:71], 17, v2")
    a("s_or_b64 vcc, vcc, s[70:71]")
    a("v_mov_b32 v2, 0x3f803f80")
    a(f"v_cndmask_b32 v{SEL}, 0, v2, vcc")
    for i in range(1, 4): a(f"v_mov_b32 v{SEL+i}, v{SEL}")
    for i in range(4): a(f"v_mov_b32 v{WACC+i}, 0")
    for i in range(64): a(f"v_mov_b32 v{ACC+i}, 0")
    def reads(c, st, S):
        if NOREAD: return
        o = (c % NB) * 8192
        vb = 4 if st == 0 else 5
        a(f"ds_read_b64_tr_b16 v[{S}:{S+1}], v6 offset:{o+st*4096}")
        a(f"ds_read_b64_tr_b16 v[{S+2}:{S+3}], v6 offset:{o+st*4096+1024}")
        a(f"ds_read_b128 v[{S+8}:{S+11}], v{vb} offset:{o}")
        a(f"ds_read_b128 v[{S+12}:{S+15}], v{vb} offset:{o+2048}")
        a(f"ds_read_b64_tr_b16 v[{S+4}:{S+5}], v7 offset:{o+st*4096}")
        a(f"ds_read_b64_tr_b16 v[{S+6}:{S+7}], v7 offset:{o+st*4096+1024}")
    def mfmas(S):
        if NOMFMA: return
        for aa in range(2):
            for b in range(2):
                d = ACC + 16*(2*aa+b)
                a(f"v_mfma_f32_32x32x16_bf16 v[{d}:{d+15}], v[{S+4*aa}:{S+4*aa+3}], v[{S+8+4*b}:{S+8+4*b+3}], v[{d}:{d+15}]")
        a(f"v_mfma_f32_16x16x32_bf16 v[{WACC}:{WACC+3}], v[{SEL}:{SEL+3}], v[{S}:{S+3}], v[{WACC}:{WACC+3}]")
    a("s_barrier")
    stamp(a, 1)
    reads(0, 0, SETS[0]); reads(0, 1, SETS[1])
    for c in range(NCH):
        if c < NCH - 1: a("s_barrier")
        if FINE: stamp(a, 8 + c)
        nxt = c + 1 < NCH
        for st in range(2):
            s_ = 2*c + st
            if nxt: reads(c + 1, st, SETS[(s_ + 2) % 3])
            newer = 12 if nxt else (6 if st == 0 else 0)
            a(f"s_waitcnt lgkmcnt({newer})")
            mfmas(SETS[s_ % 3])
    stamp(a, 2)
    a("v_and_b32 v3, 63, v0")
    a("s_lshl_b32 s5, s68, 7")
    a("v_and_b32 v2, 15, v3")
    a("v_lshlrev_b32 v2, 2, v2")
    a("v_add_u32 v2, s5, v2")
    a("s_mov_b64 s[70:71], exec")
    a("s_mov_b64 exec, 0xffff")
    a(f"ds_write_b32 v2, v{WACC} offset:{WL}")
    a(f"ds_write_b32 v2, v{WACC+1} offset:{WL+64}")
    a("s_mov_b64 exec, s[70:71]")
    a("s_waitcnt lgkmcnt(0)")
    a("s_barrier")
    WR = 16; ST = 48
    a("v_lshrrev_b32 v2, 5, v3")
    a("v_lshlrev_b32 v2, 4, v2")
    a("s_lshl_b32 s5, s68, 7")
    a("v_add_u32 v4, s5, v2")
    a("s_lshl_b32 s5, s69, 7")
    a("v_add_u32 v5, s5, v2")
    a("v_and_b32 v2, 31, v3")
    a("v_lshlrev_b32 v2, 3, v2")
    a("s_lshl_b32 s5, s11, 9")
    a("v_add_u32 v2, s5, v2")
    a(f"ds_read_b64 v[{ST}:{ST+1}], v2 offset:{WL+1024}")
    a(f"ds_read_b64 v[{ST+2}:{ST+3}], v2 offset:{WL+1024+256}")
    for aa in range(2):
        for q in range(4):
            a(f"ds_read_b128 v[{WR+16*aa+4*q}:{WR+16*aa+4*q+3}], v{4+aa} offset:{WL+32*q}")
    a("s_lshl_b32 s4, s12, 2")
    a("s_lshl_b32 s5, s11, 1")
    a("s_add_u32 s4, s4, s5")
    a("s_mul_i32 s4, s4, 112")
    a("s_lshl_b32 s5, s13, 3")
    a("s_add_u32 s4, s4, s5")
    a("s_lshl_b32 s5, s68, 1")
    a("s_add_u32 s74, s4, s5")
    a("s_lshl_b32 s74, s74, 10")
    a("s_lshl_b32 s5, s69, 1")
    a("s_add_u32 s75, s4, s5")
    a("s_lshl_b32 s75, s75, 10")
    a("v_lshlrev_b32 v3, 4, v3")
    a("s_waitcnt lgkmcnt(8)")
    a(f"v_mul_f32 v{ST}, v{ST}, v{ST+1}")
    a(f"v_mul_f32 v{ST+2}, v{ST+2}, v{ST+3}")
    a("s_waitcnt lgkmcnt(0)")
    TT = 52
    for aa in range(2):
        for b in range(2):
            d = ACC + 16*(2*aa+b); w = WR + 16*aa
            for k in range(8):
                t = TT + 2*(k % 4)
                a(f"v_pk_mul_f32 v[{t}:{t+1}], v[{w+2*k}:{w+2*k+1}], v[{ST+2*b}:{ST+2*b+1}] op_sel_hi:[1,0]")
                a(f"v_pk_fma_f32 v[{d+2*k}:{d+2*k+1}], v[{d+2*k}:{d+2*k+1}], v[{ST+2*b}:{ST+2*b+1}], v[{t}:{t+1}] op_sel:[0,1,0] op_sel_hi:[1,1,1] neg_lo:[0,0,1] neg_hi:[0,0,1]")
            for k in range(8):
                a(f"v_cvt_pk_bf16_f32 v{d+k}, v{d+2*k}, v{d+2*k+1}")
                a(f"v_pk_max_i16 v{d+k}, v{d+k}, 0")
            a(f"s_add_u32 s5, s{74+aa}, {b*112*1024}")
            a(f"buffer_store_dwordx4 v[{d}:{d+3}], v3, s[56:59], s5 offen {SC}")
            a(f"buffer_store_dwordx4 v[{d+4}:{d+7}], v3, s[56:59], s5 offen offset:1024 {SC}")

def body_ln(a):
    X = 8; F = 40
    srd(a, 48, 16, SZ_X)
    srd(a, 56, 44, SZ_X, WS_XNT)
    srd(a, 60, 44, 16384, WS_ST)
    srd(a, 64, 42, 256)
    labz = a.newlabel("lnz")
    a("s_cmp_eq_u32 s3, 0")
    a(f"s_cbranch_scc0 {labz}")
    srd(a, 68, 44, 8192, WS_FLAG)
    a("v_lshlrev_b32 v1, 7, v0")
    a("v_mov_b32 v2, 0")
    a(f"buffer_store_dword v2, v1, s[68:71], 0 offen {SC}")
    a.label(labz)
    a("v_lshrrev_b32 v1, 3, v0")
    a("v_and_b32 v2, 7, v0")
    a("s_mul_i32 s4, s3, 57344")
    a("v_mul_u32_u24 v3, 896, v1")
    a("v_lshl_add_u32 v3, v2, 4, v3")
    for j in range(7):
        a(f"buffer_load_dwordx4 v[{X+4*j}:{X+4*j+3}], v3, s[48:51], s4 offen offset:{128*j}")
    a("v_mul_u32_u24 v5, 912, v1")
    a("v_lshl_add_u32 v5, v2, 4, v5")
    for j in range(7):
        a(f"s_waitcnt vmcnt({6-j})")
        if j == 6: stamp(a, 1)
        for k in range(4):
            unpack(a, F+8*j+2*k, F+8*j+2*k+1, X+4*j+k)
    a(f"v_add_f32 v6, v{F}, v{F+1}")
    a(f"v_add_f32 v7, v{F+2}, v{F+3}")
    a(f"v_add_f32 v96, v{F+4}, v{F+5}")
    a(f"v_add_f32 v97, v{F+6}, v{F+7}")
    accs = [6, 7, 96, 97]
    for i in range(8, 56):
        r = accs[i % 4]
        a(f"v_add_f32 v{r}, v{r}, v{F+i}")
    a("v_add_f32 v6, v6, v7")
    a("v_add_f32 v96, v96, v97")
    a("v_add_f32 v6, v6, v96")
    def red8(r):
        a(f"v_add_f32_dpp v{r}, v{r}, v{r} quad_perm:[1,0,3,2] row_mask:0xf bank_mask:0xf")
        a(f"v_add_f32_dpp v{r}, v{r}, v{r} quad_perm:[2,3,0,1] row_mask:0xf bank_mask:0xf")
        a(f"v_add_f32_dpp v{r}, v{r}, v{r} row_half_mirror row_mask:0xf bank_mask:0xf")
    red8(6)
    a(f"s_mov_b32 s5, {f32bits(1.0/448):#x}")
    a("v_mul_f32 v6, s5, v6")
    bf_round(a, 98, 6)
    accs = [7, 96, 97, 99]
    for i in range(4): a(f"v_mov_b32 v{accs[i]}, 0")
    for i in range(56):
        t = 100 + (i % 4)
        a(f"v_sub_f32 v{t}, v{F+i}, v6")
        a(f"v_fmac_f32 v{accs[i%4]}, v{t}, v{t}")
    a("v_add_f32 v7, v7, v96")
    a("v_add_f32 v97, v97, v99")
    a("v_add_f32 v7, v7, v97")
    red8(7)
    a("v_mul_f32 v7, s5, v7")
    bf_round(a, 7, 7)
    a(f"v_add_f32 v7, {f32bits(1e-5):#x}, v7")
    bf_round(a, 7, 7)
    a("v_sqrt_f32 v7, v7")
    bf_round(a, 99, 7)
    a("v_rcp_f32 v99, v99")
    a("s_lshl_b32 s6, s3, 9")
    a("v_lshlrev_b32 v100, 3, v1")
    a(f"buffer_store_dwordx2 v[98:99], v100, s[60:63], s6 offen {SC}")
    for j in range(7):
        for k in range(4):
            lo = F+8*j+2*k; hi = lo+1; d = X+4*j+k
            a(f"v_sub_f32 v{lo}, v{lo}, v98")
            a(f"v_sub_f32 v{hi}, v{hi}, v98")
            a(f"v_cvt_pk_bf16_f32 v{d}, v{lo}, v{hi}")
        if j == 1:
            a("s_waitcnt vmcnt(0)")
            a("s_barrier")
            lab = a.newlabel("lnpub")
            a("v_readfirstlane_b32 s7, v0")
            a("s_cmp_lt_u32 s7, 64")
            a(f"s_cbranch_scc0 {lab}")
            a("s_lshr_b32 s6, s3, 1")
            a("s_lshl_b32 s6, s6, 2")
            a("v_mov_b32 v100, 0")
            a("v_mov_b32 v101, 1")
            a("s_mov_b64 s[70:71], exec")
            a("s_mov_b64 exec, 1")
            a("buffer_atomic_add v101, v100, s[64:67], s6 offen")
            a("s_mov_b64 exec, s[70:71]")
            a.label(lab)
            stamp(a, 2)
        for k in range(4):
            lo = F+8*j+2*k; hi = lo+1; d = X+4*j+k
            unpack(a, lo, hi, d)
            a(f"v_mul_f32 v{lo}, v{lo}, v99")
            a(f"v_mul_f32 v{hi}, v{hi}, v99")
            a(f"v_cvt_pk_bf16_f32 v{d}, v{lo}, v{hi}")
        a(f"ds_write_b128 v5, v[{X+4*j}:{X+4*j+3}] offset:{128*j}")
    a("v_and_b32 v1, 63, v0")
    a("v_lshrrev_b32 v2, 4, v1")
    a("v_bfe_u32 v3, v1, 2, 2")
    a("v_and_b32 v6, 3, v1")
    a("v_bfe_u32 v8, v0, 6, 1")
    a("v_lshl_add_u32 v7, v2, 3, v3")
    a("v_lshl_add_u32 v7, v8, 5, v7")
    a("v_mul_u32_u24 v7, 912, v7")
    a("v_lshl_add_u32 v7, v6, 3, v7")
    a("v_lshrrev_b32 v6, 7, v0")
    a("v_lshl_add_u32 v7, v6, 5, v7")
    a("v_and_b32 v3, 15, v1")
    a("v_lshl_add_u32 v3, v6, 4, v3")
    a("v_lshlrev_b32 v3, 12, v3")
    a("v_lshl_add_u32 v3, v2, 4, v3")
    a("v_lshl_add_u32 v3, v8, 6, v3")
    a("s_lshl_b32 s6, s3, 7")
    a("s_waitcnt lgkmcnt(0)")
    a("s_barrier")
    R = 40
    for t in range(7):
        r = R + 4*t
        a(f"ds_read_b64_tr_b16 v[{r}:{r+1}], v7 offset:{128*t}")
        a(f"ds_read_b64_tr_b16 v[{r+2}:{r+3}], v7 offset:{128*t+4*912}")
    for t in range(7):
        r = R + 4*t
        a(f"s_waitcnt lgkmcnt({2*(6-t)})")
        a(f"buffer_store_dwordx4 v[{r}:{r+3}], v3, s[56:59], s6 offen {SC}")
        if t < 6: a(f"v_add_u32 v3, {64*4096}, v3")

KG8_W = 32 * KG_RS
def body_kg(a):
    LOG2E = 1.4426950408889634
    SZP = 448*256*2
    P = 8
    for i, ptr in enumerate([18, 20, 22, 24, 26, 28]):
        srd(a, 48 + 4*i, ptr, SZP)
    a("s_lshl_b32 s4, s3, 10")
    a("v_lshlrev_b32 v3, 1, v0")
    for i in range(6):
        a(f"buffer_load_ushort v{P+i}, v3, s[{48+4*i}:{51+4*i}], s4 offen")
    a("s_lshl_b32 s5, s3, 2")
    a("s_load_dword s8, s[30:31], s5")
    W = 124
    srd(a, 72, 38, SZ_WF)
    a("v_lshrrev_b32 v1, 5, v0")
    a("v_and_b32 v2, 31, v0")
    a("s_lshr_b32 s4, s3, 1")
    a("s_mul_i32 s4, s4, 14336")
    a("s_and_b32 s5, s3, 1")
    a("s_mul_i32 s5, s5, 448")
    a("s_add_u32 s4, s4, s5")
    a("v_mul_u32_u24 v4, 896, v1")
    a("v_lshl_add_u32 v4, v2, 4, v4")
    a(f"buffer_load_dwordx4 v[{W}:{W+3}], v4, s[72:75], s4 offen")
    a("v_lshrrev_b32 v1, 6, v0")
    a("v_and_b32 v2, 63, v0")
    a(f"v_mul_u32_u24 v6, {KG8_W}, v1")
    a("v_lshl_add_u32 v7, v2, 2, v6")
    a("v_and_b32 v3, 31, v2")
    a(f"v_mul_u32_u24 v3, {KG_RS}, v3")
    a("v_add_u32 v6, v6, v3")
    a("v_lshrrev_b32 v3, 5, v2")
    a("v_lshl_add_u32 v6, v3, 4, v6")
    BF = 16; ACC = 48; CH = 64; T = 108
    for i in range(16): a(f"v_mov_b32 v{ACC+i}, 0")
    a("s_waitcnt lgkmcnt(0)")
    a("v_lshrrev_b32 v4, 8, v0")
    a("v_mov_b32 v5, s8")
    a("v_lshlrev_b32 v3, 16, v5")
    a("v_and_b32 v5, 0xffff0000, v5")
    a("v_cmp_eq_u32 vcc, 0, v4")
    a("v_cndmask_b32 v5, v5, v3, vcc")
    a(f"v_mul_f32 v5, {f32bits(LOG2E):#x}, v5")
    a("v_exp_f32 v5, v5")
    bf_round(a, 5, 5)
    a("s_waitcnt vmcnt(1)")
    stamp(a, 1)
    for i in range(6): a(f"v_lshlrev_b32 v{P+i}, 16, v{P+i}")
    a(f"v_mul_f32 v14, v5, v{P}")
    a(f"v_mul_f32 v15, v5, v{P+1}")
    a(f"v_mul_f32 v14, {f32bits(LOG2E):#x}, v14")
    a("v_mul_f32 v15, 0.15915494, v15")
    a(f"v_mul_f32 v{P+2}, v5, v{P+2}")
    a(f"v_mul_f32 v{P+3}, v5, v{P+3}")
    regs = {}; nxt = [CH]
    def alloc(name):
        r = nxt[0]; nxt[0] += 2
        assert nxt[0] <= T, name
        regs[name] = (r, r + 1); return regs[name]
    def cmul(dst, x, w):
        (dr, di), (xr, xi), (wr, wi) = dst, x, w
        return [f"v_mul_f32 v{dr}, v{xi}, v{wi}", f"v_mul_f32 v{di}, v{xi}, v{wr}",
                f"v_fma_f32 v{dr}, v{xr}, v{wr}, -v{dr}", f"v_fma_f32 v{di}, v{xr}, v{wi}, v{di}"]
    tcount = [0, 0, 0, 0]; cur = [0]
    def emitrow(row, z, neg):
        t = T + 2*cur[0] + (tcount[cur[0]] % 2); tcount[cur[0]] += 1
        n = "-" if neg else ""
        return [f"v_cvt_pk_bf16_f32 v{t}, v{z[0]}, {n}v{z[1]}", f"ds_write_b32 v7, v{t} offset:{row*KG_RS}"]
    def direct(dst, tmul, tmp):
        (dr, di) = dst
        return [f"v_mul_f32 v{tmp}, {f32bits(float(tmul)):#x}, v14", f"v_mul_f32 v{tmp+1}, {f32bits(float(tmul)):#x}, v15",
                f"v_exp_f32 v{tmp}, v{tmp}", f"v_fract_f32 v{tmp+1}, v{tmp+1}",
                f"v_cos_f32 v{dr}, v{tmp+1}", f"v_sin_f32 v{di}, v{tmp+1}",
                f"v_mul_f32 v{dr}, v{dr}, v{tmp}", f"v_mul_f32 v{di}, v{di}, v{tmp}"]
    X0 = alloc("X0"); w1 = alloc("w1"); w8 = alloc("w8"); w256 = alloc("w256"); w512 = alloc("w512"); w1024 = alloc("w1024")
    w16 = alloc("w16"); ya = [alloc("ya0"), alloc("ya1")]; yb = [alloc("yb0"), alloc("yb1")]
    c0 = cmul(X0, (P+4, P+5), (P+2, P+3))
    for ins in interleave([direct(w8, 8, 86), direct(w16, 16, 88), direct(w1, 1, 90), direct(w256, 256, 92), c0]): a(ins)
    cur[0] = 2
    chY0 = [f"v_mov_b32 v{T+8}, 0x3f80", f"ds_write_b32 v7, v{T+8} offset:0"] + emitrow(2, w16, False)
    prev = w16
    for k, j in enumerate(range(4, 32, 2)):
        d = ya[k % 2]; chY0 += cmul(d, prev, w16) + emitrow(j, d, False); prev = d
    cur[0] = 3
    chY1 = emitrow(1, w8, False); prev = w8
    for k, j in enumerate(range(3, 32, 2)):
        d = yb[k % 2]; chY1 += cmul(d, prev, w16) + emitrow(j, d, False); prev = d
    nxt_save = nxt[0]
    X = {0: X0}
    for h in [8, 256, 264, 512, 520, 2, 4]: X[h] = alloc(f"X{h}")
    chP = cmul(w512, w256, w256) + cmul(X[8], X0, w8) + cmul(w1024, w512, w512) + cmul(X[256], X0, w256) + cmul(X[264], X[8], w256) + cmul(X[512], X0, w512) + cmul(X[520], X[8], w512)
    for ins in interleave([chY0, chY1, chP]): a(ins)
    a("s_waitcnt lgkmcnt(0)")
    for ks in range(8):
        a(f"ds_read_b128 v[{BF+4*ks}:{BF+4*ks+3}], v6 offset:{ks*32}")
    t1, t2, t3, t4, t5 = w16, ya[0], ya[1], yb[0], yb[1]
    for h in [768, 776, 6]: X[h] = alloc(f"X{h}")
    cur[0] = 0
    chA = emitrow(KG_H[0], X0, True)
    chA += cmul(t1, X0, w1) + emitrow(KG_H[1], t1, True)
    chA += cmul(X[2], t1, w1) + emitrow(KG_H[2], X[2], True)
    chA += cmul(t1, X[2], w1) + emitrow(KG_H[3], t1, True)
    chA += cmul(X[4], t1, w1) + emitrow(KG_H[4], X[4], True)
    chA += cmul(t1, X[4], w1) + emitrow(KG_H[5], t1, True)
    chA += cmul(X[6], t1, w1) + emitrow(KG_H[6], X[6], True)
    chA += cmul(t1, X[6], w1) + emitrow(KG_H[7], t1, True)
    chA += cmul(t1, X[2], w256) + emitrow(KG_H[258], t1, True)
    chA += cmul(t1, X[6], w256) + emitrow(KG_H[262], t1, True)
    cur[0] = 1
    chB = emitrow(KG_H[256], X[256], True) + emitrow(KG_H[264], X[264], True) + emitrow(KG_H[512], X[512], True) + emitrow(KG_H[520], X[520], True)
    chB += cmul(X[768], X[256], w512) + emitrow(KG_H[768], X[768], True)
    chB += cmul(X[776], X[264], w512) + emitrow(KG_H[776], X[776], True)
    for i, (h, src) in enumerate([(1024, 0), (1032, 8), (1280, 256), (1288, 264)]):
        t = t2 if i % 2 == 0 else t3
        chB += cmul(t, X[src], w1024) + emitrow(KG_H[h], t, True)
    cur[0] = 2
    chC = []
    for i, (h, src) in enumerate([(1536, 512), (1544, 520), (1792, 768), (1800, 776)]):
        t = t4 if i % 2 == 0 else t5
        chC.append((h, src, t))
    a("s_waitcnt lgkmcnt(0)")
    for ins in interleave([chA, chB]): a(ins)
    chC2 = []
    for (h, src, t) in chC: chC2 += cmul(t, X[src], w1024) + emitrow(KG_H[h], t, True)
    cur[0] = 3
    chD = cmul(t2, X[4], w256) + emitrow(KG_H[260], t2, True) + cmul(t3, t2, w512) + emitrow(KG_H[772], t3, True)
    cur[0] = 0
    chE = cmul(t1, X[4], w512) + emitrow(KG_H[516], t1, True)
    for ins in interleave([chC2, chD, chE]): a(ins)
    AF = CH
    a("s_waitcnt lgkmcnt(0)")
    for ks in range(8):
        a(f"ds_read_b128 v[{AF+4*ks}:{AF+4*ks+3}], v6 offset:{ks*32}")
    for ks in range(8):
        a(f"s_waitcnt lgkmcnt({7-ks})")
        a(f"v_mfma_f32_32x32x16_bf16 v[{ACC}:{ACC+15}], v[{AF+4*ks}:{AF+4*ks+3}], v[{BF+4*ks}:{BF+4*ks+3}], v[{ACC}:{ACC+15}]")
    stamp(a, 2)
    srd(a, 48, 44, SZ_X, WS_KREV)
    srd(a, 52, 44, SZ_WF, WS_W2F)
    a("v_readfirstlane_b32 s7, v1")
    a("s_waitcnt vmcnt(0)")
    a("s_barrier")
    a("v_lshrrev_b32 v3, 5, v0")
    a("v_and_b32 v4, 31, v0")
    a("v_mul_u32_u24 v3, 528, v3")
    a("v_lshl_add_u32 v3, v4, 4, v3")
    a(f"ds_write_b128 v3, v[{W}:{W+3}] offset:32768")
    a("s_and_b32 s9, s7, 3")
    a("s_lshr_b32 s10, s7, 2")
    a("s_mul_i32 s11, s10, 12288")
    a("v_lshlrev_b32 v4, 4, v2")
    a("v_add_u32 v4, s11, v4")
    lab1 = a.newlabel("kg_nw"); lab2 = a.newlabel("kg_w2"); lab3 = a.newlabel("kg_end")
    a("s_cmp_eq_u32 s9, 0")
    a(f"s_cbranch_scc1 {lab1}")
    a("s_sub_u32 s5, s9, 1")
    a("s_lshl_b32 s5, s5, 12")
    a("v_add_u32 v5, s5, v4")
    for q in range(4):
        a(f"ds_write_b128 v5, v[{ACC+4*q}:{ACC+4*q+3}] offset:{1024*q}")
    a.label(lab1)
    a("s_waitcnt lgkmcnt(0)")
    a("s_barrier")
    a("s_cmp_eq_u32 s7, 7")
    a(f"s_cbranch_scc1 {lab2}")
    a("v_lshrrev_b32 v5, 5, v2")
    a("v_bfe_u32 v3, v2, 2, 2")
    a("v_lshl_add_u32 v5, v5, 2, v3")
    a("v_mul_u32_u24 v5, 528, v5")
    a("v_bfe_u32 v3, v2, 4, 1")
    a("v_lshl_add_u32 v5, v3, 5, v5")
    a("v_and_b32 v3, 3, v2")
    a("v_lshl_add_u32 v5, v3, 3, v5")
    a("s_lshl_b32 s5, s7, 6")
    a("v_add_u32 v5, s5, v5")
    a(f"ds_read_b64_tr_b16 v[{W}:{W+1}], v5 offset:32768")
    a(f"ds_read_b64_tr_b16 v[{W+2}:{W+3}], v5 offset:{32768+8*528}")
    a("s_and_b32 s5, s3, 1")
    a("s_mul_i32 s5, s5, 7")
    a("s_add_u32 s5, s5, s7")
    a("s_mul_i32 s5, s5, 112")
    a("s_lshr_b32 s6, s3, 1")
    a("s_add_u32 s5, s5, s6")
    a("s_lshl_b32 s5, s5, 10")
    a("v_lshlrev_b32 v3, 4, v2")
    a("s_waitcnt lgkmcnt(0)")
    a(f"buffer_store_dwordx4 v[{W}:{W+3}], v3, s[52:55], s5 offen {SC}")
    a.label(lab2)
    a("s_cmp_eq_u32 s9, 0")
    a(f"s_cbranch_scc0 {lab3}")
    R = 64
    for j in range(3):
        for q in range(4):
            a(f"ds_read_b128 v[{R+16*j+4*q}:{R+16*j+4*q+3}], v4 offset:{4096*j+1024*q}")
    for j in range(3):
        a(f"s_waitcnt lgkmcnt({4*(2-j)})")
        for i in range(16): a(f"v_add_f32 v{ACC+i}, v{ACC+i}, v{R+16*j+i}")
    a("s_lshl_b32 s4, s3, 13")
    a("s_lshl_b32 s5, s10, 12")
    a("s_add_u32 s4, s4, s5")
    a("v_and_b32 v5, 31, v2")
    a("v_lshlrev_b32 v5, 4, v5")
    a("v_sub_u32 v6, 4080, v5")
    def pk(d, lo, hi): a(f"v_cvt_pk_bf16_f32 v{d}, v{ACC+lo}, v{ACC+hi}")
    def store(base, d):
        a(f"v_subrev_u32 v7, {2*base}, v6")
        a(f"buffer_store_dwordx4 v[{d}:{d+3}], v7, s[48:51], s4 offen {SC}")
    O = 64
    a("s_mov_b64 s[10:11], exec")
    a("s_mov_b32 exec_lo, -1")
    a("s_mov_b32 exec_hi, 0")
    pk(O, 7, 6); pk(O+1, 5, 4); pk(O+2, 3, 2); pk(O+3, 1, 0); store(0, O)
    pk(O+4, 12, 11); pk(O+5, 10, 10); pk(O+6, 10, 9); pk(O+7, 8, 8); store(256, O+4)
    a("s_mov_b32 exec_lo, 0")
    a("s_mov_b32 exec_hi, -1")
    for b in range(2):
        o = O + 8 + 4*b; r0 = 3*b
        pk(o, r0+2, r0+2); pk(o+1, r0+1, r0+1); pk(o+2, r0+1, r0); pk(o+3, r0, r0); store(512 + 256*b, o)
    a("v_and_b32 v5, 1, v2")
    a("v_cmp_eq_u32 vcc, 0, v5")
    for b in range(4):
        o = O + 16 + 4*b; r0 = 6 + 2*b
        a(f"v_cndmask_b32 v{O+40}, v{ACC+r0+1}, v{ACC+r0}, vcc")
        pk(o, r0+1, r0+1)
        a(f"v_cvt_pk_bf16_f32 v{o+1}, v{ACC+r0+1}, v{O+40}")
        pk(o+2, r0, r0); pk(o+3, r0, r0); store(1024 + 256*b, o)
    a("s_mov_b64 exec, s[10:11]")
    a.label(lab3)

def build_k1():
    kern.PROF_V = 127 if False else 123
    a = Asm()
    load_ptrs(a)
    a("s_cmp_ge_u32 s2, 480")
    a("s_cbranch_scc1 L_k1_end")
    a("s_waitcnt lgkmcnt(0)")
    a("s_cmp_ge_u32 s2, 256")
    a(f"s_cbranch_scc1 {'L_k1_kg' if G1FIRST else 'L_k1_g1'}")
    a("s_cmp_lt_u32 s2, 224")
    a(f"s_cbranch_scc1 {'L_k1_g1' if G1FIRST else 'L_k1_kg'}")
    a("s_sub_u32 s3, s2, 224")
    if "ln" not in ROLES: a("s_endpgm")
    kern.PROF_V = 123; stamp(a, 0)
    body_ln(a)
    if kern.PROF: a("s_waitcnt vmcnt(0)")
    stamp(a, 3); prof_flush(a, 0, 4)
    a("s_endpgm")
    a.label("L_k1_kg")
    a("s_sub_u32 s3, s2, 256" if G1FIRST else "s_mov_b32 s3, s2")
    if "kg" not in ROLES: a("s_endpgm")
    kern.PROF_V = 123; stamp(a, 0)
    body_kg(a)
    if kern.PROF: a("s_waitcnt vmcnt(0)")
    stamp(a, 3); prof_flush(a, 0, 4)
    a("s_endpgm")
    a.label("L_k1_g1")
    a("s_mov_b32 s3, s2" if G1FIRST else "s_sub_u32 s3, s2, 256")
    if "g1" not in ROLES: a("s_endpgm")
    kern.PROF_V = 1; stamp(a, 0)
    body_g1(a)
    if kern.PROF: a("s_waitcnt vmcnt(0)")
    stamp(a, 3); prof_flush(a, 0, 4)
    a.label("L_k1_end")
    a("s_endpgm")
    return a

def assemble(kernels, path):
    hdr = "; generated by dev/kern3.py (own generator)\n"
    for name, asm, vgpr, grid, lds, blk in kernels:
        hdr += f"; @launch kernel={name} grid=({grid},1,1) block=({blk},1,1) lds={lds}\n"
    hdr += '.amdgcn_target "amdgcn-amd-amdhsa--gfx950"\n'
    txt = ""; desc = ""
    for name, asm, vgpr, grid, lds, blk in kernels:
        t, d, n = kernel_text(name, asm, vgpr)
        txt += t; desc += d
        print(f"{name}: {len(t.splitlines())} lines, {n} hazard pads")
    open(path, "w").write(hdr + txt + desc)

def build(path):
    kern2.NOWAIT = NOWAIT; kern2.FINE = FINE; kern2.ROLES = ROLES
    assemble([("k1_kernel", build_k1(), 128, 480, 81920, 512), ("k2_kernel", kern2.build_k2(), 236, 480, 2*CV_CH, 256)], path)

if __name__ == "__main__":
    kern2.TOUCH2 = False
    kern.PROF = True; FINE = False
    build("rp.s")

    kern.PROF = False; FINE = False
    build("r.s")
```

```python
from asmgen import Asm, kernel_text
import kern
from kern import (prof2_start, prof2_end, srd, load_ptrs, f32bits, bf_round, unpack, interleave, kg_row, KG_H, KG_RS, KG_WLDS,
                  kgen_issue, kgen_compute, kgen_finish, CV_BS, CV_CS, CV_K, CV_CH,
                  WS_H, WS_W2F, WS_XNT, WS_KREV, WS_AOUT, SZ_H, SZ_WF, SZ_X, stamp, prof_flush, assemble)
WS_ST = 0x1300000
WS_FLAG = 0x1400000
SC = "sc1"
ROLES = {"g1","ln","kg","g2","cv"}
NOWAIT = False
TOUCH1 = True
FINE = False
NOMFMA = False
SWAP = True
G1MAP47 = True

class VM:
    def __init__(self): self.q = []
    def issue(self, tag, n=1): self.q += [tag] * n
    def wait_for(self, tag):
        last = max(i for i, t in enumerate(self.q) if t == tag)
        return len(self.q) - 1 - last

def xcd_idx(a, div, magic, mul):
    a("s_lshr_b32 s14, s3, 3")
    a(f"s_mul_hi_u32 s5, s14, {magic:#x}")
    a(f"s_mul_i32 s13, s5, {div}")
    a("s_sub_u32 s13, s14, s13")
    a("s_and_b32 s12, s3, 7")
    a(f"s_mul_i32 s12, s12, {mul}")
    a("s_add_u32 s12, s12, s5")

def body_g1(a):
    NB = 5; NCH = 14; WB = NB*8192
    vm = VM()
    srd(a, 48, 16, SZ_X)
    srd(a, 52, 36, SZ_WF)
    if G1MAP47:
        a("s_lshr_b32 s14, s3, 3")
        a("s_mul_hi_u32 s5, s14, 0x24924925")
        a("s_mul_i32 s13, s5, 7")
        a("s_sub_u32 s13, s14, s13")
        a("s_and_b32 s6, s3, 1")
        a("s_mul_i32 s6, s6, 7")
        a("s_add_u32 s13, s13, s6")
        a("s_bfe_u32 s12, s3, 0x20001")
        a("s_lshl_b32 s12, s12, 2")
        a("s_add_u32 s12, s12, s5")
    else:
        xcd_idx(a, 14, 0x12492493, 2)
    a("v_lshrrev_b32 v1, 6, v0")
    a("v_and_b32 v2, 63, v0")
    a("v_readfirstlane_b32 s7, v1")
    a("v_lshrrev_b32 v3, 2, v2")
    a("v_and_b32 v4, 3, v2")
    a("v_bfe_u32 v5, v2, 4, 2")
    a("v_xor_b32 v4, v4, v5")
    a("v_mul_u32_u24 v3, 896, v3")
    a("v_lshl_add_u32 v3, v4, 4, v3")
    a("v_lshrrev_b32 v4, 4, v2")
    a("v_and_b32 v5, 15, v2")
    a("v_lshlrev_b32 v6, 2, v4")
    a("v_xor_b32 v5, v5, v6")
    a("v_mul_u32_u24 v4, 3584, v4")
    a("v_lshl_add_u32 v4, v5, 4, v4")
    a("s_lshl_b32 s8, s12, 2")
    a("s_add_u32 s8, s8, s7")
    a("s_mul_i32 s8, s8, 28672")
    a("s_mul_i32 s9, s7, 28672")
    a("s_lshl_b32 s5, s13, 8")
    a("s_add_u32 s9, s9, s5")
    a("s_lshl_b32 s10, s7, 11")
    def dma(c):
        buf = (c % NB) * 8192
        a(f"s_add_u32 m0, s10, {buf}")
        a(f"buffer_load_dwordx4 v3, s[48:51], s8 offen lds")
        a(f"s_add_u32 m0, s10, {buf+WB}")
        a(f"buffer_load_dwordx4 v4, s[52:55], s9 offen lds")
        a("s_add_u32 s5, s8, 14336")
        a(f"s_add_u32 m0, s10, {buf+1024}")
        a(f"buffer_load_dwordx4 v3, s[48:51], s5 offen lds")
        a("s_add_u32 s5, s9, 14336")
        a(f"s_add_u32 m0, s10, {buf+WB+1024}")
        a(f"buffer_load_dwordx4 v4, s[52:55], s5 offen lds")
        a("s_add_u32 s8, s8, 64")
        a("s_add_u32 s9, s9, 114688")
        vm.issue(("c", c), 4)
    dma(0); dma(1)
    if TOUCH1 and G1MAP47:
        a("s_mul_i32 s5, s14, 224")
        a("v_add_u32 v5, s5, v0")
        a("s_mov_b32 s6, 0x12492493")
        a("v_mul_hi_u32 v6, v5, s6")
        a("v_mul_u32_u24 v7, 14, v6")
        a("v_sub_u32 v7, v5, v7")
        a("v_mul_u32_u24 v6, 3584, v6")
        a("v_lshl_add_u32 v6, v7, 7, v6")
        a("s_and_b32 s6, s3, 1")
        a("s_mul_i32 s6, s6, 1792")
        a("v_cmp_gt_u32 vcc, 224, v0")
        a("v_mov_b32 v7, 0x7ffffff0")
        a("v_cndmask_b32 v6, v7, v6, vcc")
        a("buffer_load_dword v10, v6, s[52:55], s6 offen")
        a("s_bfe_u32 s5, s3, 0x20001")
        a("s_mul_i32 s5, s5, 458752")
        a("s_lshl_b32 s6, s14, 14")
        a("s_add_u32 s5, s5, s6")
        a("v_lshlrev_b32 v5, 7, v0")
        a("v_cmp_gt_u32 vcc, 128, v0")
        a("v_mov_b32 v7, 0x7ffffff0")
        a("v_cndmask_b32 v6, v7, v5, vcc")
        a("buffer_load_dword v11, v6, s[48:51], s5 offen")
        vm.issue("touch", 2)
    dma(2); dma(3)
    srd(a, 56, 44, SZ_H, WS_H)
    srd(a, 60, 44, 16384, WS_ST)
    srd(a, 64, 42, 256)
    a("s_and_b32 s15, s7, 1")
    a("s_lshr_b32 s11, s7, 1")
    a("v_and_b32 v5, 31, v2")
    a("v_lshrrev_b32 v6, 5, v2")
    a("v_bfe_u32 v7, v2, 2, 2")
    a("v_xor_b32 v7, v7, v6")
    a("v_lshlrev_b32 v5, 6, v5")
    a("v_lshl_add_u32 v5, v7, 4, v5")
    a("s_lshl_b32 s5, s11, 12")
    a("v_add_u32 v5, s5, v5")
    a("v_xor_b32 v13, 32, v5")
    a("v_bfe_u32 v7, v2, 2, 2")
    a("v_lshl_add_u32 v8, v6, 3, v7")
    a("v_lshlrev_b32 v8, 8, v8")
    a("v_bfe_u32 v9, v2, 4, 1")
    a("v_lshl_add_u32 v8, v9, 5, v8")
    a("v_and_b32 v9, 3, v2")
    a("v_lshl_add_u32 v8, v9, 3, v8")
    a(f"v_add_u32 v8, {WB}, v8")
    a("s_lshl_b32 s5, s15, 1")
    a("s_add_u32 s68, s5, s11")
    a("s_xor_b32 s69, s68, 1")
    a("v_xor_b32 v9, s68, v7")
    a("v_lshl_add_u32 v14, v9, 6, v8")
    a("v_xor_b32 v9, s69, v7")
    a("v_lshl_add_u32 v15, v9, 6, v8")
    SEL = 48; WACC = 52; ACC = 64; S0 = 16; S1 = 32
    a("v_and_b32 v9, 31, v2")
    a("v_cmp_eq_u32 vcc, 0, v9")
    a("v_cmp_eq_u32 s[70:71], 17, v9")
    a("s_or_b64 vcc, vcc, s[70:71]")
    a("v_mov_b32 v9, 0x3f803f80")
    a(f"v_cndmask_b32 v{SEL}, 0, v9, vcc")
    for i in range(1, 4): a(f"v_mov_b32 v{SEL+i}, v{SEL}")
    for i in range(4): a(f"v_mov_b32 v{WACC+i}, 0")
    for i in range(64): a(f"v_mov_b32 v{ACC+i}, 0")
    def reads(c, st, S):
        o = (c % NB) * 8192
        vb = 5 if st == 0 else 13
        a(f"ds_read_b64_tr_b16 v[{S}:{S+1}], v14 offset:{o+st*4096}")
        a(f"ds_read_b64_tr_b16 v[{S+2}:{S+3}], v14 offset:{o+st*4096+1024}")
        a(f"ds_read_b128 v[{S+8}:{S+11}], v{vb} offset:{o}")
        a(f"ds_read_b64_tr_b16 v[{S+4}:{S+5}], v15 offset:{o+st*4096}")
        a(f"ds_read_b64_tr_b16 v[{S+6}:{S+7}], v15 offset:{o+st*4096+1024}")
        a(f"ds_read_b128 v[{S+12}:{S+15}], v{vb} offset:{o+2048}")
    def mfmas(S):
        if NOMFMA: return
        for aa in range(2):
            for b in range(2):
                d = ACC + 16*(2*aa+b)
                a(f"v_mfma_f32_32x32x16_bf16 v[{d}:{d+15}], v[{S+4*aa}:{S+4*aa+3}], v[{S+8+4*b}:{S+8+4*b+3}], v[{d}:{d+15}]")
        a(f"v_mfma_f32_16x16x32_bf16 v[{WACC}:{WACC+3}], v[{SEL}:{SEL+3}], v[{S}:{S+3}], v[{WACC}:{WACC+3}]")
    ST = 56
    for c in range(NCH):
        a(f"s_waitcnt vmcnt({vm.wait_for(('c', c))})")
        a("s_barrier")
        if c == 0: stamp(a, 1)
        if FINE: stamp(a, 8 + c)
        if c == 9:
            a("v_mov_b32 v61, 0")
            a("s_lshl_b32 s72, s12, 2")
            a(f"buffer_load_dword v60, v61, s[64:67], s72 offen {SC}")
            vm.issue("poll")
        if c + 4 < NCH: dma(c + 4)
        reads(c, 0, S0)
        if c > 0: mfmas(S1)
        reads(c, 1, S1)
        a("s_waitcnt lgkmcnt(6)")
        mfmas(S0)
        if c == 10:
            lab = a.newlabel("g1poll"); ok = a.newlabel("g1ok")
            a(f"s_waitcnt vmcnt({vm.wait_for('poll')})")
            a("v_readfirstlane_b32 s73, v60")
            a("s_cmp_ge_u32 s73, 4")
            a(f"s_cbranch_scc1 {ok}")
            if NOWAIT: a(f"s_branch {ok}")
            a("s_mov_b32 s77, 0")
            a.label(lab)
            a("s_add_u32 s77, s77, 1")
            a("s_cmp_ge_u32 s77, 0x40000")
            a(f"s_cbranch_scc1 {ok}")
            a("s_sleep 2")
            a(f"buffer_load_dword v60, v61, s[64:67], s72 offen {SC}")
            a("s_waitcnt vmcnt(0)")
            a("v_readfirstlane_b32 s73, v60")
            a("s_cmp_ge_u32 s73, 4")
            a(f"s_cbranch_scc0 {lab}")
            a.label(ok)
            a("s_lshl_b32 s5, s12, 10")
            a("s_lshl_b32 s6, s11, 9")
            a("s_add_u32 s5, s5, s6")
            a("v_and_b32 v61, 31, v2")
            a("v_lshlrev_b32 v61, 3, v61")
            a(f"buffer_load_dwordx2 v[{ST}:{ST+1}], v61, s[60:63], s5 offen {SC}")
            a(f"buffer_load_dwordx2 v[{ST+2}:{ST+3}], v61, s[60:63], s5 offen offset:256 {SC}")
            vm.issue("stats", 2)
        a("s_waitcnt lgkmcnt(0)")
    mfmas(S1)
    stamp(a, 2)
    WL = 4*8192
    a("s_lshl_b32 s5, s68, 7")
    a("v_and_b32 v9, 15, v2")
    a("v_lshlrev_b32 v9, 2, v9")
    a("v_add_u32 v9, s5, v9")
    a("s_mov_b64 s[70:71], exec")
    a("s_mov_b64 exec, 0xffff")
    a(f"ds_write_b32 v9, v{WACC} offset:{WL}")
    a(f"ds_write_b32 v9, v{WACC+1} offset:{WL+64}")
    a("s_mov_b64 exec, s[70:71]")
    a("s_waitcnt lgkmcnt(0)")
    a("s_barrier")
    WR = 16
    a("v_lshrrev_b32 v9, 5, v2")
    a("v_lshlrev_b32 v9, 4, v9")
    a("s_lshl_b32 s5, s68, 7")
    a("v_add_u32 v10, s5, v9")
    a("s_lshl_b32 s5, s69, 7")
    a("v_add_u32 v11, s5, v9")
    for aa in range(2):
        for q in range(4):
            a(f"ds_read_b128 v[{WR+16*aa+4*q}:{WR+16*aa+4*q+3}], v{10+aa} offset:{WL+32*q}")
    a("s_waitcnt vmcnt(0)")
    a(f"v_mul_f32 v{ST}, v{ST}, v{ST+1}")
    a(f"v_mul_f32 v{ST+2}, v{ST+2}, v{ST+3}")
    a("s_lshl_b32 s4, s12, 2")
    a("s_lshl_b32 s5, s11, 1")
    a("s_add_u32 s4, s4, s5")
    a("s_mul_i32 s4, s4, 112")
    a("s_lshl_b32 s5, s13, 3")
    a("s_add_u32 s4, s4, s5")
    a("s_lshl_b32 s5, s68, 1")
    a("s_add_u32 s74, s4, s5")
    a("s_lshl_b32 s74, s74, 10")
    a("s_lshl_b32 s5, s69, 1")
    a("s_add_u32 s75, s4, s5")
    a("s_lshl_b32 s75, s75, 10")
    a("v_lshlrev_b32 v3, 4, v2")
    a("s_waitcnt lgkmcnt(0)")
    O = 48
    for aa in range(2):
        for b in range(2):
            d = ACC + 16*(2*aa+b); w = WR + 16*aa
            for k in range(8):
                a(f"v_pk_mul_f32 v[{4+2*(k%2)}:{5+2*(k%2)}], v[{w+2*k}:{w+2*k+1}], v[{ST+2*b}:{ST+2*b+1}] op_sel_hi:[1,0]")
                a(f"v_pk_fma_f32 v[{d+2*k}:{d+2*k+1}], v[{d+2*k}:{d+2*k+1}], v[{ST+2*b}:{ST+2*b+1}], v[{4+2*(k%2)}:{5+2*(k%2)}] op_sel:[0,1,0] op_sel_hi:[1,1,1] neg_lo:[0,0,1] neg_hi:[0,0,1]")
            o = d
            for k in range(8):
                a(f"v_cvt_pk_bf16_f32 v{o+k}, v{d+2*k}, v{d+2*k+1}")
                a(f"v_pk_max_i16 v{o+k}, v{o+k}, 0")
            a(f"s_add_u32 s5, s{74+aa}, {b*112*1024}")
            a(f"buffer_store_dwordx4 v[{o}:{o+3}], v3, s[56:59], s5 offen {SC}")
            a(f"buffer_store_dwordx4 v[{o+4}:{o+7}], v3, s[56:59], s5 offen offset:1024 {SC}")

def body_ln2(a):
    X = 8; F = 40
    srd(a, 48, 16, SZ_X)
    srd(a, 56, 44, SZ_X, WS_XNT)
    srd(a, 60, 44, 16384, WS_ST)
    srd(a, 64, 42, 256)
    a("v_lshrrev_b32 v1, 3, v0")
    a("v_and_b32 v2, 7, v0")
    a("s_mul_i32 s4, s3, 28672")
    a("v_mul_u32_u24 v3, 896, v1")
    a("v_lshl_add_u32 v3, v2, 4, v3")
    for j in range(7):
        a(f"buffer_load_dwordx4 v[{X+4*j}:{X+4*j+3}], v3, s[48:51], s4 offen offset:{128*j}")
    a("v_mul_u32_u24 v5, 912, v1")
    a("v_lshl_add_u32 v5, v2, 4, v5")
    for j in range(7):
        a(f"s_waitcnt vmcnt({6-j})")
        if j == 6: stamp(a, 1)
        for k in range(4):
            unpack(a, F+8*j+2*k, F+8*j+2*k+1, X+4*j+k)
    a(f"v_add_f32 v6, v{F}, v{F+1}")
    a(f"v_add_f32 v7, v{F+2}, v{F+3}")
    a(f"v_add_f32 v96, v{F+4}, v{F+5}")
    a(f"v_add_f32 v97, v{F+6}, v{F+7}")
    accs = [6, 7, 96, 97]
    for i in range(8, 56):
        r = accs[i % 4]
        a(f"v_add_f32 v{r}, v{r}, v{F+i}")
    a("v_add_f32 v6, v6, v7")
    a("v_add_f32 v96, v96, v97")
    a("v_add_f32 v6, v6, v96")
    def red8(r):
        a(f"v_add_f32_dpp v{r}, v{r}, v{r} quad_perm:[1,0,3,2] row_mask:0xf bank_mask:0xf")
        a(f"v_add_f32_dpp v{r}, v{r}, v{r} quad_perm:[2,3,0,1] row_mask:0xf bank_mask:0xf")
        a(f"v_add_f32_dpp v{r}, v{r}, v{r} row_half_mirror row_mask:0xf bank_mask:0xf")
    red8(6)
    a(f"s_mov_b32 s5, {f32bits(1.0/448):#x}")
    a("v_mul_f32 v6, s5, v6")
    bf_round(a, 98, 6)
    accs = [7, 96, 97, 99]
    for i in range(4): a(f"v_mov_b32 v{accs[i]}, 0")
    for i in range(56):
        t = 100 + (i % 4)
        a(f"v_sub_f32 v{t}, v{F+i}, v6")
        a(f"v_fmac_f32 v{accs[i%4]}, v{t}, v{t}")
    a("v_add_f32 v7, v7, v96")
    a("v_add_f32 v97, v97, v99")
    a("v_add_f32 v7, v7, v97")
    red8(7)
    a("v_mul_f32 v7, s5, v7")
    bf_round(a, 7, 7)
    a(f"v_add_f32 v7, {f32bits(1e-5):#x}, v7")
    bf_round(a, 7, 7)
    a("v_sqrt_f32 v7, v7")
    bf_round(a, 99, 7)
    a("v_rcp_f32 v99, v99")
    a("s_lshl_b32 s6, s3, 8")
    a("v_lshlrev_b32 v100, 3, v1")
    a(f"buffer_store_dwordx2 v[98:99], v100, s[60:63], s6 offen {SC}")
    a("s_waitcnt vmcnt(0)")
    a("s_barrier")
    lab = a.newlabel("lnpub")
    a("v_readfirstlane_b32 s7, v0")
    a("s_cmp_lt_u32 s7, 64")
    a(f"s_cbranch_scc0 {lab}")
    a("s_lshr_b32 s6, s3, 2")
    a("s_lshl_b32 s6, s6, 2")
    a("v_mov_b32 v100, 0")
    a("v_mov_b32 v101, 1")
    a("s_mov_b64 s[70:71], exec")
    a("s_mov_b64 exec, 1")
    a("buffer_atomic_add v101, v100, s[64:67], s6 offen")
    a("s_mov_b64 exec, s[70:71]")
    a.label(lab)
    stamp(a, 2)
    for j in range(7):
        for k in range(4):
            lo = F+8*j+2*k; hi = lo+1; d = X+4*j+k
            a(f"v_sub_f32 v{lo}, v{lo}, v98")
            a(f"v_sub_f32 v{hi}, v{hi}, v98")
            a(f"v_cvt_pk_bf16_f32 v{d}, v{lo}, v{hi}")
        for k in range(4):
            lo = F+8*j+2*k; hi = lo+1; d = X+4*j+k
            unpack(a, lo, hi, d)
            a(f"v_mul_f32 v{lo}, v{lo}, v99")
            a(f"v_mul_f32 v{hi}, v{hi}, v99")
            a(f"v_cvt_pk_bf16_f32 v{d}, v{lo}, v{hi}")
        a(f"ds_write_b128 v5, v[{X+4*j}:{X+4*j+3}] offset:{128*j}")
    a("v_and_b32 v1, 63, v0")
    a("v_lshrrev_b32 v2, 4, v1")
    a("v_bfe_u32 v3, v1, 2, 2")
    a("v_and_b32 v6, 3, v1")
    a("v_lshl_add_u32 v7, v2, 3, v3")
    a("v_mul_u32_u24 v7, 912, v7")
    a("v_lshl_add_u32 v7, v6, 3, v7")
    a("v_lshrrev_b32 v6, 6, v0")
    a("v_lshl_add_u32 v7, v6, 5, v7")
    a("v_and_b32 v3, 15, v1")
    a("v_lshl_add_u32 v3, v6, 4, v3")
    a("v_lshlrev_b32 v3, 12, v3")
    a("v_lshl_add_u32 v3, v2, 4, v3")
    a("s_lshl_b32 s6, s3, 6")
    a("s_waitcnt lgkmcnt(0)")
    a("s_barrier")
    for t in range(7):
        r = X + 4*t
        a(f"ds_read_b64_tr_b16 v[{r}:{r+1}], v7 offset:{128*t}")
        a(f"ds_read_b64_tr_b16 v[{r+2}:{r+3}], v7 offset:{128*t+4*912}")
    for t in range(7):
        r = X + 4*t
        a(f"s_waitcnt lgkmcnt({2*(6-t)})")
        a(f"buffer_store_dwordx4 v[{r}:{r+3}], v3, s[56:59], s6 offen {SC}")
        if t < 6: a(f"v_add_u32 v3, {64*4096}, v3")

def w2_issue(a, W):
    srd(a, 52, 38, SZ_WF)
    a("v_lshrrev_b32 v1, 5, v0")
    a("v_and_b32 v2, 31, v0")
    a("s_lshr_b32 s4, s3, 1")
    a("s_mul_i32 s4, s4, 14336")
    a("s_and_b32 s5, s3, 1")
    a("s_mul_i32 s5, s5, 448")
    a("s_add_u32 s4, s4, s5")
    a("v_mul_u32_u24 v3, 896, v1")
    a("v_lshl_add_u32 v3, v2, 4, v3")
    a(f"buffer_load_dwordx4 v[{W}:{W+3}], v3, s[52:55], s4 offen")
    a("s_add_u32 s4, s4, 7168")
    a(f"buffer_load_dwordx4 v[{W+4}:{W+7}], v3, s[52:55], s4 offen")

def w2_finish(a, W, ldsb):
    srd(a, 52, 44, SZ_WF, WS_W2F)
    a("v_lshrrev_b32 v1, 5, v0")
    a("v_and_b32 v2, 31, v0")
    a("v_mul_u32_u24 v3, 528, v1")
    a("v_lshl_add_u32 v3, v2, 4, v3")
    a(f"ds_write_b128 v3, v[{W}:{W+3}] offset:{ldsb}")
    a(f"ds_write_b128 v3, v[{W+4}:{W+7}] offset:{ldsb+8*528}")
    a("v_and_b32 v1, 63, v0")
    a("v_lshrrev_b32 v2, 5, v1")
    a("v_bfe_u32 v3, v1, 2, 2")
    a("v_bfe_u32 v4, v1, 4, 1")
    a("v_and_b32 v5, 3, v1")
    a("v_lshlrev_b32 v4, 5, v4")
    a("v_lshl_add_u32 v4, v5, 3, v4")
    a("v_lshrrev_b32 v6, 6, v0")
    a("v_lshl_add_u32 v4, v6, 6, v4")
    a("v_lshl_add_u32 v7, v2, 2, v3")
    a("v_mul_u32_u24 v7, 528, v7")
    a("v_add_u32 v7, v7, v4")
    a("v_lshlrev_b32 v1, 4, v1")
    a("v_readfirstlane_b32 s7, v6")
    a("s_waitcnt lgkmcnt(0)")
    a("s_barrier")
    for rnd in range(2):
        if rnd == 1:
            lab = a.newlabel("rl_skip")
            a("s_cmp_eq_u32 s7, 3")
            a(f"s_cbranch_scc1 {lab}")
        o = 256*rnd; R = W + 4*rnd
        a(f"ds_read_b64_tr_b16 v[{R}:{R+1}], v7 offset:{ldsb+o}")
        a(f"ds_read_b64_tr_b16 v[{R+2}:{R+3}], v7 offset:{ldsb+o+8*528}")
        a("s_and_b32 s5, s3, 1")
        a("s_mul_i32 s5, s5, 7")
        a("s_add_u32 s5, s5, s7")
        if rnd: a("s_add_u32 s5, s5, 4")
        a("s_mul_i32 s5, s5, 112")
        a("s_lshr_b32 s6, s3, 1")
        a("s_add_u32 s5, s5, s6")
        a("s_lshl_b32 s5, s5, 10")
        a("s_waitcnt lgkmcnt(0)")
        a(f"buffer_store_dwordx4 v[{R}:{R+3}], v1, s[52:55], s5 offen {SC}")
        if rnd == 1: a.label(lab)

def body_kg(a):
    W = 148
    kgen_issue(a, 16)
    w2_issue(a, W)
    a("s_waitcnt vmcnt(2) lgkmcnt(0)")
    stamp(a, 1)
    kgen_compute(a, 16, 132)
    stamp(a, 2)
    a("s_waitcnt vmcnt(0)")
    kgen_finish(a, 132, 0, SC)
    w2_finish(a, W, 16384)

def build_k1():
    kern.PROF_V = 159
    a = Asm()
    load_ptrs(a)
    a("s_cmp_ge_u32 s2, 512")
    a("s_cbranch_scc1 L_k1_end")
    a("s_waitcnt lgkmcnt(0)")
    stamp(a, 0)
    a("s_cmp_lt_u32 s2, 224")
    a(f"s_cbranch_scc1 {'L_k1_kg' if SWAP else 'L_k1_g1'}")
    a("s_cmp_lt_u32 s2, 256")
    a("s_cbranch_scc1 L_k1_lna")
    a("s_cmp_lt_u32 s2, 480")
    a(f"s_cbranch_scc1 {'L_k1_g1' if SWAP else 'L_k1_kg'}")
    a("s_sub_u32 s3, s2, 448")
    a("s_branch L_k1_ln")
    a.label("L_k1_lna")
    a("s_sub_u32 s3, s2, 224")
    a.label("L_k1_ln")
    if "ln" not in ROLES: a("s_endpgm")
    body_ln2(a)
    if kern.PROF: a("s_waitcnt vmcnt(0)")
    stamp(a, 3); prof_flush(a, 0, 4)
    a("s_endpgm")
    a.label("L_k1_kg")
    a("s_mov_b32 s3, s2" if SWAP else "s_sub_u32 s3, s2, 256")
    if "kg" not in ROLES: a("s_endpgm")
    body_kg(a)
    if kern.PROF: a("s_waitcnt vmcnt(0)")
    stamp(a, 3); prof_flush(a, 0, 4)
    a("s_endpgm")
    a.label("L_k1_g1")
    a("s_sub_u32 s3, s2, 256" if SWAP else "s_mov_b32 s3, s2")
    if "g1" not in ROLES: a("s_endpgm")
    body_g1(a)
    if kern.PROF: a("s_waitcnt vmcnt(0)")
    stamp(a, 3); prof_flush(a, 0, 4)
    a.label("L_k1_end")
    a("s_endpgm")
    return a

def body_g2(a):
    PF = 8; NK = 28
    vm = VM()
    if G2PRIO: a(f"s_setprio {G2PRIO}")
    srd(a, 48, 44, SZ_WF, WS_W2F)
    srd(a, 52, 44, SZ_H, WS_H)
    xcd_idx(a, 7, 0x24924925, 4)
    if G2SAME == 1:
        a("s_and_b32 s12, s3, 7")
        a("s_mov_b32 s13, 0")
    if G2SAME == 2:
        a("s_and_b32 s12, s3, 7")
    if G2SAME == 3:
        a("s_mov_b32 s13, 0")
    a("v_lshrrev_b32 v1, 6, v0")
    a("v_and_b32 v2, 63, v0")
    a("v_readfirstlane_b32 s7, v1")
    a("v_lshlrev_b32 v3, 4, v2")
    a("s_mul_i32 s4, s7, 28")
    a("s_lshl_b32 s5, s13, 1")
    a("s_mul_i32 s5, s5, 112")
    a("s_add_u32 s5, s5, s4")
    a("s_lshl_b32 s68, s5, 10")
    a(f"s_add_u32 s69, s68, {112*1024}")
    a("s_lshl_b32 s5, s12, 1")
    a("s_mul_i32 s5, s5, 112")
    a("s_add_u32 s5, s5, s4")
    a("s_lshl_b32 s70, s5, 10")
    a(f"s_add_u32 s71, s70, {112*1024}")
    ACC = 16; FR = 80; XR = 208; AR = 216
    def ld(ks):
        S = FR + 16*(ks % PF); o = (ks % 4)*1024
        a(f"buffer_load_dwordx4 v[{S}:{S+3}], v3, s[48:51], s68 offen offset:{o}")
        a(f"buffer_load_dwordx4 v[{S+8}:{S+11}], v3, s[52:55], s70 offen offset:{o}")
        a(f"buffer_load_dwordx4 v[{S+4}:{S+7}], v3, s[48:51], s69 offen offset:{o}")
        a(f"buffer_load_dwordx4 v[{S+12}:{S+15}], v3, s[52:55], s71 offen offset:{o}")
        if ks % 4 == 3:
            for r in (68, 69, 70, 71): a(f"s_add_u32 s{r}, s{r}, 4096")
        vm.issue(("k", ks), 4)
    for ks in range(2): ld(ks)
    srd(a, 56, 44, SZ_X, WS_AOUT)
    srd(a, 60, 16, SZ_X)
    srd(a, 64, 40, SZ_X)
    srd(a, 72, 44, 8192, WS_FLAG)
    a("s_lshr_b32 s8, s7, 1")
    a("s_and_b32 s9, s7, 1")
    a("s_lshl_b32 s4, s12, 6")
    a("s_lshl_b32 s5, s9, 5")
    a("s_add_u32 s4, s4, s5")
    a("s_lshl_b32 s5, s13, 6")
    a("s_lshl_b32 s6, s8, 5")
    a("s_add_u32 s5, s5, s6")
    a("s_mul_i32 s10, s4, 896")
    a("s_lshl_b32 s6, s5, 1")
    a("s_add_u32 s10, s10, s6")
    a("s_lshl_b32 s11, s5, 12")
    a("s_lshl_b32 s6, s4, 1")
    a("s_add_u32 s11, s11, s6")
    a("v_and_b32 v4, 31, v2")
    a("v_lshrrev_b32 v5, 5, v2")
    a("v_mul_u32_u24 v6, 896, v4")
    a("v_lshl_add_u32 v6, v5, 3, v6")
    a("v_lshlrev_b32 v7, 14, v5")
    a("v_lshl_add_u32 v7, v4, 1, v7")
    for q in range(4):
        a(f"buffer_load_dwordx2 v[{XR+2*q}:{XR+2*q+1}], v6, s[60:63], s10 offen offset:{16*q}")
    vm.issue("x", 4)
    for ks in range(2, PF): ld(ks)
    a("v_mov_b32 v11, 0")
    a("s_lshl_b32 s15, s13, 3")
    a("s_and_b32 s5, s12, 7")
    a("s_add_u32 s15, s15, s5")
    a("s_lshl_b32 s15, s15, 7")
    for i in range(64): a(f"v_mov_b32 v{ACC+i}, 0")
    for ks in range(NK):
        a(f"s_waitcnt vmcnt({min(63, vm.wait_for(('k', ks)))})")
        if ks == 0: stamp(a, 1)
        if FINE and ks % 2 == 0: stamp(a, 8 + ks // 2)
        S = FR + 16*(ks % PF)
        for aa in range(2):
            for b in range(2):
                d = ACC + 16*(2*aa+b)
                a(f"v_mfma_f32_32x32x16_bf16 v[{d}:{d+15}], v[{S+4*aa}:{S+4*aa+3}], v[{S+8+4*b}:{S+8+4*b+3}], v[{d}:{d+15}]")
        if ks + PF < NK: ld(ks + PF)
        if ks + PF == NK - 1:
            a(f"buffer_load_dword v12, v11, s[72:75], s15 offen {SC}")
            vm.issue("poll")
        if ks == NK - 3:
            lab = a.newlabel("g2poll"); ok = a.newlabel("g2ok")
            a(f"s_waitcnt vmcnt({vm.wait_for('poll')})")
            a("v_readfirstlane_b32 s76, v12")
            a("s_cmp_ge_u32 s76, 32")
            a(f"s_cbranch_scc1 {ok}")
            if NOWAIT: a(f"s_branch {ok}")
            a("s_mov_b32 s77, 0")
            a.label(lab)
            a("s_add_u32 s77, s77, 1")
            a("s_cmp_ge_u32 s77, 0x40000")
            a(f"s_cbranch_scc1 {ok}")
            a("s_sleep 8")
            a(f"buffer_load_dword v12, v11, s[72:75], s15 offen {SC}")
            a("s_waitcnt vmcnt(0)")
            a("v_readfirstlane_b32 s76, v12")
            a("s_cmp_ge_u32 s76, 32")
            a(f"s_cbranch_scc0 {lab}")
            a.label(ok)
            for q in range(4):
                for r in range(4):
                    a(f"s_add_u32 s6, s11, {(8*q+r)*4096}")
                    a(f"buffer_load_ushort v{AR+4*q+r}, v7, s[56:59], s6 offen {SC}")
            vm.issue("aout", 16)
    stamp(a, 2)
    a("s_lshl_b32 s4, s7, 14")
    a("v_add_u32 v8, s4, v3")
    for t in range(4):
        lab = a.newlabel("g2w")
        a(f"s_cmp_eq_u32 s7, {t}")
        a(f"s_cbranch_scc1 {lab}")
        for q in range(4):
            a(f"ds_write_b128 v8, v[{ACC+16*t+4*q}:{ACC+16*t+4*q+3}] offset:{t*4096+q*1024}")
        a(f"s_branch {lab}_e")
        a.label(lab)
        for i in range(16): a(f"v_mov_b32 v{FR+i}, v{ACC+16*t+i}")
        a.label(lab + "_e")
    a("s_lshl_b32 s4, s7, 12")
    a("v_add_u32 v8, s4, v3")
    a("s_waitcnt lgkmcnt(0)")
    a("s_barrier")
    R = FR + 16
    for j in range(3):
        a(f"s_add_u32 s4, s7, {1+j}")
        a("s_and_b32 s4, s4, 3")
        a("s_lshl_b32 s4, s4, 14")
        a(f"v_add_u32 v{9+j}, s4, v8")
        for q in range(4):
            a(f"ds_read_b128 v[{R+16*j+4*q}:{R+16*j+4*q+3}], v{9+j} offset:{q*1024}")
    for j in range(3):
        a(f"s_waitcnt lgkmcnt({4*(2-j)})")
        for i in range(16): a(f"v_add_f32 v{FR+i}, v{FR+i}, v{R+16*j+i}")
    a("s_waitcnt vmcnt(0)")
    T = 16
    for q in range(4):
        for hh in range(2):
            f0 = FR + 4*q + 2*hh; x = XR + 2*q + hh; ao = AR + 4*q + 2*hh
            a(f"v_cvt_pk_bf16_f32 v{T}, v{f0}, v{f0+1}")
            unpack(a, T+1, T+2, T)
            unpack(a, T+3, T+4, x)
            a(f"v_lshlrev_b32 v{ao}, 16, v{ao}")
            a(f"v_lshlrev_b32 v{ao+1}, 16, v{ao+1}")
            a(f"v_add_f32 v{T+3}, v{T+3}, v{ao}")
            a(f"v_add_f32 v{T+4}, v{T+4}, v{ao+1}")
            a(f"v_cvt_pk_bf16_f32 v{T}, v{T+3}, v{T+4}")
            unpack(a, T+3, T+4, T)
            a(f"v_add_f32 v{T+1}, v{T+1}, v{T+3}")
            a(f"v_add_f32 v{T+2}, v{T+2}, v{T+4}")
            a(f"v_cvt_pk_bf16_f32 v{24+2*q+hh}, v{T+1}, v{T+2}")
        a(f"buffer_store_dwordx2 v[{24+2*q}:{24+2*q+1}], v6, s[64:67], s10 offen offset:{16*q}")

TOUCH2 = True
G2SAME = 0
G2PRIO = 0

def body_cv(a):
    kern.body_conv(a, "", SC)
    srd(a, 64, 44, 8192, WS_FLAG)
    a("s_waitcnt vmcnt(0)")
    a("s_barrier")
    lab = a.newlabel("cvpub")
    a("v_readfirstlane_b32 s7, v0")
    a("s_cmp_lt_u32 s7, 64")
    a(f"s_cbranch_scc0 {lab}")
    a("s_lshr_b32 s6, s3, 5")
    a("s_lshl_b32 s6, s6, 10")
    a("v_lshlrev_b32 v1, 7, v0")
    a("v_mov_b32 v2, 1")
    a("s_mov_b64 exec, 0xff")
    a("buffer_atomic_add v2, v1, s[64:67], s6 offen")
    a.label(lab)

def build_k2():
    kern.PROF_V = 233
    a = Asm()
    load_ptrs(a)
    a("s_cmp_ge_u32 s2, 480")
    a("s_cbranch_scc1 L_k2_end")
    if SWAP:
        a("s_cmp_ge_u32 s2, 256")
        a("s_cbranch_scc1 L_k2_g2")
        a("s_cmp_ge_u32 s2, 224")
        a("s_cbranch_scc1 L_k2_end")
    else:
        a("s_cmp_lt_u32 s2, 224")
        a("s_cbranch_scc1 L_k2_g2")
        a("s_cmp_lt_u32 s2, 256")
        a("s_cbranch_scc1 L_k2_end")
    a("s_waitcnt lgkmcnt(0)")
    stamp(a, 0); prof2_start(a)
    a("s_mov_b32 s3, s2" if SWAP else "s_sub_u32 s3, s2, 256")
    if "cv" not in ROLES: a("s_endpgm")
    body_cv(a)
    stamp(a, 3); prof_flush(a, 1, 4); prof2_end(a, 1, 1)
    a("s_endpgm")
    a.label("L_k2_g2")
    a("s_waitcnt lgkmcnt(0)")
    stamp(a, 0); prof2_start(a)
    a("s_sub_u32 s3, s2, 256" if SWAP else "s_mov_b32 s3, s2")
    if "g2" not in ROLES: a("s_endpgm")
    body_g2(a)
    if kern.PROF: a("s_waitcnt vmcnt(0)")
    stamp(a, 3); prof_flush(a, 1, 4); prof2_end(a, 1, 1)
    a.label("L_k2_end")
    a("s_endpgm")
    return a

def build(path):
    assemble([("k1_kernel", build_k1(), 160, 512, 81920), ("k2_kernel", build_k2(), 236, 480, 2*CV_CH)], path)

if __name__ == "__main__":
    kern.PROF = True
    FINE = True
    NOWAIT = True
    TOUCH2 = False
    ROLES = {"g1", "g2"}; build("qp_g.s")
    TOUCH1 = False
    build("qp_g_nt.s")
    NOMFMA = True
    build("qp_g_nt_nm.s")
    TOUCH1 = True
    build("qp_g_nm.s")
    NOMFMA = False
    ROLES = {"g1","ln","kg","g2","cv"}
    NOWAIT = False
    build("qp.s")
    kern.PROF = False
    FINE = False
    build("q.s")
```

```python
from asmgen import Asm, kernel_text
import kern, kern2
from kern import (prof2_start, prof2_end, srd, load_ptrs, f32bits, bf_round, unpack, interleave, kg_row, KG_H, KG_RS,
                  CV_BS, CV_CS, CV_K, CV_CH, WS_H, WS_W2F, WS_XNT, WS_KREV, WS_AOUT, SZ_H, SZ_WF, SZ_X, stamp, prof_flush)
from kern2 import VM, WS_ST, WS_FLAG
SC = "sc1"
ROLES = {"g1","ln","kg","g2","cv"}
NOWAIT = False; FINE = False; TOUCH1 = True; NOMFMA = False; NOREAD = False; NBUF = 5; PIPE3 = True; G1FIRST = False
SPIN = 0x40000

def spin_wait(a, vreg, vaddr, srdq, soff, target, first_checked=True):
    lab = a.newlabel("spin"); ok = a.newlabel("spinok")
    a(f"v_readfirstlane_b32 s73, v{vreg}")
    a(f"s_cmp_ge_u32 s73, {target}")
    a(f"s_cbranch_scc1 {ok}")
    if NOWAIT: a(f"s_branch {ok}")
    a("s_mov_b32 s77, 0")
    a.label(lab)
    a("s_add_u32 s77, s77, 1")
    a(f"s_cmp_ge_u32 s77, {SPIN:#x}")
    a(f"s_cbranch_scc1 {ok}")
    a("s_sleep 4")
    a(f"buffer_load_dword v{vreg}, v{vaddr}, s[{srdq}:{srdq+3}], {soff} offen {SC}")
    a("s_waitcnt vmcnt(0)")
    a(f"v_readfirstlane_b32 s73, v{vreg}")
    a(f"s_cmp_ge_u32 s73, {target}")
    a(f"s_cbranch_scc0 {lab}")
    a.label(ok)

def body_g1(a):
    NB = 5; NCH = 14; WB = NB*8192
    WL = 4*8192
    a("s_lshr_b32 s14, s3, 3")
    a("s_mul_hi_u32 s5, s14, 0x24924925")
    a("s_mul_i32 s13, s5, 7")
    a("s_sub_u32 s13, s14, s13")
    a("s_and_b32 s6, s3, 1")
    a("s_mul_i32 s6, s6, 7")
    a("s_add_u32 s13, s13, s6")
    a("s_bfe_u32 s12, s3, 0x20001")
    a("s_lshl_b32 s12, s12, 2")
    a("s_add_u32 s12, s12, s5")
    a("v_lshrrev_b32 v2, 6, v0")
    a("v_and_b32 v3, 63, v0")
    a("v_readfirstlane_b32 s7, v2")
    a("s_cmp_lt_u32 s7, 4")
    a("s_cbranch_scc1 L_g1_compute")
    vm = VM()
    srd(a, 48, 16, SZ_X)
    srd(a, 52, 36, SZ_WF)
    a("s_sub_u32 s7, s7, 4")
    a("v_lshrrev_b32 v8, 2, v3")
    a("v_and_b32 v4, 3, v3")
    a("v_bfe_u32 v5, v3, 4, 2")
    a("v_xor_b32 v4, v4, v5")
    a("v_mul_u32_u24 v8, 896, v8")
    a("v_lshl_add_u32 v8, v4, 4, v8")
    a("v_lshrrev_b32 v9, 4, v3")
    a("v_and_b32 v5, 15, v3")
    a("v_lshlrev_b32 v6, 2, v9")
    a("v_xor_b32 v5, v5, v6")
    a("v_mul_u32_u24 v9, 3584, v9")
    a("v_lshl_add_u32 v9, v5, 4, v9")
    a("s_lshl_b32 s8, s12, 2")
    a("s_add_u32 s8, s8, s7")
    a("s_mul_i32 s8, s8, 28672")
    a("s_mul_i32 s9, s7, 28672")
    a("s_lshl_b32 s5, s13, 8")
    a("s_add_u32 s9, s9, s5")
    a("s_lshl_b32 s10, s7, 11")
    def dma(c):
        buf = (c % NB) * 8192
        a(f"s_add_u32 m0, s10, {buf}")
        a("s_add_u32 s5, s8, 14336")
        a(f"buffer_load_dwordx4 v8, s[48:51], s8 offen lds")
        a(f"s_add_u32 m0, s10, {buf+WB}")
        a("s_add_u32 s6, s9, 14336")
        a(f"buffer_load_dwordx4 v9, s[52:55], s9 offen lds")
        a(f"s_add_u32 m0, s10, {buf+1024}")
        a("s_add_u32 s8, s8, 64")
        a(f"buffer_load_dwordx4 v8, s[48:51], s5 offen lds")
        a(f"s_add_u32 m0, s10, {buf+WB+1024}")
        a("s_add_u32 s9, s9, 114688")
        a(f"buffer_load_dwordx4 v9, s[52:55], s6 offen lds")
        vm.issue(("c", c), 4)
    for c in range(4): dma(c)
    if TOUCH1:
        a("v_add_u32 v10, -256, v0")
        a("s_mul_i32 s5, s14, 224")
        a("v_add_u32 v5, s5, v10")
        a("s_mov_b32 s6, 0x12492493")
        a("v_mul_hi_u32 v6, v5, s6")
        a("v_mul_u32_u24 v7, 14, v6")
        a("v_sub_u32 v7, v5, v7")
        a("v_mul_u32_u24 v6, 3584, v6")
        a("v_lshl_add_u32 v6, v7, 7, v6")
        a("s_and_b32 s6, s3, 1")
        a("s_mul_i32 s6, s6, 1792")
        a("v_cmp_gt_u32 vcc, 224, v10")
        a("v_mov_b32 v7, 0x7ffffff0")
        a("v_cndmask_b32 v6, v7, v6, vcc")
        a("buffer_load_dword v11, v6, s[52:55], s6 offen")
        a("s_bfe_u32 s5, s3, 0x20001")
        a("s_mul_i32 s5, s5, 458752")
        a("s_lshl_b32 s6, s14, 14")
        a("s_add_u32 s5, s5, s6")
        a("v_lshlrev_b32 v5, 7, v10")
        a("v_cmp_gt_u32 vcc, 128, v10")
        a("v_mov_b32 v7, 0x7ffffff0")
        a("v_cndmask_b32 v6, v7, v5, vcc")
        a("buffer_load_dword v12, v6, s[48:51], s5 offen")
        vm.issue("touch", 2)
    srd(a, 60, 44, 16384, WS_ST)
    srd(a, 64, 42, 256)
    a("s_cmp_eq_u32 s7, 0")
    a("s_cselect_b32 s5, 0, 0x7ffffff0")
    a("v_mov_b32 v13, s5")
    a("s_lshl_b32 s72, s12, 2")
    a(f"s_waitcnt vmcnt({vm.wait_for(('c', 0))})")
    a("s_barrier")
    for c in range(NCH - 1):
        a(f"s_waitcnt vmcnt({vm.wait_for(('c', c + 1))})")
        a("s_barrier")
        if c + 4 < NCH: dma(c + 4)
        if c == 8:
            a(f"buffer_load_dword v14, v13, s[64:67], s72 offen {SC}")
            vm.issue("poll")
        if c == 11:
            a(f"s_waitcnt vmcnt({vm.wait_for('poll')})")
            labs = a.newlabel("g1sk")
            a("s_cmp_eq_u32 s7, 0")
            a(f"s_cbranch_scc0 {labs}")
            spin_wait(a, 14, 13, 64, "s72", 2)
            a.label(labs)
            a("s_lshl_b32 s5, s12, 10")
            a("v_lshlrev_b32 v14, 4, v3")
            a("v_add_u32 v14, v13, v14")
            a(f"buffer_load_dwordx4 v[16:19], v14, s[60:63], s5 offen {SC}")
            vm.issue("stats")
    lab_end = a.newlabel("g1ldend")
    a("s_cmp_eq_u32 s7, 0")
    a(f"s_cbranch_scc0 {lab_end}")
    a("s_waitcnt vmcnt(0)")
    a(f"ds_write_b128 v14, v[16:19] offset:{WL+1024}")
    a("s_waitcnt lgkmcnt(0)")
    a("s_barrier")
    a.label(lab_end)
    a("s_endpgm")
    a.label("L_g1_compute")
    a("s_setprio 1")
    srd(a, 56, 44, SZ_H, WS_H)
    a("s_and_b32 s15, s7, 1")
    a("s_lshr_b32 s11, s7, 1")
    a("v_and_b32 v4, 31, v3")
    a("v_lshrrev_b32 v6, 5, v3")
    a("v_bfe_u32 v7, v3, 2, 2")
    a("v_xor_b32 v7, v7, v6")
    a("v_lshlrev_b32 v4, 6, v4")
    a("v_lshl_add_u32 v4, v7, 4, v4")
    a("s_lshl_b32 s5, s11, 12")
    a("v_add_u32 v4, s5, v4")
    a("v_xor_b32 v5, 32, v4")
    a("v_bfe_u32 v7, v3, 2, 2")
    a("v_lshl_add_u32 v8, v6, 3, v7")
    a("v_lshlrev_b32 v8, 8, v8")
    a("v_bfe_u32 v9, v3, 4, 1")
    a("v_lshl_add_u32 v8, v9, 5, v8")
    a("v_and_b32 v9, 3, v3")
    a("v_lshl_add_u32 v8, v9, 3, v8")
    a(f"v_add_u32 v8, {WB}, v8")
    a("s_lshl_b32 s5, s15, 1")
    a("s_add_u32 s68, s5, s11")
    a("s_xor_b32 s69, s68, 1")
    a("v_xor_b32 v9, s69, v7")
    a("v_xor_b32 v6, s68, v7")
    a("v_lshl_add_u32 v7, v9, 6, v8")
    a("v_lshl_add_u32 v6, v6, 6, v8")
    SEL = 8; WACC = 12; ACC = 64; SETS = [16, 32, 48]
    a("v_and_b32 v2, 31, v3")
    a("v_cmp_eq_u32 vcc, 0, v2")
    a("v_cmp_eq_u32 s[70:71], 17, v2")
    a("s_or_b64 vcc, vcc, s[70:71]")
    a("v_mov_b32 v2, 0x3f803f80")
    a(f"v_cndmask_b32 v{SEL}, 0, v2, vcc")
    for i in range(1, 4): a(f"v_mov_b32 v{SEL+i}, v{SEL}")
    for i in range(4): a(f"v_mov_b32 v{WACC+i}, 0")
    for i in range(64): a(f"v_mov_b32 v{ACC+i}, 0")
    def reads(c, st, S):
        if NOREAD: return
        o = (c % NB) * 8192
        vb = 4 if st == 0 else 5
        a(f"ds_read_b64_tr_b16 v[{S}:{S+1}], v6 offset:{o+st*4096}")
        a(f"ds_read_b64_tr_b16 v[{S+2}:{S+3}], v6 offset:{o+st*4096+1024}")
        a(f"ds_read_b128 v[{S+8}:{S+11}], v{vb} offset:{o}")
        a(f"ds_read_b128 v[{S+12}:{S+15}], v{vb} offset:{o+2048}")
        a(f"ds_read_b64_tr_b16 v[{S+4}:{S+5}], v7 offset:{o+st*4096}")
        a(f"ds_read_b64_tr_b16 v[{S+6}:{S+7}], v7 offset:{o+st*4096+1024}")
    def mfmas(S):
        if NOMFMA: return
        for aa in range(2):
            for b in range(2):
                d = ACC + 16*(2*aa+b)
                a(f"v_mfma_f32_32x32x16_bf16 v[{d}:{d+15}], v[{S+4*aa}:{S+4*aa+3}], v[{S+8+4*b}:{S+8+4*b+3}], v[{d}:{d+15}]")
        a(f"v_mfma_f32_16x16x32_bf16 v[{WACC}:{WACC+3}], v[{SEL}:{SEL+3}], v[{S}:{S+3}], v[{WACC}:{WACC+3}]")
    a("s_barrier")
    stamp(a, 1)
    reads(0, 0, SETS[0]); reads(0, 1, SETS[1])
    for c in range(NCH):
        if c < NCH - 1: a("s_barrier")
        if FINE: stamp(a, 8 + c)
        nxt = c + 1 < NCH
        for st in range(2):
            s_ = 2*c + st
            if nxt: reads(c + 1, st, SETS[(s_ + 2) % 3])
            newer = 12 if nxt else (6 if st == 0 else 0)
            a(f"s_waitcnt lgkmcnt({newer})")
            mfmas(SETS[s_ % 3])
    stamp(a, 2)
    a("v_and_b32 v3, 63, v0")
    a("s_lshl_b32 s5, s68, 7")
    a("v_and_b32 v2, 15, v3")
    a("v_lshlrev_b32 v2, 2, v2")
    a("v_add_u32 v2, s5, v2")
    a("s_mov_b64 s[70:71], exec")
    a("s_mov_b64 exec, 0xffff")
    a(f"ds_write_b32 v2, v{WACC} offset:{WL}")
    a(f"ds_write_b32 v2, v{WACC+1} offset:{WL+64}")
    a("s_mov_b64 exec, s[70:71]")
    a("s_waitcnt lgkmcnt(0)")
    a("s_barrier")
    WR = 16; ST = 48
    a("v_lshrrev_b32 v2, 5, v3")
    a("v_lshlrev_b32 v2, 4, v2")
    a("s_lshl_b32 s5, s68, 7")
    a("v_add_u32 v4, s5, v2")
    a("s_lshl_b32 s5, s69, 7")
    a("v_add_u32 v5, s5, v2")
    a("v_and_b32 v2, 31, v3")
    a("v_lshlrev_b32 v2, 3, v2")
    a("s_lshl_b32 s5, s11, 9")
    a("v_add_u32 v2, s5, v2")
    a(f"ds_read_b64 v[{ST}:{ST+1}], v2 offset:{WL+1024}")
    a(f"ds_read_b64 v[{ST+2}:{ST+3}], v2 offset:{WL+1024+256}")
    for aa in range(2):
        for q in range(4):
            a(f"ds_read_b128 v[{WR+16*aa+4*q}:{WR+16*aa+4*q+3}], v{4+aa} offset:{WL+32*q}")
    a("s_lshl_b32 s4, s12, 2")
    a("s_lshl_b32 s5, s11, 1")
    a("s_add_u32 s4, s4, s5")
    a("s_mul_i32 s4, s4, 112")
    a("s_lshl_b32 s5, s13, 3")
    a("s_add_u32 s4, s4, s5")
    a("s_lshl_b32 s5, s68, 1")
    a("s_add_u32 s74, s4, s5")
    a("s_lshl_b32 s74, s74, 10")
    a("s_lshl_b32 s5, s69, 1")
    a("s_add_u32 s75, s4, s5")
    a("s_lshl_b32 s75, s75, 10")
    a("v_lshlrev_b32 v3, 4, v3")
    a("s_waitcnt lgkmcnt(8)")
    a(f"v_mul_f32 v{ST}, v{ST}, v{ST+1}")
    a(f"v_mul_f32 v{ST+2}, v{ST+2}, v{ST+3}")
    a("s_waitcnt lgkmcnt(0)")
    TT = 52
    for aa in range(2):
        for b in range(2):
            d = ACC + 16*(2*aa+b); w = WR + 16*aa
            for k in range(8):
                t = TT + 2*(k % 4)
                a(f"v_pk_mul_f32 v[{t}:{t+1}], v[{w+2*k}:{w+2*k+1}], v[{ST+2*b}:{ST+2*b+1}] op_sel_hi:[1,0]")
                a(f"v_pk_fma_f32 v[{d+2*k}:{d+2*k+1}], v[{d+2*k}:{d+2*k+1}], v[{ST+2*b}:{ST+2*b+1}], v[{t}:{t+1}] op_sel:[0,1,0] op_sel_hi:[1,1,1] neg_lo:[0,0,1] neg_hi:[0,0,1]")
            for k in range(8):
                a(f"v_cvt_pk_bf16_f32 v{d+k}, v{d+2*k}, v{d+2*k+1}")
                a(f"v_pk_max_i16 v{d+k}, v{d+k}, 0")
            a(f"s_add_u32 s5, s{74+aa}, {b*112*1024}")
            a(f"buffer_store_dwordx4 v[{d}:{d+3}], v3, s[56:59], s5 offen {SC}")
            a(f"buffer_store_dwordx4 v[{d+4}:{d+7}], v3, s[56:59], s5 offen offset:1024 {SC}")

def body_ln(a):
    X = 8; F = 40
    srd(a, 48, 16, SZ_X)
    srd(a, 56, 44, SZ_X, WS_XNT)
    srd(a, 60, 44, 16384, WS_ST)
    srd(a, 64, 42, 256)
    labz = a.newlabel("lnz")
    a("s_cmp_eq_u32 s3, 0")
    a(f"s_cbranch_scc0 {labz}")
    srd(a, 68, 44, 8192, WS_FLAG)
    a("v_lshlrev_b32 v1, 7, v0")
    a("v_mov_b32 v2, 0")
    a(f"buffer_store_dword v2, v1, s[68:71], 0 offen {SC}")
    a.label(labz)
    a("v_lshrrev_b32 v1, 3, v0")
    a("v_and_b32 v2, 7, v0")
    a("s_mul_i32 s4, s3, 57344")
    a("v_mul_u32_u24 v3, 896, v1")
    a("v_lshl_add_u32 v3, v2, 4, v3")
    for j in range(7):
        a(f"buffer_load_dwordx4 v[{X+4*j}:{X+4*j+3}], v3, s[48:51], s4 offen offset:{128*j}")
    a("v_mul_u32_u24 v5, 912, v1")
    a("v_lshl_add_u32 v5, v2, 4, v5")
    for j in range(7):
        a(f"s_waitcnt vmcnt({6-j})")
        if j == 6: stamp(a, 1)
        for k in range(4):
            unpack(a, F+8*j+2*k, F+8*j+2*k+1, X+4*j+k)
    a(f"v_add_f32 v6, v{F}, v{F+1}")
    a(f"v_add_f32 v7, v{F+2}, v{F+3}")
    a(f"v_add_f32 v96, v{F+4}, v{F+5}")
    a(f"v_add_f32 v97, v{F+6}, v{F+7}")
    accs = [6, 7, 96, 97]
    for i in range(8, 56):
        r = accs[i % 4]
        a(f"v_add_f32 v{r}, v{r}, v{F+i}")
    a("v_add_f32 v6, v6, v7")
    a("v_add_f32 v96, v96, v97")
    a("v_add_f32 v6, v6, v96")
    def red8(r):
        a(f"v_add_f32_dpp v{r}, v{r}, v{r} quad_perm:[1,0,3,2] row_mask:0xf bank_mask:0xf")
        a(f"v_add_f32_dpp v{r}, v{r}, v{r} quad_perm:[2,3,0,1] row_mask:0xf bank_mask:0xf")
        a(f"v_add_f32_dpp v{r}, v{r}, v{r} row_half_mirror row_mask:0xf bank_mask:0xf")
    red8(6)
    a(f"s_mov_b32 s5, {f32bits(1.0/448):#x}")
    a("v_mul_f32 v6, s5, v6")
    bf_round(a, 98, 6)
    accs = [7, 96, 97, 99]
    for i in range(4): a(f"v_mov_b32 v{accs[i]}, 0")
    for i in range(56):
        t = 100 + (i % 4)
        a(f"v_sub_f32 v{t}, v{F+i}, v6")
        a(f"v_fmac_f32 v{accs[i%4]}, v{t}, v{t}")
    a("v_add_f32 v7, v7, v96")
    a("v_add_f32 v97, v97, v99")
    a("v_add_f32 v7, v7, v97")
    red8(7)
    a("v_mul_f32 v7, s5, v7")
    bf_round(a, 7, 7)
    a(f"v_add_f32 v7, {f32bits(1e-5):#x}, v7")
    bf_round(a, 7, 7)
    a("v_sqrt_f32 v7, v7")
    bf_round(a, 99, 7)
    a("v_rcp_f32 v99, v99")
    a("s_lshl_b32 s6, s3, 9")
    a("v_lshlrev_b32 v100, 3, v1")
    a(f"buffer_store_dwordx2 v[98:99], v100, s[60:63], s6 offen {SC}")
    for j in range(7):
        for k in range(4):
            lo = F+8*j+2*k; hi = lo+1; d = X+4*j+k
            a(f"v_sub_f32 v{lo}, v{lo}, v98")
            a(f"v_sub_f32 v{hi}, v{hi}, v98")
            a(f"v_cvt_pk_bf16_f32 v{d}, v{lo}, v{hi}")
        if j == 1:
            a("s_waitcnt vmcnt(0)")
            a("s_barrier")
            lab = a.newlabel("lnpub")
            a("v_readfirstlane_b32 s7, v0")
            a("s_cmp_lt_u32 s7, 64")
            a(f"s_cbranch_scc0 {lab}")
            a("s_lshr_b32 s6, s3, 1")
            a("s_lshl_b32 s6, s6, 2")
            a("v_mov_b32 v100, 0")
            a("v_mov_b32 v101, 1")
            a("s_mov_b64 s[70:71], exec")
            a("s_mov_b64 exec, 1")
            a("buffer_atomic_add v101, v100, s[64:67], s6 offen")
            a("s_mov_b64 exec, s[70:71]")
            a.label(lab)
            stamp(a, 2)
        for k in range(4):
            lo = F+8*j+2*k; hi = lo+1; d = X+4*j+k
            unpack(a, lo, hi, d)
            a(f"v_mul_f32 v{lo}, v{lo}, v99")
            a(f"v_mul_f32 v{hi}, v{hi}, v99")
            a(f"v_cvt_pk_bf16_f32 v{d}, v{lo}, v{hi}")
        a(f"ds_write_b128 v5, v[{X+4*j}:{X+4*j+3}] offset:{128*j}")
    a("v_and_b32 v1, 63, v0")
    a("v_lshrrev_b32 v2, 4, v1")
    a("v_bfe_u32 v3, v1, 2, 2")
    a("v_and_b32 v6, 3, v1")
    a("v_bfe_u32 v8, v0, 6, 1")
    a("v_lshl_add_u32 v7, v2, 3, v3")
    a("v_lshl_add_u32 v7, v8, 5, v7")
    a("v_mul_u32_u24 v7, 912, v7")
    a("v_lshl_add_u32 v7, v6, 3, v7")
    a("v_lshrrev_b32 v6, 7, v0")
    a("v_lshl_add_u32 v7, v6, 5, v7")
    a("v_and_b32 v3, 15, v1")
    a("v_lshl_add_u32 v3, v6, 4, v3")
    a("v_lshlrev_b32 v3, 12, v3")
    a("v_lshl_add_u32 v3, v2, 4, v3")
    a("v_lshl_add_u32 v3, v8, 6, v3")
    a("s_lshl_b32 s6, s3, 7")
    a("s_waitcnt lgkmcnt(0)")
    a("s_barrier")
    R = 40
    for t in range(7):
        r = R + 4*t
        a(f"ds_read_b64_tr_b16 v[{r}:{r+1}], v7 offset:{128*t}")
        a(f"ds_read_b64_tr_b16 v[{r+2}:{r+3}], v7 offset:{128*t+4*912}")
    for t in range(7):
        r = R + 4*t
        a(f"s_waitcnt lgkmcnt({2*(6-t)})")
        a(f"buffer_store_dwordx4 v[{r}:{r+3}], v3, s[56:59], s6 offen {SC}")
        if t < 6: a(f"v_add_u32 v3, {64*4096}, v3")

KG8_W = 32 * KG_RS
def body_kg(a):
    LOG2E = 1.4426950408889634
    SZP = 448*256*2
    P = 8
    for i, ptr in enumerate([18, 20, 22, 24, 26, 28]):
        srd(a, 48 + 4*i, ptr, SZP)
    a("s_lshl_b32 s4, s3, 10")
    a("v_lshlrev_b32 v3, 1, v0")
    for i in range(6):
        a(f"buffer_load_ushort v{P+i}, v3, s[{48+4*i}:{51+4*i}], s4 offen")
    a("s_lshl_b32 s5, s3, 2")
    a("s_load_dword s8, s[30:31], s5")
    W = 124
    srd(a, 72, 38, SZ_WF)
    a("v_lshrrev_b32 v1, 5, v0")
    a("v_and_b32 v2, 31, v0")
    a("s_lshr_b32 s4, s3, 1")
    a("s_mul_i32 s4, s4, 14336")
    a("s_and_b32 s5, s3, 1")
    a("s_mul_i32 s5, s5, 448")
    a("s_add_u32 s4, s4, s5")
    a("v_mul_u32_u24 v4, 896, v1")
    a("v_lshl_add_u32 v4, v2, 4, v4")
    a(f"buffer_load_dwordx4 v[{W}:{W+3}], v4, s[72:75], s4 offen")
    a("v_lshrrev_b32 v1, 6, v0")
    a("v_and_b32 v2, 63, v0")
    a(f"v_mul_u32_u24 v6, {KG8_W}, v1")
    a("v_lshl_add_u32 v7, v2, 2, v6")
    a("v_and_b32 v3, 31, v2")
    a(f"v_mul_u32_u24 v3, {KG_RS}, v3")
    a("v_add_u32 v6, v6, v3")
    a("v_lshrrev_b32 v3, 5, v2")
    a("v_lshl_add_u32 v6, v3, 4, v6")
    BF = 16; ACC = 48; CH = 64; T = 108
    for i in range(16): a(f"v_mov_b32 v{ACC+i}, 0")
    a("s_waitcnt lgkmcnt(0)")
    a("v_lshrrev_b32 v4, 8, v0")
    a("v_mov_b32 v5, s8")
    a("v_lshlrev_b32 v3, 16, v5")
    a("v_and_b32 v5, 0xffff0000, v5")
    a("v_cmp_eq_u32 vcc, 0, v4")
    a("v_cndmask_b32 v5, v5, v3, vcc")
    a(f"v_mul_f32 v5, {f32bits(LOG2E):#x}, v5")
    a("v_exp_f32 v5, v5")
    bf_round(a, 5, 5)
    a("s_waitcnt vmcnt(1)")
    stamp(a, 1)
    for i in range(6): a(f"v_lshlrev_b32 v{P+i}, 16, v{P+i}")
    a(f"v_mul_f32 v14, v5, v{P}")
    a(f"v_mul_f32 v15, v5, v{P+1}")
    a(f"v_mul_f32 v14, {f32bits(LOG2E):#x}, v14")
    a("v_mul_f32 v15, 0.15915494, v15")
    a(f"v_mul_f32 v{P+2}, v5, v{P+2}")
    a(f"v_mul_f32 v{P+3}, v5, v{P+3}")
    regs = {}; nxt = [CH]
    def alloc(name):
        r = nxt[0]; nxt[0] += 2
        assert nxt[0] <= T, name
        regs[name] = (r, r + 1); return regs[name]
    def cmul(dst, x, w):
        (dr, di), (xr, xi), (wr, wi) = dst, x, w
        return [f"v_mul_f32 v{dr}, v{xi}, v{wi}", f"v_mul_f32 v{di}, v{xi}, v{wr}",
                f"v_fma_f32 v{dr}, v{xr}, v{wr}, -v{dr}", f"v_fma_f32 v{di}, v{xr}, v{wi}, v{di}"]
    tcount = [0, 0, 0, 0]; cur = [0]
    def emitrow(row, z, neg):
        t = T + 2*cur[0] + (tcount[cur[0]] % 2); tcount[cur[0]] += 1
        n = "-" if neg else ""
        return [f"v_cvt_pk_bf16_f32 v{t}, v{z[0]}, {n}v{z[1]}", f"ds_write_b32 v7, v{t} offset:{row*KG_RS}"]
    def direct(dst, tmul, tmp):
        (dr, di) = dst
        return [f"v_mul_f32 v{tmp}, {f32bits(float(tmul)):#x}, v14", f"v_mul_f32 v{tmp+1}, {f32bits(float(tmul)):#x}, v15",
                f"v_exp_f32 v{tmp}, v{tmp}", f"v_fract_f32 v{tmp+1}, v{tmp+1}",
                f"v_cos_f32 v{dr}, v{tmp+1}", f"v_sin_f32 v{di}, v{tmp+1}",
                f"v_mul_f32 v{dr}, v{dr}, v{tmp}", f"v_mul_f32 v{di}, v{di}, v{tmp}"]
    X0 = alloc("X0"); w1 = alloc("w1"); w8 = alloc("w8"); w256 = alloc("w256"); w512 = alloc("w512"); w1024 = alloc("w1024")
    w16 = alloc("w16"); ya = [alloc("ya0"), alloc("ya1")]; yb = [alloc("yb0"), alloc("yb1")]
    c0 = cmul(X0, (P+4, P+5), (P+2, P+3))
    for ins in interleave([direct(w8, 8, 86), direct(w16, 16, 88), direct(w1, 1, 90), direct(w256, 256, 92), c0]): a(ins)
    cur[0] = 2
    chY0 = [f"v_mov_b32 v{T+8}, 0x3f80", f"ds_write_b32 v7, v{T+8} offset:0"] + emitrow(2, w16, False)
    prev = w16
    for k, j in enumerate(range(4, 32, 2)):
        d = ya[k % 2]; chY0 += cmul(d, prev, w16) + emitrow(j, d, False); prev = d
    cur[0] = 3
    chY1 = emitrow(1, w8, False); prev = w8
    for k, j in enumerate(range(3, 32, 2)):
        d = yb[k % 2]; chY1 += cmul(d, prev, w16) + emitrow(j, d, False); prev = d
    nxt_save = nxt[0]
    X = {0: X0}
    for h in [8, 256, 264, 512, 520, 2, 4]: X[h] = alloc(f"X{h}")
    chP = cmul(w512, w256, w256) + cmul(X[8], X0, w8) + cmul(w1024, w512, w512) + cmul(X[256], X0, w256) + cmul(X[264], X[8], w256) + cmul(X[512], X0, w512) + cmul(X[520], X[8], w512)
    for ins in interleave([chY0, chY1, chP]): a(ins)
    a("s_waitcnt lgkmcnt(0)")
    for ks in range(8):
        a(f"ds_read_b128 v[{BF+4*ks}:{BF+4*ks+3}], v6 offset:{ks*32}")
    t1, t2, t3, t4, t5 = w16, ya[0], ya[1], yb[0], yb[1]
    for h in [768, 776, 6]: X[h] = alloc(f"X{h}")
    cur[0] = 0
    chA = emitrow(KG_H[0], X0, True)
    chA += cmul(t1, X0, w1) + emitrow(KG_H[1], t1, True)
    chA += cmul(X[2], t1, w1) + emitrow(KG_H[2], X[2], True)
    chA += cmul(t1, X[2], w1) + emitrow(KG_H[3], t1, True)
    chA += cmul(X[4], t1, w1) + emitrow(KG_H[4], X[4], True)
    chA += cmul(t1, X[4], w1) + emitrow(KG_H[5], t1, True)
    chA += cmul(X[6], t1, w1) + emitrow(KG_H[6], X[6], True)
    chA += cmul(t1, X[6], w1) + emitrow(KG_H[7], t1, True)
    chA += cmul(t1, X[2], w256) + emitrow(KG_H[258], t1, True)
    chA += cmul(t1, X[6], w256) + emitrow(KG_H[262], t1, True)
    cur[0] = 1
    chB = emitrow(KG_H[256], X[256], True) + emitrow(KG_H[264], X[264], True) + emitrow(KG_H[512], X[512], True) + emitrow(KG_H[520], X[520], True)
    chB += cmul(X[768], X[256], w512) + emitrow(KG_H[768], X[768], True)
    chB += cmul(X[776], X[264], w512) + emitrow(KG_H[776], X[776], True)
    for i, (h, src) in enumerate([(1024, 0), (1032, 8), (1280, 256), (1288, 264)]):
        t = t2 if i % 2 == 0 else t3
        chB += cmul(t, X[src], w1024) + emitrow(KG_H[h], t, True)
    cur[0] = 2
    chC = []
    for i, (h, src) in enumerate([(1536, 512), (1544, 520), (1792, 768), (1800, 776)]):
        t = t4 if i % 2 == 0 else t5
        chC.append((h, src, t))
    a("s_waitcnt lgkmcnt(0)")
    for ins in interleave([chA, chB]): a(ins)
    chC2 = []
    for (h, src, t) in chC: chC2 += cmul(t, X[src], w1024) + emitrow(KG_H[h], t, True)
    cur[0] = 3
    chD = cmul(t2, X[4], w256) + emitrow(KG_H[260], t2, True) + cmul(t3, t2, w512) + emitrow(KG_H[772], t3, True)
    cur[0] = 0
    chE = cmul(t1, X[4], w512) + emitrow(KG_H[516], t1, True)
    for ins in interleave([chC2, chD, chE]): a(ins)
    AF = CH
    a("s_waitcnt lgkmcnt(0)")
    for ks in range(8):
        a(f"ds_read_b128 v[{AF+4*ks}:{AF+4*ks+3}], v6 offset:{ks*32}")
    for ks in range(8):
        a(f"s_waitcnt lgkmcnt({7-ks})")
        a(f"v_mfma_f32_32x32x16_bf16 v[{ACC}:{ACC+15}], v[{AF+4*ks}:{AF+4*ks+3}], v[{BF+4*ks}:{BF+4*ks+3}], v[{ACC}:{ACC+15}]")
    stamp(a, 2)
    srd(a, 48, 44, SZ_X, WS_KREV)
    srd(a, 52, 44, SZ_WF, WS_W2F)
    a("v_readfirstlane_b32 s7, v1")
    a("s_waitcnt vmcnt(0)")
    a("s_barrier")
    a("v_lshrrev_b32 v3, 5, v0")
    a("v_and_b32 v4, 31, v0")
    a("v_mul_u32_u24 v3, 528, v3")
    a("v_lshl_add_u32 v3, v4, 4, v3")
    a(f"ds_write_b128 v3, v[{W}:{W+3}] offset:32768")
    a("s_and_b32 s9, s7, 3")
    a("s_lshr_b32 s10, s7, 2")
    a("s_mul_i32 s11, s10, 12288")
    a("v_lshlrev_b32 v4, 4, v2")
    a("v_add_u32 v4, s11, v4")
    lab1 = a.newlabel("kg_nw"); lab2 = a.newlabel("kg_w2"); lab3 = a.newlabel("kg_end")
    a("s_cmp_eq_u32 s9, 0")
    a(f"s_cbranch_scc1 {lab1}")
    a("s_sub_u32 s5, s9, 1")
    a("s_lshl_b32 s5, s5, 12")
    a("v_add_u32 v5, s5, v4")
    for q in range(4):
        a(f"ds_write_b128 v5, v[{ACC+4*q}:{ACC+4*q+3}] offset:{1024*q}")
    a.label(lab1)
    a("s_waitcnt lgkmcnt(0)")
    a("s_barrier")
    a("s_cmp_eq_u32 s7, 7")
    a(f"s_cbranch_scc1 {lab2}")
    a("v_lshrrev_b32 v5, 5, v2")
    a("v_bfe_u32 v3, v2, 2, 2")
    a("v_lshl_add_u32 v5, v5, 2, v3")
    a("v_mul_u32_u24 v5, 528, v5")
    a("v_bfe_u32 v3, v2, 4, 1")
    a("v_lshl_add_u32 v5, v3, 5, v5")
    a("v_and_b32 v3, 3, v2")
    a("v_lshl_add_u32 v5, v3, 3, v5")
    a("s_lshl_b32 s5, s7, 6")
    a("v_add_u32 v5, s5, v5")
    a(f"ds_read_b64_tr_b16 v[{W}:{W+1}], v5 offset:32768")
    a(f"ds_read_b64_tr_b16 v[{W+2}:{W+3}], v5 offset:{32768+8*528}")
    a("s_and_b32 s5, s3, 1")
    a("s_mul_i32 s5, s5, 7")
    a("s_add_u32 s5, s5, s7")
    a("s_mul_i32 s5, s5, 112")
    a("s_lshr_b32 s6, s3, 1")
    a("s_add_u32 s5, s5, s6")
    a("s_lshl_b32 s5, s5, 10")
    a("v_lshlrev_b32 v3, 4, v2")
    a("s_waitcnt lgkmcnt(0)")
    a(f"buffer_store_dwordx4 v[{W}:{W+3}], v3, s[52:55], s5 offen {SC}")
    a.label(lab2)
    a("s_cmp_eq_u32 s9, 0")
    a(f"s_cbranch_scc0 {lab3}")
    R = 64
    for j in range(3):
        for q in range(4):
            a(f"ds_read_b128 v[{R+16*j+4*q}:{R+16*j+4*q+3}], v4 offset:{4096*j+1024*q}")
    for j in range(3):
        a(f"s_waitcnt lgkmcnt({4*(2-j)})")
        for i in range(16): a(f"v_add_f32 v{ACC+i}, v{ACC+i}, v{R+16*j+i}")
    a("s_lshl_b32 s4, s3, 13")
    a("s_lshl_b32 s5, s10, 12")
    a("s_add_u32 s4, s4, s5")
    a("v_and_b32 v5, 31, v2")
    a("v_lshlrev_b32 v5, 4, v5")
    a("v_sub_u32 v6, 4080, v5")
    def pk(d, lo, hi): a(f"v_cvt_pk_bf16_f32 v{d}, v{ACC+lo}, v{ACC+hi}")
    def store(base, d):
        a(f"v_subrev_u32 v7, {2*base}, v6")
        a(f"buffer_store_dwordx4 v[{d}:{d+3}], v7, s[48:51], s4 offen {SC}")
    O = 64
    a("s_mov_b64 s[10:11], exec")
    a("s_mov_b32 exec_lo, -1")
    a("s_mov_b32 exec_hi, 0")
    pk(O, 7, 6); pk(O+1, 5, 4); pk(O+2, 3, 2); pk(O+3, 1, 0); store(0, O)
    pk(O+4, 12, 11); pk(O+5, 10, 10); pk(O+6, 10, 9); pk(O+7, 8, 8); store(256, O+4)
    a("s_mov_b32 exec_lo, 0")
    a("s_mov_b32 exec_hi, -1")
    for b in range(2):
        o = O + 8 + 4*b; r0 = 3*b
        pk(o, r0+2, r0+2); pk(o+1, r0+1, r0+1); pk(o+2, r0+1, r0); pk(o+3, r0, r0); store(512 + 256*b, o)
    a("v_and_b32 v5, 1, v2")
    a("v_cmp_eq_u32 vcc, 0, v5")
    for b in range(4):
        o = O + 16 + 4*b; r0 = 6 + 2*b
        a(f"v_cndmask_b32 v{O+40}, v{ACC+r0+1}, v{ACC+r0}, vcc")
        pk(o, r0+1, r0+1)
        a(f"v_cvt_pk_bf16_f32 v{o+1}, v{ACC+r0+1}, v{O+40}")
        pk(o+2, r0, r0); pk(o+3, r0, r0); store(1024 + 256*b, o)
    a("s_mov_b64 exec, s[10:11]")
    a.label(lab3)

def build_k1():
    kern.PROF_V = 127 if False else 123
    a = Asm()
    load_ptrs(a)
    a("s_cmp_ge_u32 s2, 480")
    a("s_cbranch_scc1 L_k1_end")
    a("s_waitcnt lgkmcnt(0)")
    prof2_start(a)
    a("s_cmp_ge_u32 s2, 256")
    a(f"s_cbranch_scc1 {'L_k1_kg' if G1FIRST else 'L_k1_g1'}")
    a("s_cmp_lt_u32 s2, 224")
    a(f"s_cbranch_scc1 {'L_k1_g1' if G1FIRST else 'L_k1_kg'}")
    a("s_sub_u32 s3, s2, 224")
    if "ln" not in ROLES: a("s_endpgm")
    kern.PROF_V = 123; stamp(a, 0)
    body_ln(a)
    if kern.PROF: a("s_waitcnt vmcnt(0)")
    stamp(a, 3); prof_flush(a, 0, 4); prof2_end(a, 0, 0)
    a("s_endpgm")
    a.label("L_k1_kg")
    a("s_sub_u32 s3, s2, 256" if G1FIRST else "s_mov_b32 s3, s2")
    if "kg" not in ROLES: a("s_endpgm")
    kern.PROF_V = 123; stamp(a, 0)
    body_kg(a)
    if kern.PROF: a("s_waitcnt vmcnt(0)")
    stamp(a, 3); prof_flush(a, 0, 4); prof2_end(a, 0, 0)
    a("s_endpgm")
    a.label("L_k1_g1")
    a("s_mov_b32 s3, s2" if G1FIRST else "s_sub_u32 s3, s2, 256")
    if "g1" not in ROLES: a("s_endpgm")
    kern.PROF_V = 1; stamp(a, 0)
    body_g1(a)
    if kern.PROF: a("s_waitcnt vmcnt(0)")
    stamp(a, 3); prof_flush(a, 0, 4); prof2_end(a, 0, 0)
    a.label("L_k1_end")
    a("s_endpgm")
    return a

def assemble(kernels, path):
    hdr = "; generated by dev/kern3.py (own generator)\n"
    for name, asm, vgpr, grid, lds, blk in kernels:
        hdr += f"; @launch kernel={name} grid=({grid},1,1) block=({blk},1,1) lds={lds}\n"
    hdr += '.amdgcn_target "amdgcn-amd-amdhsa--gfx950"\n'
    txt = ""; desc = ""
    for name, asm, vgpr, grid, lds, blk in kernels:
        t, d, n = kernel_text(name, asm, vgpr)
        txt += t; desc += d
        print(f"{name}: {len(t.splitlines())} lines, {n} hazard pads")
    open(path, "w").write(hdr + txt + desc)

def build(path):
    kern2.NOWAIT = NOWAIT; kern2.FINE = FINE; kern2.ROLES = ROLES
    assemble([("k1_kernel", build_k1(), 128, 480, 81920, 512), ("k2_kernel", kern2.build_k2(), 236, 480, 2*CV_CH, 256)], path)

if __name__ == "__main__":
    kern2.TOUCH2 = False
    kern.PROF = True; FINE = False
    build("rp.s")

    kern.PROF = False; FINE = False
    build("r.s")
    kern.PROF2 = True
    build("rq.s")
    kern.PROF2 = False
```

```python
from asmgen import Asm, kernel_text
import math

WS_H    = 0x000000
WS_W2F  = 0x700000
WS_W1F  = 0x900000
WS_XNF  = 0xB00000
WS_XNT  = 0xD00000
WS_KREV = 0xF00000
WS_AOUT = 0x1100000
SZ_H = 64*112*1024; SZ_WF = 1568*1024; SZ_X = 2048*448*2

def load_ptrs(a):
    a("""s_load_dwordx16 s[16:31], s[0:1], 0
    s_load_dwordx8 s[32:39], s[0:1], 64
    s_load_dwordx4 s[40:43], s[0:1], 96
    s_load_dwordx2 s[44:45], s[0:1], 112""")

def srd(a, dst, ptr, size, off=0):
    if off:
        a(f"s_add_u32 s{dst}, s{ptr}, {off:#x}")
        a(f"s_addc_u32 s{dst+1}, s{ptr+1}, 0")
    else:
        a(f"s_mov_b32 s{dst}, s{ptr}")
        a(f"s_mov_b32 s{dst+1}, s{ptr+1}")
    a(f"s_mov_b32 s{dst+2}, {size:#x}")
    a(f"s_mov_b32 s{dst+3}, 0x00020000")

XCDMAP = True
PERT = 0.0
HALFFOLD = False
WS_R = 0x1300000
PROF = False
WS_PROF = 0x2000000
PROF_V = 159
STAMPS = None
def stamp(a, i):
    if not PROF: return
    if STAMPS is not None and i not in STAMPS: return
    a("s_memrealtime s[84:85]")
    a("s_waitcnt lgkmcnt(0)")
    a(f"v_writelane_b32 v{PROF_V}, s84, {i}")
def prof_flush(a, kid, n, tid0=0):
    if not PROF: return
    lab = a.newlabel("pf")
    a("v_readfirstlane_b32 s4, v0")
    a(f"s_cmp_eq_u32 s4, {tid0}")
    a(f"s_cbranch_scc0 {lab}")
    a("s_mov_b64 exec, -1")
    srd(a, 76, 44, 0x100000, WS_PROF)
    a(f"s_add_u32 s4, s2, {kid*1024}")
    a("s_lshl_b32 s4, s4, 7")
    a("v_and_b32 v2, 31, v0")
    a("v_lshlrev_b32 v2, 2, v2")
    a("s_mov_b64 exec, 0xffffffff")
    a(f"buffer_store_dword v{PROF_V}, v2, s[76:79], s4 offen")
    a("s_waitcnt vmcnt(0)")
    a("s_mov_b64 exec, -1")
    a.label(lab)

PROF2 = False
NKER = 2
def prof2_end(a, kid, launch_idx):
    if not PROF2: return
    lab = a.newlabel("p2"); lab2 = a.newlabel("p2b")
    a("s_waitcnt vmcnt(0) lgkmcnt(0)")
    a("v_readfirstlane_b32 s4, v0")
    a("s_cmp_lt_u32 s4, 64")
    a(f"s_cbranch_scc0 {lab}")
    a("s_memrealtime s[90:91]")
    a("s_memtime s[88:89]")
    a(f"s_add_u32 s76, s42, {512*(NKER-1-launch_idx)}")
    a("s_addc_u32 s77, s43, 0")
    a("s_mov_b32 s78, 256")
    a("s_mov_b32 s79, 0x00020000")
    a("s_waitcnt lgkmcnt(0)")
    a("v_mov_b32 v1, 0")
    a("v_mov_b32 v2, s90")
    a("s_mov_b64 exec, 1")
    a(f"buffer_atomic_umax v2, v1, s[76:79], 0 offen offset:{8*kid+4}")
    a("s_cmp_eq_u32 s2, 0")
    a(f"s_cbranch_scc0 {lab2}")
    a("v_mov_b32 v2, s94")
    a(f"buffer_store_dword v2, v1, s[76:79], 0 offen offset:{8*kid}")
    a("s_sub_u32 s88, s88, s92")
    a("s_sub_u32 s90, s90, s94")
    a("v_mov_b32 v2, s88")
    a(f"buffer_store_dword v2, v1, s[76:79], 0 offen offset:{32+8*kid}")
    a("v_mov_b32 v3, s90")
    a(f"buffer_store_dword v3, v1, s[76:79], 0 offen offset:{36+8*kid}")
    a.label(lab2)
    a("s_waitcnt vmcnt(0)")
    a.label(lab)
def prof2_start(a):
    if not PROF2: return
    a("s_memrealtime s[94:95]")
    a("s_memtime s[92:93]")
    a("s_waitcnt lgkmcnt(0)")

def f32bits(x):
    import struct
    return struct.unpack("<I", struct.pack("<f", x))[0]

def bf_round(a, dst, src):
    a(f"v_cvt_pk_bf16_f32 v{dst}, v{src}, v{src}")
    a(f"v_lshlrev_b32 v{dst}, 16, v{dst}")

def unpack(a, lo, hi, src):
    a(f"v_lshlrev_b32 v{lo}, 16, v{src}")
    a(f"v_and_b32 v{hi}, 0xffff0000, v{src}")

def body_ln(a, sc=""):
    X = 8; F = 40
    srd(a, 48, 16, SZ_X)
    srd(a, 52, 44, SZ_X, WS_XNF)
    srd(a, 56, 44, SZ_X, WS_XNT)
    a("v_lshrrev_b32 v1, 3, v0")
    a("v_and_b32 v2, 7, v0")
    a("s_mul_i32 s4, s3, 28672")
    a("v_mul_u32_u24 v3, 896, v1")
    a("v_lshl_add_u32 v3, v2, 4, v3")
    for j in range(7):
        a(f"buffer_load_dwordx4 v[{X+4*j}:{X+4*j+3}], v3, s[48:51], s4 offen offset:{128*j}")
    a("v_lshrrev_b32 v4, 1, v2")
    a("v_lshlrev_b32 v4, 10, v4")
    a("v_and_b32 v5, 1, v2")
    a("v_lshl_add_u32 v4, v5, 9, v4")
    a("v_lshl_add_u32 v4, v1, 4, v4")
    a("v_mul_u32_u24 v5, 912, v1")
    a("v_lshl_add_u32 v5, v2, 4, v5")
    for j in range(7):
        a(f"s_waitcnt vmcnt({6-j})")
        if j == 6: stamp(a, 1)
        for k in range(4):
            unpack(a, F+8*j+2*k, F+8*j+2*k+1, X+4*j+k)
    a(f"v_add_f32 v6, v{F}, v{F+1}")
    a(f"v_add_f32 v7, v{F+2}, v{F+3}")
    a(f"v_add_f32 v96, v{F+4}, v{F+5}")
    a(f"v_add_f32 v97, v{F+6}, v{F+7}")
    accs = [6, 7, 96, 97]
    for i in range(8, 56):
        r = accs[i % 4]
        a(f"v_add_f32 v{r}, v{r}, v{F+i}")
    a("v_add_f32 v6, v6, v7")
    a("v_add_f32 v96, v96, v97")
    a("v_add_f32 v6, v6, v96")
    def red8(r):
        a(f"v_add_f32_dpp v{r}, v{r}, v{r} quad_perm:[1,0,3,2] row_mask:0xf bank_mask:0xf")
        a(f"v_add_f32_dpp v{r}, v{r}, v{r} quad_perm:[2,3,0,1] row_mask:0xf bank_mask:0xf")
        a(f"v_add_f32_dpp v{r}, v{r}, v{r} row_half_mirror row_mask:0xf bank_mask:0xf")
    red8(6)
    a(f"s_mov_b32 s5, {f32bits(1.0/448):#x}")
    a("v_mul_f32 v6, s5, v6")
    bf_round(a, 98, 6)
    for i in range(4):
        a(f"v_mov_b32 v{[7,96,97,99][i]}, 0")
    accs = [7, 96, 97, 99]
    for i in range(56):
        t = 100 + (i % 4)
        a(f"v_sub_f32 v{t}, v{F+i}, v6")
        a(f"v_fmac_f32 v{accs[i%4]}, v{t}, v{t}")
    a("v_add_f32 v7, v7, v96")
    a("v_add_f32 v97, v97, v99")
    a("v_add_f32 v7, v7, v97")
    red8(7)
    a("v_mul_f32 v7, s5, v7")
    bf_round(a, 7, 7)
    a(f"v_add_f32 v7, {f32bits(1e-5):#x}, v7")
    bf_round(a, 7, 7)
    a("v_sqrt_f32 v7, v7")
    bf_round(a, 7, 7)
    a("v_rcp_f32 v7, v7")
    if HALFFOLD:
        srd(a, 60, 44, 8192, WS_R)
        a("s_lshl_b32 s6, s3, 7")
        a("v_lshlrev_b32 v100, 2, v1")
        a("buffer_store_dword v7, v100, s[60:63], s6 offen")
    for j in range(7):
        for k in range(4):
            lo = F+8*j+2*k; hi = lo+1; d = X+4*j+k
            a(f"v_sub_f32 v{lo}, v{lo}, v98")
            a(f"v_sub_f32 v{hi}, v{hi}, v98")
            a(f"v_cvt_pk_bf16_f32 v{d}, v{lo}, v{hi}")
            if HALFFOLD and k == 3:
                a(f"s_add_u32 s6, s4, {4096*j}")
                a(f"buffer_store_dwordx4 v[{X+4*j}:{X+4*j+3}], v4, s[52:55], s6 offen {sc}")
                a("s_nop 4")
        for k in range(4):
            lo = F+8*j+2*k; hi = lo+1; d = X+4*j+k
            unpack(a, lo, hi, d)
            a(f"v_mul_f32 v{lo}, v{lo}, v7")
            a(f"v_mul_f32 v{hi}, v{hi}, v7")
            a(f"v_cvt_pk_bf16_f32 v{d}, v{lo}, v{hi}")
        if not HALFFOLD:
            a(f"s_add_u32 s6, s4, {4096*j}")
            a(f"buffer_store_dwordx4 v[{X+4*j}:{X+4*j+3}], v4, s[52:55], s6 offen {sc}")
        a(f"ds_write_b128 v5, v[{X+4*j}:{X+4*j+3}] offset:{128*j}")
    a("v_and_b32 v1, 63, v0")
    a("v_lshrrev_b32 v2, 4, v1")
    a("v_bfe_u32 v3, v1, 2, 2")
    a("v_and_b32 v6, 3, v1")
    a("v_lshl_add_u32 v7, v2, 3, v3")
    a("v_mul_u32_u24 v7, 912, v7")
    a("v_lshl_add_u32 v7, v6, 3, v7")
    a("v_lshrrev_b32 v6, 6, v0")
    a("v_lshl_add_u32 v7, v6, 5, v7")
    a("v_and_b32 v3, 15, v1")
    a("v_lshl_add_u32 v3, v6, 4, v3")
    a("v_lshlrev_b32 v3, 12, v3")
    a("v_lshl_add_u32 v3, v2, 4, v3")
    a("s_lshl_b32 s6, s3, 6")
    a("s_waitcnt lgkmcnt(0)")
    a("s_barrier")
    for t in range(7):
        r = X + 4*t
        a(f"ds_read_b64_tr_b16 v[{r}:{r+1}], v7 offset:{128*t}")
        a(f"ds_read_b64_tr_b16 v[{r+2}:{r+3}], v7 offset:{128*t+4*912}")
    for t in range(7):
        r = X + 4*t
        a(f"s_waitcnt lgkmcnt({2*(6-t)})")
        a(f"buffer_store_dwordx4 v[{r}:{r+3}], v3, s[56:59], s6 offen {sc}")
        if t < 6: a(f"v_add_u32 v3, {64*4096}, v3")
    if PROF: a("s_waitcnt vmcnt(0)")
    stamp(a, 4); prof_flush(a, 0, 5); prof2_end(a, 0, 0)
    a("s_endpgm")

def relayout_issue(a, W):
    srd(a, 48, 36, SZ_WF)
    srd(a, 52, 38, SZ_WF)
    a("v_lshrrev_b32 v1, 5, v0")
    a("v_and_b32 v2, 31, v0")
    a("s_lshr_b32 s4, s3, 3")
    a("s_mul_i32 s4, s4, 57344")
    a("s_and_b32 s5, s3, 7")
    a("s_mul_i32 s5, s5, 448")
    a("s_add_u32 s4, s4, s5")
    a("v_mul_u32_u24 v3, 3584, v1")
    a("v_lshl_add_u32 v3, v2, 4, v3")
    a(f"buffer_load_dwordx4 v[{W}:{W+3}], v3, s[48:51], s4 offen")
    a("s_add_u32 s4, s4, 28672")
    a(f"buffer_load_dwordx4 v[{W+4}:{W+7}], v3, s[48:51], s4 offen")
    a("s_lshr_b32 s4, s3, 1")
    a("s_mul_i32 s4, s4, 14336")
    a("s_and_b32 s5, s3, 1")
    a("s_mul_i32 s5, s5, 448")
    a("s_add_u32 s4, s4, s5")
    a("v_mul_u32_u24 v3, 896, v1")
    a("v_lshl_add_u32 v3, v2, 4, v3")
    a(f"buffer_load_dwordx4 v[{W+8}:{W+11}], v3, s[52:55], s4 offen")
    a("s_add_u32 s4, s4, 7168")
    a(f"buffer_load_dwordx4 v[{W+12}:{W+15}], v3, s[52:55], s4 offen")

def relayout_finish(a, W, ldsb, sc="", do_w1=True):
    srd(a, 48, 44, SZ_WF, WS_W1F)
    srd(a, 52, 44, SZ_WF, WS_W2F)
    a("v_lshrrev_b32 v1, 5, v0")
    a("v_and_b32 v2, 31, v0")
    a("v_mul_u32_u24 v3, 528, v1")
    a("v_lshl_add_u32 v3, v2, 4, v3")
    a(f"ds_write_b128 v3, v[{W}:{W+3}] offset:{ldsb}")
    a(f"ds_write_b128 v3, v[{W+4}:{W+7}] offset:{ldsb+8*528}")
    a(f"ds_write_b128 v3, v[{W+8}:{W+11}] offset:{ldsb+16*528}")
    a(f"ds_write_b128 v3, v[{W+12}:{W+15}] offset:{ldsb+24*528}")
    a("v_and_b32 v1, 63, v0")
    a("v_lshrrev_b32 v2, 5, v1")
    a("v_bfe_u32 v3, v1, 2, 2")
    a("v_bfe_u32 v4, v1, 4, 1")
    a("v_and_b32 v5, 3, v1")
    a("v_lshlrev_b32 v4, 5, v4")
    a("v_lshl_add_u32 v4, v5, 3, v4")
    a("v_lshrrev_b32 v6, 6, v0")
    a("v_lshl_add_u32 v4, v6, 6, v4")
    a("v_lshl_add_u32 v5, v2, 3, v3")
    a("v_mul_u32_u24 v5, 528, v5")
    a("v_add_u32 v5, v5, v4")
    a("v_lshl_add_u32 v7, v2, 2, v3")
    a("v_mul_u32_u24 v7, 528, v7")
    a("v_add_u32 v7, v7, v4")
    a("v_lshlrev_b32 v1, 4, v1")
    a("v_readfirstlane_b32 s7, v6")
    a("s_waitcnt lgkmcnt(0)")
    a("s_barrier")
    for rnd in range(2):
        if rnd == 1:
            lab = a.newlabel("rl_skip")
            a("s_cmp_eq_u32 s7, 3")
            a(f"s_cbranch_scc1 {lab}")
        o = 256*rnd
        a(f"ds_read_b64_tr_b16 v[{W}:{W+1}], v5 offset:{ldsb+o}")
        a(f"ds_read_b64_tr_b16 v[{W+2}:{W+3}], v5 offset:{ldsb+o+4*528}")
        a(f"ds_read_b64_tr_b16 v[{W+4}:{W+5}], v7 offset:{ldsb+16*528+o}")
        a(f"ds_read_b64_tr_b16 v[{W+6}:{W+7}], v7 offset:{ldsb+16*528+o+8*528}")
        a("s_and_b32 s4, s3, 7")
        a("s_mul_i32 s4, s4, 7")
        a("s_add_u32 s4, s4, s7")
        if rnd: a("s_add_u32 s4, s4, 4")
        a("s_mul_i32 s4, s4, 28")
        a("s_lshr_b32 s5, s3, 3")
        a("s_add_u32 s4, s4, s5")
        a("s_lshl_b32 s4, s4, 10")
        a("s_and_b32 s5, s3, 1")
        a("s_mul_i32 s5, s5, 7")
        a("s_add_u32 s5, s5, s7")
        if rnd: a("s_add_u32 s5, s5, 4")
        a("s_mul_i32 s5, s5, 112")
        a("s_lshr_b32 s6, s3, 1")
        a("s_add_u32 s5, s5, s6")
        a("s_lshl_b32 s5, s5, 10")
        a("s_waitcnt lgkmcnt(2)")
        a(f"buffer_store_dwordx4 v[{W}:{W+3}], v1, s[48:51], s4 offen {sc}")
        a("s_waitcnt lgkmcnt(0)")
        a(f"buffer_store_dwordx4 v[{W+4}:{W+7}], v1, s[52:55], s5 offen {sc}")
        if rnd == 1:
            a.label(lab)

KG_RS = 272
KG_WLDS = 64 * KG_RS
def kg_row(reg, gp):
    return (reg & 3) + 8 * (reg >> 2) + 4 * gp
KG_H = {}
for i in range(8): KG_H[i] = kg_row(i, 0)
for i, h in enumerate([256, 258, 260, 262, 264]): KG_H[h] = kg_row(8 + i, 0)
for i, h in enumerate([512, 516, 520, 768, 772, 776, 1024, 1032, 1280, 1288, 1536, 1544, 1792, 1800]): KG_H[h] = kg_row(i, 1)

def interleave(chains):
    out = []
    chains = [list(c) for c in chains if c]
    while chains:
        for c in chains:
            out.append(c.pop(0))
        chains = [c for c in chains if c]
    return out

def kgen_issue(a, P):
    SZP = 448*256*2
    for i, ptr in enumerate([18, 20, 22, 24, 26, 28]):
        srd(a, 60 + 4*i, ptr, SZP)
    a("v_lshrrev_b32 v1, 6, v0")
    a("v_and_b32 v2, 63, v0")
    a("s_lshl_b32 s4, s3, 10")
    a("v_lshlrev_b32 v3, 2, v0")
    for i in range(6):
        a(f"buffer_load_dword v{P+i}, v3, s[{60+4*i}:{63+4*i}], s4 offen")
    a("s_lshl_b32 s5, s3, 2")
    a("s_load_dword s8, s[30:31], s5")

def kgen_compute(a, P, ACC, ldsb=0):
    LOG2E = 1.4426950408889634
    T = 112
    a("v_lshrrev_b32 v1, 6, v0")
    a("v_lshrrev_b32 v4, 7, v0")
    a("v_mov_b32 v5, s8")
    a("v_lshlrev_b32 v6, 16, v5")
    a("v_and_b32 v5, 0xffff0000, v5")
    a("v_cmp_eq_u32 vcc, 0, v4")
    a("v_cndmask_b32 v5, v5, v6, vcc")
    a(f"v_mul_f32 v5, {f32bits(LOG2E):#x}, v5")
    a("v_exp_f32 v5, v5")
    bf_round(a, 5, 5)
    a("v_and_b32 v2, 63, v0")
    a(f"v_mul_u32_u24 v6, {KG_WLDS}, v1")
    if ldsb: a(f"v_add_u32 v6, {ldsb}, v6")
    a("v_lshl_add_u32 v7, v2, 2, v6")
    a("v_and_b32 v3, 31, v2")
    a(f"v_mul_u32_u24 v3, {KG_RS}, v3")
    a("v_add_u32 v6, v6, v3")
    a("v_lshrrev_b32 v3, 5, v2")
    a("v_lshl_add_u32 v6, v3, 4, v6")
    for i in range(16):
        a(f"v_mov_b32 v{ACC+i}, 0")
    for p in range(2):
        U = 24
        for i in range(6):
            if p == 0: a(f"v_lshlrev_b32 v{U+i}, 16, v{P+i}")
            else: a(f"v_and_b32 v{U+i}, 0xffff0000, v{P+i}")
        a(f"v_mul_f32 v30, v5, v{U}")
        a(f"v_mul_f32 v31, v5, v{U+1}")
        a(f"v_mul_f32 v30, {f32bits(LOG2E):#x}, v30")
        a("v_mul_f32 v31, 0.15915494, v31")
        a(f"v_mul_f32 v{U+2}, v5, v{U+2}")
        a(f"v_mul_f32 v{U+3}, v5, v{U+3}")
        regs = {}
        nxt = [32]
        def alloc(name):
            r = nxt[0]; nxt[0] += 2
            assert nxt[0] <= T
            regs[name] = (r, r + 1); return regs[name]
        def cmul(dst, x, w):
            (dr, di), (xr, xi), (wr, wi) = dst, x, w
            return [f"v_mul_f32 v{dr}, v{xi}, v{wi}", f"v_mul_f32 v{di}, v{xi}, v{wr}",
                    f"v_fma_f32 v{dr}, v{xr}, v{wr}, -v{dr}", f"v_fma_f32 v{di}, v{xr}, v{wi}, v{di}"]
        tcount = [0, 0, 0, 0]
        cur = [0]
        def emitrow(row, z, neg):
            t = T + 2*cur[0] + (tcount[cur[0]] % 2); tcount[cur[0]] += 1
            n = "-" if neg else ""
            return [f"v_cvt_pk_bf16_f32 v{t}, v{z[0]}, {n}v{z[1]}", f"ds_write_b32 v7, v{t} offset:{row*KG_RS}"]
        def direct(dst, tmul, tmp):
            (dr, di) = dst
            return [f"v_mul_f32 v{tmp}, {f32bits(float(tmul)):#x}, v30", f"v_mul_f32 v{tmp+1}, {f32bits(float(tmul)):#x}, v31",
                    f"v_exp_f32 v{tmp}, v{tmp}", f"v_fract_f32 v{tmp+1}, v{tmp+1}",
                    f"v_cos_f32 v{dr}, v{tmp+1}", f"v_sin_f32 v{di}, v{tmp+1}",
                    f"v_mul_f32 v{dr}, v{dr}, v{tmp}", f"v_mul_f32 v{di}, v{di}, v{tmp}"]
        X0 = alloc("X0")
        c0 = cmul(X0, (U+4, U+5), (U+2, U+3))
        w1 = alloc("w1"); w8 = alloc("w8"); w16 = alloc("w16"); w256 = alloc("w256"); w512 = alloc("w512"); w1024 = alloc("w1024")
        for ins in interleave([c0, direct(w1, 1, T+8), direct(w8, 8, T+10), direct(w16, 16, T+12), direct(w256, 256, T+14)]):
            a(ins)
        X = {0: X0}
        for h in [1,2,3,4,5,6,7,8,256,260,264,512,520,768,776]:
            X[h] = alloc(f"X{h}")
        tx = alloc("tx"); tx2 = alloc("tx2")
        ya = [alloc("ya0"), alloc("ya1")]; yb = [alloc("yb0"), alloc("yb1")]
        cur[0] = 0
        chA = emitrow(KG_H[0], X0, True)
        for h in range(1, 8):
            chA += cmul(X[h], X[h-1], w1) + emitrow(KG_H[h], X[h], True)
        cur[0] = 1
        chB = cmul(w512, w256, w256) + cmul(X[8], X0, w8) + cmul(w1024, w512, w512)
        chB += cmul(X[256], X0, w256) + emitrow(KG_H[256], X[256], True)
        chB += cmul(X[264], X[8], w256) + emitrow(KG_H[264], X[264], True)
        chB += cmul(X[512], X0, w512) + emitrow(KG_H[512], X[512], True)
        chB += cmul(X[520], X[8], w512) + emitrow(KG_H[520], X[520], True)
        chB += cmul(X[768], X[256], w512) + emitrow(KG_H[768], X[768], True)
        chB += cmul(X[776], X[264], w512) + emitrow(KG_H[776], X[776], True)
        for (h, src) in [(1024, 0), (1032, 8), (1280, 256), (1288, 264), (1536, 512), (1544, 520), (1792, 768), (1800, 776)]:
            t = tx if (h // 8) % 2 == 0 else tx2
            chB += cmul(t, X[src], w1024) + emitrow(KG_H[h], t, True)
        cur[0] = 2
        chY0 = [f"v_mov_b32 v{T+16}, 0x3f80", f"ds_write_b32 v7, v{T+16} offset:{32*KG_RS}"]
        chY0 += emitrow(32 + 2, w16, False)
        prev = w16
        for k, j in enumerate(range(4, 32, 2)):
            d = ya[k % 2]; chY0 += cmul(d, prev, w16) + emitrow(32 + j, d, False); prev = d
        cur[0] = 3
        chY1 = emitrow(32 + 1, w8, False)
        prev = w8
        for k, j in enumerate(range(3, 32, 2)):
            d = yb[k % 2]; chY1 += cmul(d, prev, w16) + emitrow(32 + j, d, False); prev = d
        for ins in interleave([chA, chB, chY0, chY1]):
            a(ins)
        cur[0] = 0
        chC = cmul(tx, X[2], w256) + emitrow(KG_H[258], tx, True)
        cur[0] = 1
        chD = cmul(X[260], X[4], w256) + emitrow(KG_H[260], X[260], True) + cmul(tx2, X[260], w512) + emitrow(KG_H[772], tx2, True)
        cur[0] = 2
        chE = cmul(ya[0], X[6], w256) + emitrow(KG_H[262], ya[0], True)
        cur[0] = 3
        chF = cmul(yb[0], X[4], w512) + emitrow(KG_H[516], yb[0], True)
        for ins in interleave([chC, chD, chE, chF]):
            a(ins)
        FR = 32
        a("s_waitcnt lgkmcnt(0)")
        for ks in range(8):
            a(f"ds_read_b128 v[{FR+8*ks}:{FR+8*ks+3}], v6 offset:{ks*32}")
            a(f"ds_read_b128 v[{FR+8*ks+4}:{FR+8*ks+7}], v6 offset:{32*KG_RS+ks*32}")
            if ks == 6: pass
        for ks in range(8):
            a(f"s_waitcnt lgkmcnt({min(15, 2*(7-ks))})")
            a(f"v_mfma_f32_32x32x16_bf16 v[{ACC}:{ACC+15}], v[{FR+8*ks}:{FR+8*ks+3}], v[{FR+8*ks+4}:{FR+8*ks+7}], v[{ACC}:{ACC+15}]")

def kgen_finish(a, ACC, red_lds, sc=""):
    srd(a, 48, 44, SZ_X, WS_KREV)
    a("v_lshrrev_b32 v1, 6, v0")
    a("v_and_b32 v2, 63, v0")
    a("v_lshrrev_b32 v3, 7, v0")
    a("v_lshlrev_b32 v4, 12, v3")
    a("v_lshl_add_u32 v4, v2, 4, v4")
    a("v_readfirstlane_b32 s7, v1")
    a("s_barrier")
    lab1 = a.newlabel("kg_nw"); lab2 = a.newlabel("kg_done")
    a("s_bitcmp1_b32 s7, 0")
    a(f"s_cbranch_scc0 {lab1}")
    for q in range(4):
        a(f"ds_write_b128 v4, v[{ACC+4*q}:{ACC+4*q+3}] offset:{red_lds+1024*q}")
    a("s_waitcnt lgkmcnt(0)")
    a.label(lab1)
    a("s_barrier")
    a("s_bitcmp1_b32 s7, 0")
    a(f"s_cbranch_scc1 {lab2}")
    R = 32
    for q in range(4):
        a(f"ds_read_b128 v[{R+4*q}:{R+4*q+3}], v4 offset:{red_lds+1024*q}")
    a("s_waitcnt lgkmcnt(0)")
    for i in range(16):
        a(f"v_add_f32 v{ACC+i}, v{ACC+i}, v{R+i}")
    a("s_lshl_b32 s4, s3, 13")
    a("v_and_b32 v5, 31, v2")
    a("v_lshlrev_b32 v5, 4, v5")
    a("v_lshlrev_b32 v6, 12, v3")
    a("v_sub_u32 v6, v6, v5")
    a("v_add_u32 v6, 4080, v6")
    def pk(d, lo, hi): a(f"v_cvt_pk_bf16_f32 v{d}, v{ACC+lo}, v{ACC+hi}")
    def store(base, d):
        a(f"v_subrev_u32 v7, {2*base}, v6")
        a(f"buffer_store_dwordx4 v[{d}:{d+3}], v7, s[48:51], s4 offen {sc}")
    O = 48
    a("s_mov_b64 s[10:11], exec")
    a("s_mov_b32 exec_lo, -1")
    a("s_mov_b32 exec_hi, 0")
    pk(O, 7, 6); pk(O+1, 5, 4); pk(O+2, 3, 2); pk(O+3, 1, 0); store(0, O)
    pk(O+4, 12, 11); pk(O+5, 10, 10); pk(O+6, 10, 9); pk(O+7, 8, 8); store(256, O+4)
    a("s_mov_b32 exec_lo, 0")
    a("s_mov_b32 exec_hi, -1")
    for b in range(2):
        o = O + 8 + 4*b; r0 = 3*b
        pk(o, r0+2, r0+2); pk(o+1, r0+1, r0+1); pk(o+2, r0+1, r0); pk(o+3, r0, r0); store(512 + 256*b, o)
    a("v_and_b32 v5, 1, v2")
    a("v_cmp_eq_u32 vcc, 0, v5")
    for b in range(4):
        o = O + 16 + 4*b; r0 = 6 + 2*b
        a(f"v_cndmask_b32 v{R}, v{ACC+r0+1}, v{ACC+r0}, vcc")
        pk(o, r0+1, r0+1)
        a(f"v_cvt_pk_bf16_f32 v{o+1}, v{ACC+r0+1}, v{R}")
        pk(o+2, r0, r0); pk(o+3, r0, r0); store(1024 + 256*b, o)
    a("s_mov_b64 exec, s[10:11]")
    a.label(lab2)


def body_gemm1(a, sc="", rbfq_done=False):
    NB = 4; NCH = 14
    srd(a, 48, 44, SZ_WF, WS_W1F)
    srd(a, 52, 44, SZ_X, WS_XNF)
    srd(a, 56, 44, SZ_H, WS_H)
    if not rbfq_done:
        a("s_mul_hi_u32 s12, s3, 0x12492493")
        a("s_mul_i32 s13, s12, 14")
        a("s_sub_u32 s13, s3, s13")
    a("v_lshrrev_b32 v1, 6, v0")
    a("v_and_b32 v2, 63, v0")
    a("v_readfirstlane_b32 s7, v1")
    a("v_lshlrev_b32 v3, 4, v2")
    a("s_lshl_b32 s4, s13, 2")
    a("s_add_u32 s4, s4, s7")
    a("s_mul_i32 s4, s4, 28672")
    a("s_lshl_b32 s5, s12, 2")
    a("s_add_u32 s5, s5, s7")
    a("s_mul_i32 s5, s5, 28672")
    a("s_lshl_b32 s6, s7, 11")
    def dma(c):
        buf = c % NB
        a(f"s_add_u32 m0, s6, {buf*16384}")
        a(f"buffer_load_dwordx4 v3, s[48:51], s4 offen lds")
        a(f"buffer_load_dwordx4 v3, s[48:51], s4 offen offset:1024 lds")
        a(f"s_add_u32 m0, s6, {buf*16384+8192}")
        a(f"buffer_load_dwordx4 v3, s[52:55], s5 offen lds")
        a(f"buffer_load_dwordx4 v3, s[52:55], s5 offen offset:1024 lds")
        a("s_add_u32 s4, s4, 2048")
        a("s_add_u32 s5, s5, 2048")
    for c in range(3): dma(c)
    a("s_and_b32 s8, s7, 1")
    a("s_lshr_b32 s9, s7, 1")
    a("s_lshl_b32 s10, s8, 12")
    a("s_lshl_b32 s11, s9, 12")
    a("s_add_u32 s11, s11, 8192")
    a("v_add_u32 v4, s10, v3")
    a("v_add_u32 v5, s11, v3")
    ACC = 64; S0 = 16; S1 = 32
    for i in range(64): a(f"v_mov_b32 v{ACC+i}, 0")
    def reads(c, st, S):
        o = (c % NB)*16384 + st*1024
        a(f"ds_read_b128 v[{S}:{S+3}], v4 offset:{o}")
        a(f"ds_read_b128 v[{S+4}:{S+7}], v4 offset:{o+2048}")
        a(f"ds_read_b128 v[{S+8}:{S+11}], v5 offset:{o}")
        a(f"ds_read_b128 v[{S+12}:{S+15}], v5 offset:{o+2048}")
    def mfmas(S):
        for aa in range(2):
            for b in range(2):
                d = ACC + 16*(2*aa+b)
                a(f"v_mfma_f32_32x32x16_bf16 v[{d}:{d+15}], v[{S+4*aa}:{S+4*aa+3}], v[{S+8+4*b}:{S+8+4*b+3}], v[{d}:{d+15}]")
    for c in range(NCH):
        rem = min(NCH - 1 - c, 2)
        a(f"s_waitcnt vmcnt({4*rem})")
        a("s_barrier")
        if c == 0: stamp(a, 1)
        if c + 3 < NCH: dma(c + 3)
        reads(c, 0, S0)
        if c > 0: mfmas(S1)
        reads(c, 1, S1)
        a("s_waitcnt lgkmcnt(4)")
        mfmas(S0)
        a("s_waitcnt lgkmcnt(0)")
    mfmas(S1)
    stamp(a, 2)
    a("s_lshl_b32 s4, s12, 2")
    a("s_lshl_b32 s5, s9, 1")
    a("s_add_u32 s4, s4, s5")
    a("s_mul_i32 s4, s4, 112")
    a("s_lshl_b32 s5, s13, 3")
    a("s_lshl_b32 s6, s8, 2")
    a("s_add_u32 s5, s5, s6")
    a("s_add_u32 s4, s4, s5")
    a("s_lshl_b32 s4, s4, 10")
    if HALFFOLD:
        srd(a, 60, 44, 8192, WS_R)
        a("s_lshl_b32 s5, s12, 9")
        a("s_lshl_b32 s6, s9, 8")
        a("s_add_u32 s5, s5, s6")
        a("v_and_b32 v6, 31, v2")
        a("v_lshlrev_b32 v6, 2, v6")
        a("buffer_load_dword v8, v6, s[60:63], s5 offen")
        a("buffer_load_dword v9, v6, s[60:63], s5 offen offset:128")
        a("s_waitcnt vmcnt(0)")
    for aa in range(2):
        for b in range(2):
            d = ACC + 16*(2*aa+b)
            o = S0 + 8*((2*aa+b) % 2) + (0 if (2*aa+b) < 2 else 16)
            if HALFFOLD:
                for k in range(16): a(f"v_mul_f32 v{d+k}, v{d+k}, v{8+b}")
            for k in range(8):
                a(f"v_cvt_pk_bf16_f32 v{o+k}, v{d+2*k}, v{d+2*k+1}")
                a(f"v_pk_max_i16 v{o+k}, v{o+k}, 0")
            a(f"s_add_u32 s5, s4, {(b*112 + 2*aa)*1024}")
            a(f"buffer_store_dwordx4 v[{o}:{o+3}], v3, s[56:59], s5 offen {sc}")
            a(f"buffer_store_dwordx4 v[{o+4}:{o+7}], v3, s[56:59], s5 offen offset:1024 {sc}")

CV_BS = 320; CV_CS = 7376; CV_K = 4*CV_CS; CV_CH = CV_K + 4352
def body_conv(a, sc_in="", sc_out=""):
    srd(a, 48, 44, SZ_X, WS_XNT)
    srd(a, 52, 44, SZ_X, WS_KREV)
    srd(a, 56, 44, SZ_X, WS_AOUT)
    a("s_lshl_b32 s5, s3, 2")
    a("s_load_dword s8, s[32:33], s5")
    a("v_lshrrev_b32 v1, 7, v0")
    a("v_and_b32 v2, 127, v0")
    a("s_lshl_b32 s4, s3, 13")
    a("v_lshlrev_b32 v3, 12, v1")
    a("v_lshl_add_u32 v3, v2, 4, v3")
    D = 16
    for k in range(2):
        a(f"buffer_load_dwordx4 v[{D+8*k}:{D+8*k+3}], v3, s[48:51], s4 offen offset:{2048*k} {sc_in}")
    a("v_add_u32 v4, -8, v3")
    a("v_max_i32 v4, 0, v4")
    a(f"buffer_load_dwordx2 v[{D+4}:{D+5}], v4, s[48:51], s4 offen {sc_in}")
    a(f"buffer_load_dwordx2 v[{D+12}:{D+13}], v3, s[48:51], s4 offen offset:2040 {sc_in}")
    for k in range(2):
        a(f"buffer_load_dwordx4 v[{40+4*k}:{40+4*k+3}], v3, s[52:55], s4 offen offset:{2048*k} {sc_in}")
    a(f"v_mul_u32_u24 v5, {CV_CH}, v1")
    for i in range(4): a(f"v_mov_b32 v{48+i}, 0")
    a("v_lshl_add_u32 v6, v2, 4, v5")
    for rho in range(4):
        a(f"ds_write_b128 v6, v[48:51] offset:{rho*CV_CS}")
    a("v_cmp_gt_u32 vcc, 12, v2")
    a("s_and_saveexec_b64 s[10:11], vcc")
    for rho in range(4):
        a(f"ds_write_b128 v6, v[48:51] offset:{rho*CV_CS+2048}")
    a("s_mov_b64 exec, s[10:11]")
    a("v_cmp_gt_u32 vcc, 16, v2")
    a("s_and_saveexec_b64 s[10:11], vcc")
    a(f"ds_write_b128 v6, v[48:51] offset:{CV_K+4096}")
    a("s_mov_b64 exec, s[10:11]")
    a("v_lshrrev_b32 v7, 4, v2")
    a(f"v_mul_u32_u24 v7, {CV_BS}, v7")
    a("v_and_b32 v8, 15, v2")
    a("v_lshl_add_u32 v7, v8, 4, v7")
    a("v_add_u32 v7, v7, v5")
    a("v_cmp_eq_u32 vcc, 0, v2")
    a("s_waitcnt vmcnt(2)")
    a(f"v_cndmask_b32_e64 v{D+4}, v{D+4}, 0, vcc")
    a(f"v_cndmask_b32_e64 v{D+5}, v{D+5}, 0, vcc")
    for k in range(2):
        d = D + 8*k; p = d + 4
        ob = 7*CV_BS + k*8*CV_BS
        E = 52
        a(f"ds_write_b128 v7, v[{d}:{d+3}] offset:{3*CV_CS+ob}")
        a(f"v_mov_b32 v{E}, v{p+1}"); a(f"v_mov_b32 v{E+1}, v{d}"); a(f"v_mov_b32 v{E+2}, v{d+1}"); a(f"v_mov_b32 v{E+3}, v{d+2}")
        a(f"ds_write_b128 v7, v[{E}:{E+3}] offset:{1*CV_CS+ob}")
        a(f"v_alignbit_b32 v{E+4}, v{d}, v{p+1}, 16")
        a(f"v_alignbit_b32 v{E+5}, v{d+1}, v{d}, 16")
        a(f"v_alignbit_b32 v{E+6}, v{d+2}, v{d+1}, 16")
        a(f"v_alignbit_b32 v{E+7}, v{d+3}, v{d+2}, 16")
        a(f"ds_write_b128 v7, v[{E+4}:{E+7}] offset:{2*CV_CS+ob}")
        a(f"v_alignbit_b32 v{E+8}, v{p+1}, v{p}, 16")
        a(f"v_mov_b32 v{E+9}, v{E+4}"); a(f"v_mov_b32 v{E+10}, v{E+5}"); a(f"v_mov_b32 v{E+11}, v{E+6}")
        a(f"ds_write_b128 v7, v[{E+8}:{E+11}] offset:{0*CV_CS+ob}")
    a("s_waitcnt vmcnt(0)")
    for k in range(2):
        a(f"ds_write_b128 v6, v[{40+4*k}:{40+4*k+3}] offset:{CV_K+2048*k}")
    a("v_and_b32 v1, 63, v0")
    a("v_bfe_u32 v2, v0, 6, 1")
    a("v_lshrrev_b32 v3, 5, v1")
    a("v_and_b32 v4, 3, v1")
    a("v_bfe_u32 v6, v1, 2, 3")
    a(f"v_mul_u32_u24 v8, {CV_CS}, v4")
    a(f"v_mul_u32_u24 v9, {CV_BS}, v6")
    a("v_add3_u32 v8, v8, v9, v5")
    a("v_lshl_add_u32 v8, v3, 4, v8")
    a(f"v_mul_u32_u24 v9, {4*CV_BS}, v2")
    a("v_sub_u32 v8, v8, v9")
    a("v_and_b32 v4, 31, v1")
    a("v_lshlrev_b32 v9, 3, v4")
    a("v_sub_u32 v9, v5, v9")
    a("v_lshl_add_u32 v9, v3, 4, v9")
    a("v_lshlrev_b32 v10, 10, v2")
    a("v_sub_u32 v9, v9, v10")
    a(f"v_add_u32 v9, {CV_K + 2*(2156-496)}, v9")
    a("v_add_u32 v10, -2048, v9")
    A0 = 64; A1 = 80
    for i in range(32): a(f"v_mov_b32 v{A0+i}, 0")
    a("s_waitcnt lgkmcnt(0)")
    a("s_barrier")
    stamp(a, 1)
    NS = 3
    def rdl(sp):
        S = 16 + 16*(sp % NS)
        z = 1008 - 16*sp
        ou = (z >> 7)*CV_BS + (z & 127)*2
        ok = 32*(31 - sp)
        return [f"ds_read_b128 v[{S}:{S+3}], v8 offset:{ou}",
                f"ds_read_b64 v[{S+8}:{S+9}], v9 offset:{ok}",
                f"ds_read_b64 v[{S+10}:{S+11}], v9 offset:{ok+8}",
                f"ds_read_b128 v[{S+4}:{S+7}], v8 offset:{ou+8*CV_BS}",
                f"ds_read_b64 v[{S+12}:{S+13}], v10 offset:{ok}",
                f"ds_read_b64 v[{S+14}:{S+15}], v10 offset:{ok+8}"]
    for ins in rdl(0) + rdl(1): a(ins)
    for sp in range(32):
        a(f"s_waitcnt lgkmcnt({6 if sp < 31 else 0})")
        S = 16 + 16*(sp % NS)
        R = rdl(sp + 2) if sp + 2 < 32 else []
        M = [f"v_mfma_f32_32x32x16_bf16 v[{A0}:{A0+15}], v[{S}:{S+3}], v[{S+8}:{S+11}], v[{A0}:{A0+15}]",
             f"v_mfma_f32_32x32x16_bf16 v[{A1}:{A1+15}], v[{S+4}:{S+7}], v[{S+8}:{S+11}], v[{A1}:{A1+15}]",
             f"v_mfma_f32_32x32x16_bf16 v[{A1}:{A1+15}], v[{S}:{S+3}], v[{S+12}:{S+15}], v[{A1}:{A1+15}]"]
        for i in range(3):
            a(M[i])
            for ins in R[2*i:2*i+2]: a(ins)
    stamp(a, 2)
    a("v_readfirstlane_b32 s7, v2")
    a("v_lshlrev_b32 v3, 4, v1")
    a("v_add_u32 v3, v3, v5")
    a("s_barrier")
    l1 = a.newlabel("cv_x1"); l2 = a.newlabel("cv_x2"); l3 = a.newlabel("cv_x3"); l4 = a.newlabel("cv_x4")
    a("s_cmp_eq_u32 s7, 0")
    a(f"s_cbranch_scc0 {l1}")
    for q in range(4): a(f"ds_write_b128 v3, v[{A1+4*q}:{A1+4*q+3}] offset:{1024*q}")
    a(f"s_branch {l2}")
    a.label(l1)
    for q in range(4): a(f"ds_write_b128 v3, v[{A0+4*q}:{A0+4*q+3}] offset:{CV_CS+1024*q}")
    for i in range(16): a(f"v_mov_b32 v{A0+i}, v{A1+i}")
    a.label(l2)
    a("s_waitcnt lgkmcnt(0)")
    a("s_barrier")
    a("v_sub_u32 v4, 1, v2")
    a(f"v_mul_u32_u24 v4, {CV_CS}, v4")
    a("v_add_u32 v3, v3, v4")
    R = 16
    for q in range(4): a(f"ds_read_b128 v[{R+4*q}:{R+4*q+3}], v3 offset:{1024*q}")
    a("v_lshrrev_b32 v3, 5, v1")
    a("v_lshl_add_u32 v4, v2, 3, v3")
    a(f"v_mul_u32_u24 v6, {CV_BS}, v4")
    a("v_and_b32 v7, 31, v1")
    a("v_lshl_add_u32 v6, v7, 3, v6")
    a("v_add_u32 v6, v6, v5")
    X = 32
    for q in range(4): a(f"ds_read_b64 v[{X+2*q}:{X+2*q+1}], v6 offset:{3*CV_CS + (7+2*q)*CV_BS}")
    a("v_lshrrev_b32 v8, 7, v0")
    a("v_lshlrev_b32 v8, 12, v8")
    a("v_lshl_add_u32 v8, v4, 8, v8")
    a("v_lshl_add_u32 v8, v7, 3, v8")
    a("v_lshrrev_b32 v9, 7, v0")
    a("v_mov_b32 v10, s8")
    a("v_lshlrev_b32 v11, 16, v10")
    a("v_and_b32 v10, 0xffff0000, v10")
    a("v_cmp_eq_u32 vcc, 0, v9")
    a("v_cndmask_b32 v10, v10, v11, vcc")
    a("s_waitcnt lgkmcnt(0)")
    for i in range(16): a(f"v_add_f32 v{A0+i}, v{A0+i}, v{R+i}")
    T = 40
    for q in range(4):
        for hh in range(2):
            y0 = A0 + 4*q + 2*hh; x = X + 2*q + hh
            a(f"v_cvt_pk_bf16_f32 v{T}, v{y0}, v{y0+1}")
            unpack(a, T+1, T+2, T)
            unpack(a, T+3, T+4, x)
            a(f"v_mul_f32 v{T+3}, v{T+3}, v10")
            a(f"v_mul_f32 v{T+4}, v{T+4}, v10")
            a(f"v_cvt_pk_bf16_f32 v{T}, v{T+3}, v{T+4}")
            unpack(a, T+3, T+4, T)
            a(f"v_add_f32 v{T+1}, v{T+1}, v{T+3}")
            a(f"v_add_f32 v{T+2}, v{T+2}, v{T+4}")
            a(f"v_cvt_pk_bf16_f32 v{48+2*q+hh}, v{T+1}, v{T+2}")
        a(f"buffer_store_dwordx2 v[{48+2*q}:{48+2*q+1}], v8, s[56:59], s4 offen offset:{512*q} {sc_out}")


def body_gemm2(a, sc_in="", wait_aout=None, rbdq_done=False):
    PF = 8
    srd(a, 48, 44, SZ_WF, WS_W2F)
    srd(a, 52, 44, SZ_H, WS_H)
    srd(a, 56, 44, SZ_X, WS_AOUT)
    srd(a, 60, 16, SZ_X)
    srd(a, 64, 40, SZ_X)
    if not rbdq_done:
        a("s_mul_hi_u32 s12, s3, 0x24924925")
        a("s_mul_i32 s13, s12, 7")
        a("s_sub_u32 s13, s3, s13")
    a("v_lshrrev_b32 v1, 6, v0")
    a("v_and_b32 v2, 63, v0")
    a("v_readfirstlane_b32 s7, v1")
    a("v_lshlrev_b32 v3, 4, v2")
    a("s_mul_i32 s4, s7, 28")
    a("s_lshl_b32 s5, s13, 1")
    a("s_mul_i32 s5, s5, 112")
    a("s_add_u32 s5, s5, s4")
    a("s_lshl_b32 s68, s5, 10")
    a(f"s_add_u32 s69, s68, {112*1024}")
    a("s_lshl_b32 s5, s12, 1")
    a("s_mul_i32 s5, s5, 112")
    a("s_add_u32 s5, s5, s4")
    a("s_lshl_b32 s70, s5, 10")
    a(f"s_add_u32 s71, s70, {112*1024}")
    ACC = 0 + 16; FR = 80; XR = 208; AR = 216
    def ld(ks):
        S = FR + 16*(ks % PF); o = (ks % 4)*1024
        a(f"buffer_load_dwordx4 v[{S}:{S+3}], v3, s[48:51], s68 offen offset:{o}")
        a(f"buffer_load_dwordx4 v[{S+8}:{S+11}], v3, s[52:55], s70 offen offset:{o} {sc_in}")
        a(f"buffer_load_dwordx4 v[{S+4}:{S+7}], v3, s[48:51], s69 offen offset:{o}")
        a(f"buffer_load_dwordx4 v[{S+12}:{S+15}], v3, s[52:55], s71 offen offset:{o} {sc_in}")
        if ks % 4 == 3:
            for r in (68, 69, 70, 71): a(f"s_add_u32 s{r}, s{r}, 4096")
    for ks in range(PF): ld(ks)
    a("s_lshr_b32 s8, s7, 1")
    a("s_and_b32 s9, s7, 1")
    a("s_lshl_b32 s4, s12, 6")
    a("s_lshl_b32 s5, s9, 5")
    a("s_add_u32 s4, s4, s5")
    a("s_lshl_b32 s5, s13, 6")
    a("s_lshl_b32 s6, s8, 5")
    a("s_add_u32 s5, s5, s6")
    a("s_mul_i32 s10, s4, 896")
    a("s_lshl_b32 s6, s5, 1")
    a("s_add_u32 s10, s10, s6")
    a("s_lshl_b32 s11, s5, 12")
    a("s_lshl_b32 s6, s4, 1")
    a("s_add_u32 s11, s11, s6")
    a("v_and_b32 v4, 31, v2")
    a("v_lshrrev_b32 v5, 5, v2")
    a("v_mul_u32_u24 v6, 896, v4")
    a("v_lshl_add_u32 v6, v5, 3, v6")
    a("v_lshlrev_b32 v7, 14, v5")
    a("v_lshl_add_u32 v7, v4, 1, v7")
    def ld_epi():
        for q in range(4):
            a(f"buffer_load_dwordx2 v[{XR+2*q}:{XR+2*q+1}], v6, s[60:63], s10 offen offset:{16*q}")
        for q in range(4):
            for r in range(4):
                a(f"s_add_u32 s6, s11, {(8*q+r)*4096}")
                a(f"buffer_load_ushort v{AR+4*q+r}, v7, s[56:59], s6 offen {sc_in}")
    for i in range(64): a(f"v_mov_b32 v{ACC+i}, 0")
    NK = 28
    EPI_AT = NK - PF - 1 if wait_aout is None else None
    issued_epi = False
    for ks in range(NK):
        later = min(ks + PF - 1, NK - 1) - ks
        n = 4*later + (20 if issued_epi and epi_after_step >= ks else 0)
        a(f"s_waitcnt vmcnt({min(n, 63)})")
        if ks == 0: stamp(a, 1)
        S = FR + 16*(ks % PF)
        for aa in range(2):
            for b in range(2):
                d = ACC + 16*(2*aa+b)
                a(f"v_mfma_f32_32x32x16_bf16 v[{d}:{d+15}], v[{S+4*aa}:{S+4*aa+3}], v[{S+8+4*b}:{S+8+4*b+3}], v[{d}:{d+15}]")
        if ks + PF < NK: ld(ks + PF)
        if wait_aout is None and ks + PF == NK - 1:
            ld_epi(); issued_epi = True; epi_after_step = NK - 1
    stamp(a, 2)
    if wait_aout is not None:
        wait_aout(a); ld_epi()
    a("s_lshl_b32 s4, s7, 14")
    a("v_add_u32 v8, s4, v3")
    for t in range(4):
        lab = a.newlabel("g2w")
        a(f"s_cmp_eq_u32 s7, {t}")
        a(f"s_cbranch_scc1 {lab}")
        for q in range(4):
            a(f"ds_write_b128 v8, v[{ACC+16*t+4*q}:{ACC+16*t+4*q+3}] offset:{t*4096+q*1024}")
        a(f"s_branch {lab}_e")
        a.label(lab)
        for i in range(16): a(f"v_mov_b32 v{FR+i}, v{ACC+16*t+i}")
        a.label(lab + "_e")
    a("s_lshl_b32 s4, s7, 12")
    a("v_add_u32 v8, s4, v3")
    a("s_waitcnt lgkmcnt(0)")
    a("s_barrier")
    R = FR + 16
    for j in range(3):
        a(f"s_add_u32 s4, s7, {1+j}")
        a("s_and_b32 s4, s4, 3")
        a("s_lshl_b32 s4, s4, 14")
        a(f"v_add_u32 v{9+j}, s4, v8")
        for q in range(4):
            a(f"ds_read_b128 v[{R+16*j+4*q}:{R+16*j+4*q+3}], v{9+j} offset:{q*1024}")
    for j in range(3):
        a(f"s_waitcnt lgkmcnt({4*(2-j)})")
        for i in range(16): a(f"v_add_f32 v{FR+i}, v{FR+i}, v{R+16*j+i}")
    a("s_waitcnt vmcnt(0)")
    T = 16
    for q in range(4):
        for hh in range(2):
            f0 = FR + 4*q + 2*hh; x = XR + 2*q + hh; ao = AR + 4*q + 2*hh
            a(f"v_cvt_pk_bf16_f32 v{T}, v{f0}, v{f0+1}")
            unpack(a, T+1, T+2, T)
            unpack(a, T+3, T+4, x)
            a(f"v_lshlrev_b32 v{ao}, 16, v{ao}")
            a(f"v_lshlrev_b32 v{ao+1}, 16, v{ao+1}")
            a(f"v_add_f32 v{T+3}, v{T+3}, v{ao}")
            a(f"v_add_f32 v{T+4}, v{T+4}, v{ao+1}")
            a(f"v_cvt_pk_bf16_f32 v{T}, v{T+3}, v{T+4}")
            unpack(a, T+3, T+4, T)
            a(f"v_add_f32 v{T+1}, v{T+1}, v{T+3}")
            a(f"v_add_f32 v{T+2}, v{T+2}, v{T+4}")
            if PERT and q == 0 and hh == 0:
                lab = a.newlabel("pert")
                a("s_cmp_eq_u32 s2, 0")
                a(f"s_cbranch_scc0 {lab}")
                a(f"v_add_f32 v{T+1}, {f32bits(PERT):#x}, v{T+1}")
                a.label(lab)
            a(f"v_cvt_pk_bf16_f32 v{24+2*q+hh}, v{T+1}, v{T+2}")
        a(f"buffer_store_dwordx2 v[{24+2*q}:{24+2*q+1}], v6, s[64:67], s10 offen offset:{16*q}")

def build_k2():
    a = Asm()
    load_ptrs(a)
    a("s_cmp_ge_u32 s2, 224")
    a("s_cbranch_scc1 L_k2_end")
    a("s_waitcnt lgkmcnt(0)")
    a("s_mov_b32 s3, s2")
    stamp(a, 0); prof2_start(a)
    if XCDMAP:
        a("s_lshr_b32 s4, s2, 3")
        a("s_mul_hi_u32 s5, s4, 0x24924925")
        a("s_mul_i32 s13, s5, 7")
        a("s_sub_u32 s13, s4, s13")
        a("s_and_b32 s12, s2, 7")
        a("s_lshl_b32 s12, s12, 2")
        a("s_add_u32 s12, s12, s5")
    body_gemm2(a, rbdq_done=XCDMAP)
    if PROF: a("s_waitcnt vmcnt(0)")
    stamp(a, 3); prof_flush(a, 2, 4); prof2_end(a, 2, 2)
    a.label("L_k2_end")
    a("s_endpgm")
    return a

def build_k1(sc=""):
    a = Asm()
    load_ptrs(a)
    a("s_cmp_ge_u32 s2, 448")
    a("s_cbranch_scc1 L_k1_end")
    a("s_waitcnt lgkmcnt(0)")
    stamp(a, 0); prof2_start(a)
    a("s_cmp_ge_u32 s2, 224")
    a("s_cbranch_scc1 L_k1_conv")
    a("s_mov_b32 s3, s2")
    if XCDMAP:
        a("s_lshr_b32 s4, s2, 3")
        a("s_mul_hi_u32 s5, s4, 0x12492493")
        a("s_mul_i32 s13, s5, 14")
        a("s_sub_u32 s13, s4, s13")
        a("s_and_b32 s12, s2, 7")
        a("s_lshl_b32 s12, s12, 1")
        a("s_add_u32 s12, s12, s5")
    body_gemm1(a, sc, rbfq_done=XCDMAP)
    if PROF: a("s_waitcnt vmcnt(0)")
    stamp(a, 3); prof_flush(a, 1, 4); prof2_end(a, 1, 1)
    a("s_endpgm")
    a.label("L_k1_conv")
    a("s_sub_u32 s3, s2, 224")
    body_conv(a, "", sc)
    if PROF: a("s_waitcnt vmcnt(0)")
    stamp(a, 3); prof_flush(a, 1, 4); prof2_end(a, 1, 1)
    a.label("L_k1_end")
    a("s_endpgm")
    return a

def build_k0(sc=""):
    a = Asm()
    load_ptrs(a)
    lab_ln = "L_k0_ln"; lab_end = "L_k0_end"
    a("s_cmp_ge_u32 s2, 288")
    a(f"s_cbranch_scc1 {lab_end}")
    a("s_waitcnt lgkmcnt(0)")
    stamp(a, 0); prof2_start(a)
    a("s_cmp_ge_u32 s2, 224")
    a(f"s_cbranch_scc1 {lab_ln}")
    a("s_mov_b32 s3, s2")
    P = 8; W = 96; ACC = 8
    kgen_issue(a, 16)
    relayout_issue(a, W)
    a("s_waitcnt vmcnt(0) lgkmcnt(0)")
    stamp(a, 1)
    relayout_finish(a, W, 0, sc)
    a("s_barrier")
    stamp(a, 2)
    kgen_compute(a, 16, 132)
    stamp(a, 3)
    kgen_finish(a, 132, 0, sc)
    if PROF: a("s_waitcnt vmcnt(0)")
    stamp(a, 4); prof_flush(a, 0, 5); prof2_end(a, 0, 0)
    a("s_endpgm")
    a.label(lab_ln)
    a("s_sub_u32 s3, s2, 224")
    body_ln(a, sc)
    a.label(lab_end)
    a("s_endpgm")
    return a

def assemble(kernels, path):
    hdr = "; generated by dev/kern.py\n"
    for name, asm, vgpr, grid, lds in kernels:
        hdr += f"; @launch kernel={name} grid=({grid},1,1) block=(256,1,1) lds={lds}\n"
    hdr += '.amdgcn_target "amdgcn-amd-amdhsa--gfx950"\n'
    txt = ""; desc = ""
    for name, asm, vgpr, grid, lds in kernels:
        t, d, n = kernel_text(name, asm, vgpr)
        txt += t; desc += d
        print(f"{name}: {len(t.splitlines())} lines, {n} hazard pads")
    open(path, "w").write(hdr + txt + desc)

def build_all(path, sc=""):
    assemble([("k0_kernel", build_k0(sc), 148, 288, 4*KG_WLDS), ("k1_kernel", build_k1(sc), 128, 448, 2*CV_CH), ("k2_kernel", build_k2(), 232, 224, 65536)], path)

if __name__ == "__main__":
    PROF = True
    build_all("k012p.s")
    PROF = False
    PROF = True
    build_all("k012p_sc1.s", "sc1")
    build_all("k012p_sc01.s", "sc0 sc1")
    build_all("k012p_nt.s", "nt")
    PROF = False
    build_all("k012.s")
    build_all("k012_sc1.s", "sc1")
    for i, p in enumerate([0.08, 0.11, 0.2, 0.4, 1.0]):
        PERT = p
        build_all(f"k012_pert{i}.s", "sc1")
    PERT = 0.0
    HALFFOLD = True
    build_all("k012_hf.s", "sc1")
    HALFFOLD = False
    assemble([("k0_kernel", build_k0(), 148, 288, 4*KG_WLDS)], "k0.s")
    assemble([("k0_kernel", build_k0(), 148, 288, 4*KG_WLDS), ("k1_kernel", build_k1(), 128, 448, 2*CV_CH)], "k01.s")
    assemble([("k0_kernel", build_k0(), 148, 288, 4*KG_WLDS), ("k1_kernel", build_k1(), 128, 448, 2*CV_CH), ("k2_kernel", build_k2(), 232, 224, 65536)], "k012.s")
```

```python
from asmgen import Asm, kernel_text
import kern
from kern import (prof2_start, prof2_end, srd, load_ptrs, f32bits, bf_round, unpack, interleave, kg_row, KG_H, KG_RS, KG_WLDS,
                  kgen_issue, kgen_compute, kgen_finish, CV_BS, CV_CS, CV_K, CV_CH,
                  WS_H, WS_W2F, WS_XNT, WS_KREV, WS_AOUT, SZ_H, SZ_WF, SZ_X, stamp, prof_flush, assemble)
WS_ST = 0x1300000
WS_FLAG = 0x1400000
SC = "sc1"
ROLES = {"g1","ln","kg","g2","cv"}
NOWAIT = False
TOUCH1 = True
FINE = False
NOMFMA = False
SWAP = True
G1MAP47 = True

class VM:
    def __init__(self): self.q = []
    def issue(self, tag, n=1): self.q += [tag] * n
    def wait_for(self, tag):
        last = max(i for i, t in enumerate(self.q) if t == tag)
        return len(self.q) - 1 - last

def xcd_idx(a, div, magic, mul):
    a("s_lshr_b32 s14, s3, 3")
    a(f"s_mul_hi_u32 s5, s14, {magic:#x}")
    a(f"s_mul_i32 s13, s5, {div}")
    a("s_sub_u32 s13, s14, s13")
    a("s_and_b32 s12, s3, 7")
    a(f"s_mul_i32 s12, s12, {mul}")
    a("s_add_u32 s12, s12, s5")

def body_g1(a):
    NB = 5; NCH = 14; WB = NB*8192
    vm = VM()
    srd(a, 48, 16, SZ_X)
    srd(a, 52, 36, SZ_WF)
    if G1MAP47:
        a("s_lshr_b32 s14, s3, 3")
        a("s_mul_hi_u32 s5, s14, 0x24924925")
        a("s_mul_i32 s13, s5, 7")
        a("s_sub_u32 s13, s14, s13")
        a("s_and_b32 s6, s3, 1")
        a("s_mul_i32 s6, s6, 7")
        a("s_add_u32 s13, s13, s6")
        a("s_bfe_u32 s12, s3, 0x20001")
        a("s_lshl_b32 s12, s12, 2")
        a("s_add_u32 s12, s12, s5")
    else:
        xcd_idx(a, 14, 0x12492493, 2)
    a("v_lshrrev_b32 v1, 6, v0")
    a("v_and_b32 v2, 63, v0")
    a("v_readfirstlane_b32 s7, v1")
    a("v_lshrrev_b32 v3, 2, v2")
    a("v_and_b32 v4, 3, v2")
    a("v_bfe_u32 v5, v2, 4, 2")
    a("v_xor_b32 v4, v4, v5")
    a("v_mul_u32_u24 v3, 896, v3")
    a("v_lshl_add_u32 v3, v4, 4, v3")
    a("v_lshrrev_b32 v4, 4, v2")
    a("v_and_b32 v5, 15, v2")
    a("v_lshlrev_b32 v6, 2, v4")
    a("v_xor_b32 v5, v5, v6")
    a("v_mul_u32_u24 v4, 3584, v4")
    a("v_lshl_add_u32 v4, v5, 4, v4")
    a("s_lshl_b32 s8, s12, 2")
    a("s_add_u32 s8, s8, s7")
    a("s_mul_i32 s8, s8, 28672")
    a("s_mul_i32 s9, s7, 28672")
    a("s_lshl_b32 s5, s13, 8")
    a("s_add_u32 s9, s9, s5")
    a("s_lshl_b32 s10, s7, 11")
    def dma(c):
        buf = (c % NB) * 8192
        a(f"s_add_u32 m0, s10, {buf}")
        a(f"buffer_load_dwordx4 v3, s[48:51], s8 offen lds")
        a(f"s_add_u32 m0, s10, {buf+WB}")
        a(f"buffer_load_dwordx4 v4, s[52:55], s9 offen lds")
        a("s_add_u32 s5, s8, 14336")
        a(f"s_add_u32 m0, s10, {buf+1024}")
        a(f"buffer_load_dwordx4 v3, s[48:51], s5 offen lds")
        a("s_add_u32 s5, s9, 14336")
        a(f"s_add_u32 m0, s10, {buf+WB+1024}")
        a(f"buffer_load_dwordx4 v4, s[52:55], s5 offen lds")
        a("s_add_u32 s8, s8, 64")
        a("s_add_u32 s9, s9, 114688")
        vm.issue(("c", c), 4)
    dma(0); dma(1)
    if TOUCH1 and G1MAP47:
        a("s_mul_i32 s5, s14, 224")
        a("v_add_u32 v5, s5, v0")
        a("s_mov_b32 s6, 0x12492493")
        a("v_mul_hi_u32 v6, v5, s6")
        a("v_mul_u32_u24 v7, 14, v6")
        a("v_sub_u32 v7, v5, v7")
        a("v_mul_u32_u24 v6, 3584, v6")
        a("v_lshl_add_u32 v6, v7, 7, v6")
        a("s_and_b32 s6, s3, 1")
        a("s_mul_i32 s6, s6, 1792")
        a("v_cmp_gt_u32 vcc, 224, v0")
        a("v_mov_b32 v7, 0x7ffffff0")
        a("v_cndmask_b32 v6, v7, v6, vcc")
        a("buffer_load_dword v10, v6, s[52:55], s6 offen")
        a("s_bfe_u32 s5, s3, 0x20001")
        a("s_mul_i32 s5, s5, 458752")
        a("s_lshl_b32 s6, s14, 14")
        a("s_add_u32 s5, s5, s6")
        a("v_lshlrev_b32 v5, 7, v0")
        a("v_cmp_gt_u32 vcc, 128, v0")
        a("v_mov_b32 v7, 0x7ffffff0")
        a("v_cndmask_b32 v6, v7, v5, vcc")
        a("buffer_load_dword v11, v6, s[48:51], s5 offen")
        vm.issue("touch", 2)
    dma(2); dma(3)
    srd(a, 56, 44, SZ_H, WS_H)
    srd(a, 60, 44, 16384, WS_ST)
    srd(a, 64, 42, 256)
    a("s_and_b32 s15, s7, 1")
    a("s_lshr_b32 s11, s7, 1")
    a("v_and_b32 v5, 31, v2")
    a("v_lshrrev_b32 v6, 5, v2")
    a("v_bfe_u32 v7, v2, 2, 2")
    a("v_xor_b32 v7, v7, v6")
    a("v_lshlrev_b32 v5, 6, v5")
    a("v_lshl_add_u32 v5, v7, 4, v5")
    a("s_lshl_b32 s5, s11, 12")
    a("v_add_u32 v5, s5, v5")
    a("v_xor_b32 v13, 32, v5")
    a("v_bfe_u32 v7, v2, 2, 2")
    a("v_lshl_add_u32 v8, v6, 3, v7")
    a("v_lshlrev_b32 v8, 8, v8")
    a("v_bfe_u32 v9, v2, 4, 1")
    a("v_lshl_add_u32 v8, v9, 5, v8")
    a("v_and_b32 v9, 3, v2")
    a("v_lshl_add_u32 v8, v9, 3, v8")
    a(f"v_add_u32 v8, {WB}, v8")
    a("s_lshl_b32 s5, s15, 1")
    a("s_add_u32 s68, s5, s11")
    a("s_xor_b32 s69, s68, 1")
    a("v_xor_b32 v9, s68, v7")
    a("v_lshl_add_u32 v14, v9, 6, v8")
    a("v_xor_b32 v9, s69, v7")
    a("v_lshl_add_u32 v15, v9, 6, v8")
    SEL = 48; WACC = 52; ACC = 64; S0 = 16; S1 = 32
    a("v_and_b32 v9, 31, v2")
    a("v_cmp_eq_u32 vcc, 0, v9")
    a("v_cmp_eq_u32 s[70:71], 17, v9")
    a("s_or_b64 vcc, vcc, s[70:71]")
    a("v_mov_b32 v9, 0x3f803f80")
    a(f"v_cndmask_b32 v{SEL}, 0, v9, vcc")
    for i in range(1, 4): a(f"v_mov_b32 v{SEL+i}, v{SEL}")
    for i in range(4): a(f"v_mov_b32 v{WACC+i}, 0")
    for i in range(64): a(f"v_mov_b32 v{ACC+i}, 0")
    def reads(c, st, S):
        o = (c % NB) * 8192
        vb = 5 if st == 0 else 13
        a(f"ds_read_b64_tr_b16 v[{S}:{S+1}], v14 offset:{o+st*4096}")
        a(f"ds_read_b64_tr_b16 v[{S+2}:{S+3}], v14 offset:{o+st*4096+1024}")
        a(f"ds_read_b128 v[{S+8}:{S+11}], v{vb} offset:{o}")
        a(f"ds_read_b64_tr_b16 v[{S+4}:{S+5}], v15 offset:{o+st*4096}")
        a(f"ds_read_b64_tr_b16 v[{S+6}:{S+7}], v15 offset:{o+st*4096+1024}")
        a(f"ds_read_b128 v[{S+12}:{S+15}], v{vb} offset:{o+2048}")
    def mfmas(S):
        if NOMFMA: return
        for aa in range(2):
            for b in range(2):
                d = ACC + 16*(2*aa+b)
                a(f"v_mfma_f32_32x32x16_bf16 v[{d}:{d+15}], v[{S+4*aa}:{S+4*aa+3}], v[{S+8+4*b}:{S+8+4*b+3}], v[{d}:{d+15}]")
        a(f"v_mfma_f32_16x16x32_bf16 v[{WACC}:{WACC+3}], v[{SEL}:{SEL+3}], v[{S}:{S+3}], v[{WACC}:{WACC+3}]")
    ST = 56
    for c in range(NCH):
        a(f"s_waitcnt vmcnt({vm.wait_for(('c', c))})")
        a("s_barrier")
        if c == 0: stamp(a, 1)
        if FINE: stamp(a, 8 + c)
        if c == 9:
            a("v_mov_b32 v61, 0")
            a("s_lshl_b32 s72, s12, 2")
            a(f"buffer_load_dword v60, v61, s[64:67], s72 offen {SC}")
            vm.issue("poll")
        if c + 4 < NCH: dma(c + 4)
        reads(c, 0, S0)
        if c > 0: mfmas(S1)
        reads(c, 1, S1)
        a("s_waitcnt lgkmcnt(6)")
        mfmas(S0)
        if c == 10:
            lab = a.newlabel("g1poll"); ok = a.newlabel("g1ok")
            a(f"s_waitcnt vmcnt({vm.wait_for('poll')})")
            a("v_readfirstlane_b32 s73, v60")
            a("s_cmp_ge_u32 s73, 4")
            a(f"s_cbranch_scc1 {ok}")
            if NOWAIT: a(f"s_branch {ok}")
            a("s_mov_b32 s77, 0")
            a.label(lab)
            a("s_add_u32 s77, s77, 1")
            a("s_cmp_ge_u32 s77, 0x40000")
            a(f"s_cbranch_scc1 {ok}")
            a("s_sleep 2")
            a(f"buffer_load_dword v60, v61, s[64:67], s72 offen {SC}")
            a("s_waitcnt vmcnt(0)")
            a("v_readfirstlane_b32 s73, v60")
            a("s_cmp_ge_u32 s73, 4")
            a(f"s_cbranch_scc0 {lab}")
            a.label(ok)
            a("s_lshl_b32 s5, s12, 10")
            a("s_lshl_b32 s6, s11, 9")
            a("s_add_u32 s5, s5, s6")
            a("v_and_b32 v61, 31, v2")
            a("v_lshlrev_b32 v61, 3, v61")
            a(f"buffer_load_dwordx2 v[{ST}:{ST+1}], v61, s[60:63], s5 offen {SC}")
            a(f"buffer_load_dwordx2 v[{ST+2}:{ST+3}], v61, s[60:63], s5 offen offset:256 {SC}")
            vm.issue("stats", 2)
        a("s_waitcnt lgkmcnt(0)")
    mfmas(S1)
    stamp(a, 2)
    WL = 4*8192
    a("s_lshl_b32 s5, s68, 7")
    a("v_and_b32 v9, 15, v2")
    a("v_lshlrev_b32 v9, 2, v9")
    a("v_add_u32 v9, s5, v9")
    a("s_mov_b64 s[70:71], exec")
    a("s_mov_b64 exec, 0xffff")
    a(f"ds_write_b32 v9, v{WACC} offset:{WL}")
    a(f"ds_write_b32 v9, v{WACC+1} offset:{WL+64}")
    a("s_mov_b64 exec, s[70:71]")
    a("s_waitcnt lgkmcnt(0)")
    a("s_barrier")
    WR = 16
    a("v_lshrrev_b32 v9, 5, v2")
    a("v_lshlrev_b32 v9, 4, v9")
    a("s_lshl_b32 s5, s68, 7")
    a("v_add_u32 v10, s5, v9")
    a("s_lshl_b32 s5, s69, 7")
    a("v_add_u32 v11, s5, v9")
    for aa in range(2):
        for q in range(4):
            a(f"ds_read_b128 v[{WR+16*aa+4*q}:{WR+16*aa+4*q+3}], v{10+aa} offset:{WL+32*q}")
    a("s_waitcnt vmcnt(0)")
    a(f"v_mul_f32 v{ST}, v{ST}, v{ST+1}")
    a(f"v_mul_f32 v{ST+2}, v{ST+2}, v{ST+3}")
    a("s_lshl_b32 s4, s12, 2")
    a("s_lshl_b32 s5, s11, 1")
    a("s_add_u32 s4, s4, s5")
    a("s_mul_i32 s4, s4, 112")
    a("s_lshl_b32 s5, s13, 3")
    a("s_add_u32 s4, s4, s5")
    a("s_lshl_b32 s5, s68, 1")
    a("s_add_u32 s74, s4, s5")
    a("s_lshl_b32 s74, s74, 10")
    a("s_lshl_b32 s5, s69, 1")
    a("s_add_u32 s75, s4, s5")
    a("s_lshl_b32 s75, s75, 10")
    a("v_lshlrev_b32 v3, 4, v2")
    a("s_waitcnt lgkmcnt(0)")
    O = 48
    for aa in range(2):
        for b in range(2):
            d = ACC + 16*(2*aa+b); w = WR + 16*aa
            for k in range(8):
                a(f"v_pk_mul_f32 v[{4+2*(k%2)}:{5+2*(k%2)}], v[{w+2*k}:{w+2*k+1}], v[{ST+2*b}:{ST+2*b+1}] op_sel_hi:[1,0]")
                a(f"v_pk_fma_f32 v[{d+2*k}:{d+2*k+1}], v[{d+2*k}:{d+2*k+1}], v[{ST+2*b}:{ST+2*b+1}], v[{4+2*(k%2)}:{5+2*(k%2)}] op_sel:[0,1,0] op_sel_hi:[1,1,1] neg_lo:[0,0,1] neg_hi:[0,0,1]")
            o = d
            for k in range(8):
                a(f"v_cvt_pk_bf16_f32 v{o+k}, v{d+2*k}, v{d+2*k+1}")
                a(f"v_pk_max_i16 v{o+k}, v{o+k}, 0")
            a(f"s_add_u32 s5, s{74+aa}, {b*112*1024}")
            a(f"buffer_store_dwordx4 v[{o}:{o+3}], v3, s[56:59], s5 offen {SC}")
            a(f"buffer_store_dwordx4 v[{o+4}:{o+7}], v3, s[56:59], s5 offen offset:1024 {SC}")

def body_ln2(a):
    X = 8; F = 40
    srd(a, 48, 16, SZ_X)
    srd(a, 56, 44, SZ_X, WS_XNT)
    srd(a, 60, 44, 16384, WS_ST)
    srd(a, 64, 42, 256)
    a("v_lshrrev_b32 v1, 3, v0")
    a("v_and_b32 v2, 7, v0")
    a("s_mul_i32 s4, s3, 28672")
    a("v_mul_u32_u24 v3, 896, v1")
    a("v_lshl_add_u32 v3, v2, 4, v3")
    for j in range(7):
        a(f"buffer_load_dwordx4 v[{X+4*j}:{X+4*j+3}], v3, s[48:51], s4 offen offset:{128*j}")
    a("v_mul_u32_u24 v5, 912, v1")
    a("v_lshl_add_u32 v5, v2, 4, v5")
    for j in range(7):
        a(f"s_waitcnt vmcnt({6-j})")
        if j == 6: stamp(a, 1)
        for k in range(4):
            unpack(a, F+8*j+2*k, F+8*j+2*k+1, X+4*j+k)
    a(f"v_add_f32 v6, v{F}, v{F+1}")
    a(f"v_add_f32 v7, v{F+2}, v{F+3}")
    a(f"v_add_f32 v96, v{F+4}, v{F+5}")
    a(f"v_add_f32 v97, v{F+6}, v{F+7}")
    accs = [6, 7, 96, 97]
    for i in range(8, 56):
        r = accs[i % 4]
        a(f"v_add_f32 v{r}, v{r}, v{F+i}")
    a("v_add_f32 v6, v6, v7")
    a("v_add_f32 v96, v96, v97")
    a("v_add_f32 v6, v6, v96")
    def red8(r):
        a(f"v_add_f32_dpp v{r}, v{r}, v{r} quad_perm:[1,0,3,2] row_mask:0xf bank_mask:0xf")
        a(f"v_add_f32_dpp v{r}, v{r}, v{r} quad_perm:[2,3,0,1] row_mask:0xf bank_mask:0xf")
        a(f"v_add_f32_dpp v{r}, v{r}, v{r} row_half_mirror row_mask:0xf bank_mask:0xf")
    red8(6)
    a(f"s_mov_b32 s5, {f32bits(1.0/448):#x}")
    a("v_mul_f32 v6, s5, v6")
    bf_round(a, 98, 6)
    accs = [7, 96, 97, 99]
    for i in range(4): a(f"v_mov_b32 v{accs[i]}, 0")
    for i in range(56):
        t = 100 + (i % 4)
        a(f"v_sub_f32 v{t}, v{F+i}, v6")
        a(f"v_fmac_f32 v{accs[i%4]}, v{t}, v{t}")
    a("v_add_f32 v7, v7, v96")
    a("v_add_f32 v97, v97, v99")
    a("v_add_f32 v7, v7, v97")
    red8(7)
    a("v_mul_f32 v7, s5, v7")
    bf_round(a, 7, 7)
    a(f"v_add_f32 v7, {f32bits(1e-5):#x}, v7")
    bf_round(a, 7, 7)
    a("v_sqrt_f32 v7, v7")
    bf_round(a, 99, 7)
    a("v_rcp_f32 v99, v99")
    a("s_lshl_b32 s6, s3, 8")
    a("v_lshlrev_b32 v100, 3, v1")
    a(f"buffer_store_dwordx2 v[98:99], v100, s[60:63], s6 offen {SC}")
    a("s_waitcnt vmcnt(0)")
    a("s_barrier")
    lab = a.newlabel("lnpub")
    a("v_readfirstlane_b32 s7, v0")
    a("s_cmp_lt_u32 s7, 64")
    a(f"s_cbranch_scc0 {lab}")
    a("s_lshr_b32 s6, s3, 2")
    a("s_lshl_b32 s6, s6, 2")
    a("v_mov_b32 v100, 0")
    a("v_mov_b32 v101, 1")
    a("s_mov_b64 s[70:71], exec")
    a("s_mov_b64 exec, 1")
    a("buffer_atomic_add v101, v100, s[64:67], s6 offen")
    a("s_mov_b64 exec, s[70:71]")
    a.label(lab)
    stamp(a, 2)
    for j in range(7):
        for k in range(4):
            lo = F+8*j+2*k; hi = lo+1; d = X+4*j+k
            a(f"v_sub_f32 v{lo}, v{lo}, v98")
            a(f"v_sub_f32 v{hi}, v{hi}, v98")
            a(f"v_cvt_pk_bf16_f32 v{d}, v{lo}, v{hi}")
        for k in range(4):
            lo = F+8*j+2*k; hi = lo+1; d = X+4*j+k
            unpack(a, lo, hi, d)
            a(f"v_mul_f32 v{lo}, v{lo}, v99")
            a(f"v_mul_f32 v{hi}, v{hi}, v99")
            a(f"v_cvt_pk_bf16_f32 v{d}, v{lo}, v{hi}")
        a(f"ds_write_b128 v5, v[{X+4*j}:{X+4*j+3}] offset:{128*j}")
    a("v_and_b32 v1, 63, v0")
    a("v_lshrrev_b32 v2, 4, v1")
    a("v_bfe_u32 v3, v1, 2, 2")
    a("v_and_b32 v6, 3, v1")
    a("v_lshl_add_u32 v7, v2, 3, v3")
    a("v_mul_u32_u24 v7, 912, v7")
    a("v_lshl_add_u32 v7, v6, 3, v7")
    a("v_lshrrev_b32 v6, 6, v0")
    a("v_lshl_add_u32 v7, v6, 5, v7")
    a("v_and_b32 v3, 15, v1")
    a("v_lshl_add_u32 v3, v6, 4, v3")
    a("v_lshlrev_b32 v3, 12, v3")
    a("v_lshl_add_u32 v3, v2, 4, v3")
    a("s_lshl_b32 s6, s3, 6")
    a("s_waitcnt lgkmcnt(0)")
    a("s_barrier")
    for t in range(7):
        r = X + 4*t
        a(f"ds_read_b64_tr_b16 v[{r}:{r+1}], v7 offset:{128*t}")
        a(f"ds_read_b64_tr_b16 v[{r+2}:{r+3}], v7 offset:{128*t+4*912}")
    for t in range(7):
        r = X + 4*t
        a(f"s_waitcnt lgkmcnt({2*(6-t)})")
        a(f"buffer_store_dwordx4 v[{r}:{r+3}], v3, s[56:59], s6 offen {SC}")
        if t < 6: a(f"v_add_u32 v3, {64*4096}, v3")

def w2_issue(a, W):
    srd(a, 52, 38, SZ_WF)
    a("v_lshrrev_b32 v1, 5, v0")
    a("v_and_b32 v2, 31, v0")
    a("s_lshr_b32 s4, s3, 1")
    a("s_mul_i32 s4, s4, 14336")
    a("s_and_b32 s5, s3, 1")
    a("s_mul_i32 s5, s5, 448")
    a("s_add_u32 s4, s4, s5")
    a("v_mul_u32_u24 v3, 896, v1")
    a("v_lshl_add_u32 v3, v2, 4, v3")
    a(f"buffer_load_dwordx4 v[{W}:{W+3}], v3, s[52:55], s4 offen")
    a("s_add_u32 s4, s4, 7168")
    a(f"buffer_load_dwordx4 v[{W+4}:{W+7}], v3, s[52:55], s4 offen")

def w2_finish(a, W, ldsb):
    srd(a, 52, 44, SZ_WF, WS_W2F)
    a("v_lshrrev_b32 v1, 5, v0")
    a("v_and_b32 v2, 31, v0")
    a("v_mul_u32_u24 v3, 528, v1")
    a("v_lshl_add_u32 v3, v2, 4, v3")
    a(f"ds_write_b128 v3, v[{W}:{W+3}] offset:{ldsb}")
    a(f"ds_write_b128 v3, v[{W+4}:{W+7}] offset:{ldsb+8*528}")
    a("v_and_b32 v1, 63, v0")
    a("v_lshrrev_b32 v2, 5, v1")
    a("v_bfe_u32 v3, v1, 2, 2")
    a("v_bfe_u32 v4, v1, 4, 1")
    a("v_and_b32 v5, 3, v1")
    a("v_lshlrev_b32 v4, 5, v4")
    a("v_lshl_add_u32 v4, v5, 3, v4")
    a("v_lshrrev_b32 v6, 6, v0")
    a("v_lshl_add_u32 v4, v6, 6, v4")
    a("v_lshl_add_u32 v7, v2, 2, v3")
    a("v_mul_u32_u24 v7, 528, v7")
    a("v_add_u32 v7, v7, v4")
    a("v_lshlrev_b32 v1, 4, v1")
    a("v_readfirstlane_b32 s7, v6")
    a("s_waitcnt lgkmcnt(0)")
    a("s_barrier")
    for rnd in range(2):
        if rnd == 1:
            lab = a.newlabel("rl_skip")
            a("s_cmp_eq_u32 s7, 3")
            a(f"s_cbranch_scc1 {lab}")
        o = 256*rnd; R = W + 4*rnd
        a(f"ds_read_b64_tr_b16 v[{R}:{R+1}], v7 offset:{ldsb+o}")
        a(f"ds_read_b64_tr_b16 v[{R+2}:{R+3}], v7 offset:{ldsb+o+8*528}")
        a("s_and_b32 s5, s3, 1")
        a("s_mul_i32 s5, s5, 7")
        a("s_add_u32 s5, s5, s7")
        if rnd: a("s_add_u32 s5, s5, 4")
        a("s_mul_i32 s5, s5, 112")
        a("s_lshr_b32 s6, s3, 1")
        a("s_add_u32 s5, s5, s6")
        a("s_lshl_b32 s5, s5, 10")
        a("s_waitcnt lgkmcnt(0)")
        a(f"buffer_store_dwordx4 v[{R}:{R+3}], v1, s[52:55], s5 offen {SC}")
        if rnd == 1: a.label(lab)

def body_kg(a):
    W = 148
    kgen_issue(a, 16)
    w2_issue(a, W)
    a("s_waitcnt vmcnt(2) lgkmcnt(0)")
    stamp(a, 1)
    kgen_compute(a, 16, 132)
    stamp(a, 2)
    a("s_waitcnt vmcnt(0)")
    kgen_finish(a, 132, 0, SC)
    w2_finish(a, W, 16384)

def build_k1():
    kern.PROF_V = 159
    a = Asm()
    load_ptrs(a)
    a("s_cmp_ge_u32 s2, 512")
    a("s_cbranch_scc1 L_k1_end")
    a("s_waitcnt lgkmcnt(0)")
    stamp(a, 0)
    a("s_cmp_lt_u32 s2, 224")
    a(f"s_cbranch_scc1 {'L_k1_kg' if SWAP else 'L_k1_g1'}")
    a("s_cmp_lt_u32 s2, 256")
    a("s_cbranch_scc1 L_k1_lna")
    a("s_cmp_lt_u32 s2, 480")
    a(f"s_cbranch_scc1 {'L_k1_g1' if SWAP else 'L_k1_kg'}")
    a("s_sub_u32 s3, s2, 448")
    a("s_branch L_k1_ln")
    a.label("L_k1_lna")
    a("s_sub_u32 s3, s2, 224")
    a.label("L_k1_ln")
    if "ln" not in ROLES: a("s_endpgm")
    body_ln2(a)
    if kern.PROF: a("s_waitcnt vmcnt(0)")
    stamp(a, 3); prof_flush(a, 0, 4)
    a("s_endpgm")
    a.label("L_k1_kg")
    a("s_mov_b32 s3, s2" if SWAP else "s_sub_u32 s3, s2, 256")
    if "kg" not in ROLES: a("s_endpgm")
    body_kg(a)
    if kern.PROF: a("s_waitcnt vmcnt(0)")
    stamp(a, 3); prof_flush(a, 0, 4)
    a("s_endpgm")
    a.label("L_k1_g1")
    a("s_sub_u32 s3, s2, 256" if SWAP else "s_mov_b32 s3, s2")
    if "g1" not in ROLES: a("s_endpgm")
    body_g1(a)
    if kern.PROF: a("s_waitcnt vmcnt(0)")
    stamp(a, 3); prof_flush(a, 0, 4)
    a.label("L_k1_end")
    a("s_endpgm")
    return a

def body_g2(a):
    PF = 8; NK = 28
    vm = VM()
    if G2PRIO: a(f"s_setprio {G2PRIO}")
    srd(a, 48, 44, SZ_WF, WS_W2F)
    srd(a, 52, 44, SZ_H, WS_H)
    xcd_idx(a, 7, 0x24924925, 4)
    if G2SAME == 1:
        a("s_and_b32 s12, s3, 7")
        a("s_mov_b32 s13, 0")
    if G2SAME == 2:
        a("s_and_b32 s12, s3, 7")
    if G2SAME == 3:
        a("s_mov_b32 s13, 0")
    a("v_lshrrev_b32 v1, 6, v0")
    a("v_and_b32 v2, 63, v0")
    a("v_readfirstlane_b32 s7, v1")
    a("v_lshlrev_b32 v3, 4, v2")
    a("s_mul_i32 s4, s7, 28")
    a("s_lshl_b32 s5, s13, 1")
    a("s_mul_i32 s5, s5, 112")
    a("s_add_u32 s5, s5, s4")
    a("s_lshl_b32 s68, s5, 10")
    a(f"s_add_u32 s69, s68, {112*1024}")
    a("s_lshl_b32 s5, s12, 1")
    a("s_mul_i32 s5, s5, 112")
    a("s_add_u32 s5, s5, s4")
    a("s_lshl_b32 s70, s5, 10")
    a(f"s_add_u32 s71, s70, {112*1024}")
    ACC = 16; FR = 80; XR = 208; AR = 216
    def ldl(ks):
        S = FR + 16*(ks % PF); o = (ks % 4)*1024
        L = [[f"buffer_load_dwordx4 v[{S}:{S+3}], v3, s[48:51], s68 offen offset:{o}"],
             [f"buffer_load_dwordx4 v[{S+8}:{S+11}], v3, s[52:55], s70 offen offset:{o}"],
             [f"buffer_load_dwordx4 v[{S+4}:{S+7}], v3, s[48:51], s69 offen offset:{o}"],
             [f"buffer_load_dwordx4 v[{S+12}:{S+15}], v3, s[52:55], s71 offen offset:{o}"]]
        if ks % 4 == 3:
            L[3] += [f"s_add_u32 s{r}, s{r}, 4096" for r in (68, 69, 70, 71)]
        return L
    def ld(ks):
        for g in ldl(ks):
            for ins in g: a(ins)
        vm.issue(("k", ks), 4)
    for ks in range(2): ld(ks)
    srd(a, 56, 44, SZ_X, WS_AOUT)
    srd(a, 60, 16, SZ_X)
    srd(a, 64, 40, SZ_X)
    srd(a, 72, 44, 8192, WS_FLAG)
    a("s_lshr_b32 s8, s7, 1")
    a("s_and_b32 s9, s7, 1")
    a("s_lshl_b32 s4, s12, 6")
    a("s_lshl_b32 s5, s9, 5")
    a("s_add_u32 s4, s4, s5")
    a("s_lshl_b32 s5, s13, 6")
    a("s_lshl_b32 s6, s8, 5")
    a("s_add_u32 s5, s5, s6")
    a("s_mul_i32 s10, s4, 896")
    a("s_lshl_b32 s6, s5, 1")
    a("s_add_u32 s10, s10, s6")
    a("s_lshl_b32 s11, s5, 12")
    a("s_lshl_b32 s6, s4, 1")
    a("s_add_u32 s11, s11, s6")
    a("v_and_b32 v4, 31, v2")
    a("v_lshrrev_b32 v5, 5, v2")
    a("v_mul_u32_u24 v6, 896, v4")
    a("v_lshl_add_u32 v6, v5, 3, v6")
    a("v_lshlrev_b32 v7, 14, v5")
    a("v_lshl_add_u32 v7, v4, 1, v7")
    for q in range(4):
        a(f"buffer_load_dwordx2 v[{XR+2*q}:{XR+2*q+1}], v6, s[60:63], s10 offen offset:{16*q}")
    vm.issue("x", 4)
    for ks in range(2, PF): ld(ks)
    a("v_mov_b32 v11, 0")
    a("s_lshl_b32 s15, s13, 3")
    a("s_and_b32 s5, s12, 7")
    a("s_add_u32 s15, s15, s5")
    a("s_lshl_b32 s15, s15, 7")
    for i in range(64): a(f"v_mov_b32 v{ACC+i}, 0")
    for ks in range(NK):
        a(f"s_waitcnt vmcnt({min(63, vm.wait_for(('k', ks)))})")
        if ks == 0: stamp(a, 1)
        if FINE and ks % 2 == 0: stamp(a, 8 + ks // 2)
        S = FR + 16*(ks % PF)
        L = ldl(ks + PF) if ks + PF < NK else None
        ms = []
        for aa in range(2):
            for b in range(2):
                d = ACC + 16*(2*aa+b)
                ms.append(f"v_mfma_f32_32x32x16_bf16 v[{d}:{d+15}], v[{S+4*aa}:{S+4*aa+3}], v[{S+8+4*b}:{S+8+4*b+3}], v[{d}:{d+15}]")
        a(ms[0]); a(ms[1])
        if L and G2IL:
            for ins in L[0]: a(ins)
        a(ms[2])
        if L and G2IL:
            for ins in L[1]: a(ins)
        a(ms[3])
        if L:
            for g in (L[2:] if G2IL else L):
                for ins in g: a(ins)
            vm.issue(("k", ks + PF), 4)
        if ks + PF == NK - 1:
            a(f"buffer_load_dword v12, v11, s[72:75], s15 offen {SC}")
            vm.issue("poll")
        if ks == NK - 3:
            lab = a.newlabel("g2poll"); ok = a.newlabel("g2ok")
            a(f"s_waitcnt vmcnt({vm.wait_for('poll')})")
            a("v_readfirstlane_b32 s76, v12")
            a("s_cmp_ge_u32 s76, 32")
            a(f"s_cbranch_scc1 {ok}")
            if NOWAIT: a(f"s_branch {ok}")
            a("s_mov_b32 s77, 0")
            a.label(lab)
            a("s_add_u32 s77, s77, 1")
            a("s_cmp_ge_u32 s77, 0x40000")
            a(f"s_cbranch_scc1 {ok}")
            a("s_sleep 8")
            a(f"buffer_load_dword v12, v11, s[72:75], s15 offen {SC}")
            a("s_waitcnt vmcnt(0)")
            a("v_readfirstlane_b32 s76, v12")
            a("s_cmp_ge_u32 s76, 32")
            a(f"s_cbranch_scc0 {lab}")
            a.label(ok)
            for q in range(4):
                for r in range(4):
                    a(f"s_add_u32 s6, s11, {(8*q+r)*4096}")
                    a(f"buffer_load_ushort v{AR+4*q+r}, v7, s[56:59], s6 offen {SC}")
            vm.issue("aout", 16)
    stamp(a, 2)
    a("s_lshl_b32 s4, s7, 14")
    a("v_add_u32 v8, s4, v3")
    for t in range(4):
        lab = a.newlabel("g2w")
        a(f"s_cmp_eq_u32 s7, {t}")
        a(f"s_cbranch_scc1 {lab}")
        for q in range(4):
            a(f"ds_write_b128 v8, v[{ACC+16*t+4*q}:{ACC+16*t+4*q+3}] offset:{t*4096+q*1024}")
        a(f"s_branch {lab}_e")
        a.label(lab)
        for i in range(16): a(f"v_mov_b32 v{FR+i}, v{ACC+16*t+i}")
        a.label(lab + "_e")
    a("s_lshl_b32 s4, s7, 12")
    a("v_add_u32 v8, s4, v3")
    a("s_waitcnt lgkmcnt(0)")
    a("s_barrier")
    R = FR + 16
    for j in range(3):
        a(f"s_add_u32 s4, s7, {1+j}")
        a("s_and_b32 s4, s4, 3")
        a("s_lshl_b32 s4, s4, 14")
        a(f"v_add_u32 v{9+j}, s4, v8")
        for q in range(4):
            a(f"ds_read_b128 v[{R+16*j+4*q}:{R+16*j+4*q+3}], v{9+j} offset:{q*1024}")
    for j in range(3):
        a(f"s_waitcnt lgkmcnt({4*(2-j)})")
        for i in range(16): a(f"v_add_f32 v{FR+i}, v{FR+i}, v{R+16*j+i}")
    a("s_waitcnt vmcnt(0)")
    T = 16
    for q in range(4):
        for hh in range(2):
            f0 = FR + 4*q + 2*hh; x = XR + 2*q + hh; ao = AR + 4*q + 2*hh
            a(f"v_cvt_pk_bf16_f32 v{T}, v{f0}, v{f0+1}")
            unpack(a, T+1, T+2, T)
            unpack(a, T+3, T+4, x)
            a(f"v_lshlrev_b32 v{ao}, 16, v{ao}")
            a(f"v_lshlrev_b32 v{ao+1}, 16, v{ao+1}")
            a(f"v_add_f32 v{T+3}, v{T+3}, v{ao}")
            a(f"v_add_f32 v{T+4}, v{T+4}, v{ao+1}")
            a(f"v_cvt_pk_bf16_f32 v{T}, v{T+3}, v{T+4}")
            unpack(a, T+3, T+4, T)
            a(f"v_add_f32 v{T+1}, v{T+1}, v{T+3}")
            a(f"v_add_f32 v{T+2}, v{T+2}, v{T+4}")
            a(f"v_cvt_pk_bf16_f32 v{24+2*q+hh}, v{T+1}, v{T+2}")
        a(f"buffer_store_dwordx2 v[{24+2*q}:{24+2*q+1}], v6, s[64:67], s10 offen offset:{16*q}")

TOUCH2 = True
G2SAME = 0
G2IL = True
G2PRIO = 0

def body_cv(a):
    kern.body_conv(a, "", SC)
    srd(a, 64, 44, 8192, WS_FLAG)
    a("s_waitcnt vmcnt(0)")
    a("s_barrier")
    lab = a.newlabel("cvpub")
    a("v_readfirstlane_b32 s7, v0")
    a("s_cmp_lt_u32 s7, 64")
    a(f"s_cbranch_scc0 {lab}")
    a("s_lshr_b32 s6, s3, 5")
    a("s_lshl_b32 s6, s6, 10")
    a("v_lshlrev_b32 v1, 7, v0")
    a("v_mov_b32 v2, 1")
    a("s_mov_b64 exec, 0xff")
    a("buffer_atomic_add v2, v1, s[64:67], s6 offen")
    a.label(lab)

def build_k2():
    kern.PROF_V = 233
    a = Asm()
    load_ptrs(a)
    a("s_cmp_ge_u32 s2, 480")
    a("s_cbranch_scc1 L_k2_end")
    if SWAP:
        a("s_cmp_ge_u32 s2, 256")
        a("s_cbranch_scc1 L_k2_g2")
        a("s_cmp_ge_u32 s2, 224")
        a("s_cbranch_scc1 L_k2_end")
    else:
        a("s_cmp_lt_u32 s2, 224")
        a("s_cbranch_scc1 L_k2_g2")
        a("s_cmp_lt_u32 s2, 256")
        a("s_cbranch_scc1 L_k2_end")
    a("s_waitcnt lgkmcnt(0)")
    stamp(a, 0); prof2_start(a)
    a("s_mov_b32 s3, s2" if SWAP else "s_sub_u32 s3, s2, 256")
    if "cv" not in ROLES: a("s_endpgm")
    body_cv(a)
    stamp(a, 3); prof_flush(a, 1, 4); prof2_end(a, 1, 1)
    a("s_endpgm")
    a.label("L_k2_g2")
    a("s_waitcnt lgkmcnt(0)")
    stamp(a, 0); prof2_start(a)
    a("s_sub_u32 s3, s2, 256" if SWAP else "s_mov_b32 s3, s2")
    if "g2" not in ROLES: a("s_endpgm")
    body_g2(a)
    if kern.PROF: a("s_waitcnt vmcnt(0)")
    stamp(a, 3); prof_flush(a, 1, 4); prof2_end(a, 1, 1)
    a.label("L_k2_end")
    a("s_endpgm")
    return a

def build(path):
    assemble([("k1_kernel", build_k1(), 160, 512, 81920), ("k2_kernel", build_k2(), 236, 480, 2*CV_CH)], path)

if __name__ == "__main__":
    kern.PROF = True
    FINE = True
    NOWAIT = True
    TOUCH2 = False
    ROLES = {"g1", "g2"}; build("qp_g.s")
    TOUCH1 = False
    build("qp_g_nt.s")
    NOMFMA = True
    build("qp_g_nt_nm.s")
    TOUCH1 = True
    build("qp_g_nm.s")
    NOMFMA = False
    ROLES = {"g1","ln","kg","g2","cv"}
    NOWAIT = False
    build("qp.s")
    kern.PROF = False
    FINE = False
    build("q.s")
```

```python
from asmgen import Asm, kernel_text
import kern, kern2
from kern import (prof2_start, prof2_end, srd, load_ptrs, f32bits, bf_round, unpack, interleave, kg_row, KG_H, KG_RS,
                  CV_BS, CV_CS, CV_K, CV_CH, WS_H, WS_W2F, WS_XNT, WS_KREV, WS_AOUT, SZ_H, SZ_WF, SZ_X, stamp, prof_flush)
from kern2 import VM, WS_ST, WS_FLAG
SC = "sc1"
HSC = "sc1"
ROLES = {"g1","ln","kg","g2","cv"}
NOWAIT = False; FINE = False; TOUCH1 = True; NOMFMA = False; NOREAD = False; NBUF = 5; PIPE3 = True; LFINE = False; W2LATE = False; KGPRIO = 0; G1PRIO = 1; TLATE = False; EARLY = False; G1FIRST = False
SPIN = 0x40000

def spin_wait(a, vreg, vaddr, srdq, soff, target, first_checked=True):
    lab = a.newlabel("spin"); ok = a.newlabel("spinok")
    a(f"v_readfirstlane_b32 s73, v{vreg}")
    a(f"s_cmp_ge_u32 s73, {target}")
    a(f"s_cbranch_scc1 {ok}")
    if NOWAIT: a(f"s_branch {ok}")
    a("s_mov_b32 s77, 0")
    a.label(lab)
    a("s_add_u32 s77, s77, 1")
    a(f"s_cmp_ge_u32 s77, {SPIN:#x}")
    a(f"s_cbranch_scc1 {ok}")
    a("s_sleep 4")
    a(f"buffer_load_dword v{vreg}, v{vaddr}, s[{srdq}:{srdq+3}], {soff} offen {SC}")
    a("s_waitcnt vmcnt(0)")
    a(f"v_readfirstlane_b32 s73, v{vreg}")
    a(f"s_cmp_ge_u32 s73, {target}")
    a(f"s_cbranch_scc0 {lab}")
    a.label(ok)

def body_g1(a):
    NB = 5; NCH = 14; WB = NB*8192
    WL = 4*8192
    a("s_lshr_b32 s14, s3, 3")
    a("s_mul_hi_u32 s5, s14, 0x24924925")
    a("s_mul_i32 s13, s5, 7")
    a("s_sub_u32 s13, s14, s13")
    a("s_and_b32 s6, s3, 1")
    a("s_mul_i32 s6, s6, 7")
    a("s_add_u32 s13, s13, s6")
    a("s_bfe_u32 s12, s3, 0x20001")
    a("s_lshl_b32 s12, s12, 2")
    a("s_add_u32 s12, s12, s5")
    a("v_lshrrev_b32 v2, 6, v0")
    a("v_and_b32 v3, 63, v0")
    a("v_readfirstlane_b32 s7, v2")
    a("s_cmp_lt_u32 s7, 4")
    a("s_cbranch_scc1 L_g1_compute")
    vm = VM()
    srd(a, 48, 16, SZ_X)
    srd(a, 52, 36, SZ_WF)
    a("s_sub_u32 s7, s7, 4")
    a("v_lshrrev_b32 v8, 2, v3")
    a("v_and_b32 v4, 3, v3")
    a("v_bfe_u32 v5, v3, 4, 2")
    a("v_xor_b32 v4, v4, v5")
    a("v_mul_u32_u24 v8, 896, v8")
    a("v_lshl_add_u32 v8, v4, 4, v8")
    a("v_lshrrev_b32 v9, 4, v3")
    a("v_and_b32 v5, 15, v3")
    a("v_lshlrev_b32 v6, 2, v9")
    a("v_xor_b32 v5, v5, v6")
    a("v_mul_u32_u24 v9, 3584, v9")
    a("v_lshl_add_u32 v9, v5, 4, v9")
    a("s_lshl_b32 s8, s12, 2")
    a("s_add_u32 s8, s8, s7")
    a("s_mul_i32 s8, s8, 28672")
    a("s_mul_i32 s9, s7, 28672")
    a("s_lshl_b32 s5, s13, 8")
    a("s_add_u32 s9, s9, s5")
    a("s_lshl_b32 s10, s7, 11")
    def dma(c):
        buf = (c % NB) * 8192
        a(f"s_add_u32 m0, s10, {buf}")
        a("s_add_u32 s5, s8, 14336")
        a(f"buffer_load_dwordx4 v8, s[48:51], s8 offen lds")
        a(f"s_add_u32 m0, s10, {buf+WB}")
        a("s_add_u32 s6, s9, 14336")
        a(f"buffer_load_dwordx4 v9, s[52:55], s9 offen lds")
        a(f"s_add_u32 m0, s10, {buf+1024}")
        a("s_add_u32 s8, s8, 64")
        a(f"buffer_load_dwordx4 v8, s[48:51], s5 offen lds")
        a(f"s_add_u32 m0, s10, {buf+WB+1024}")
        a("s_add_u32 s9, s9, 114688")
        a(f"buffer_load_dwordx4 v9, s[52:55], s6 offen lds")
        vm.issue(("c", c), 4)
    AHEAD = 5 if EARLY else 4
    for c in range(4): dma(c)
    def touches():
        a("v_add_u32 v10, -256, v0")
        a("s_mul_i32 s5, s14, 224")
        a("v_add_u32 v5, s5, v10")
        a("s_mov_b32 s6, 0x12492493")
        a("v_mul_hi_u32 v6, v5, s6")
        a("v_mul_u32_u24 v7, 14, v6")
        a("v_sub_u32 v7, v5, v7")
        a("v_mul_u32_u24 v6, 3584, v6")
        a("v_lshl_add_u32 v6, v7, 7, v6")
        a("s_and_b32 s6, s3, 1")
        a("s_mul_i32 s6, s6, 1792")
        a("v_cmp_gt_u32 vcc, 224, v10")
        a("v_mov_b32 v7, 0x7ffffff0")
        a("v_cndmask_b32 v6, v7, v6, vcc")
        a("buffer_load_dword v11, v6, s[52:55], s6 offen")
        a("s_bfe_u32 s5, s3, 0x20001")
        a("s_mul_i32 s5, s5, 458752")
        a("s_lshl_b32 s6, s14, 14")
        a("s_add_u32 s5, s5, s6")
        a("v_lshlrev_b32 v5, 7, v10")
        a("v_cmp_gt_u32 vcc, 128, v10")
        a("v_mov_b32 v7, 0x7ffffff0")
        a("v_cndmask_b32 v6, v7, v5, vcc")
        a("buffer_load_dword v12, v6, s[48:51], s5 offen")
        vm.issue("touch", 2)
    if TOUCH1 and not TLATE: touches()
    srd(a, 60, 44, 16384, WS_ST)
    srd(a, 64, 42, 256)
    a("s_cmp_eq_u32 s7, 0")
    a("s_cselect_b32 s5, 0, 0x7ffffff0")
    a("v_mov_b32 v13, s5")
    a("s_lshl_b32 s72, s12, 2")
    if EARLY: dma(4)
    a(f"s_waitcnt vmcnt({vm.wait_for(('c', 0))})")
    a("s_barrier")
    if TOUCH1 and TLATE: touches()
    for c in range(NCH - 1):
        a(f"s_waitcnt vmcnt({vm.wait_for(('c', c + 1))})")
        a("s_barrier")
        if LFINE:
            kern.PROF_V = 20; stamp(a, 8 + c); kern.PROF_V = 1
        if c + AHEAD < NCH: dma(c + AHEAD)
        if c == 8:
            a(f"buffer_load_dword v14, v13, s[64:67], s72 offen {SC}")
            vm.issue("poll")
        if c == 11:
            a(f"s_waitcnt vmcnt({vm.wait_for('poll')})")
            labs = a.newlabel("g1sk")
            a("s_cmp_eq_u32 s7, 0")
            a(f"s_cbranch_scc0 {labs}")
            spin_wait(a, 14, 13, 64, "s72", 2)
            a.label(labs)
            a("s_lshl_b32 s5, s12, 10")
            a("v_lshlrev_b32 v14, 4, v3")
            a("v_add_u32 v14, v13, v14")
            a(f"buffer_load_dwordx4 v[16:19], v14, s[60:63], s5 offen {SC}")
            vm.issue("stats")
    lab_end = a.newlabel("g1ldend")
    a("s_cmp_eq_u32 s7, 0")
    a(f"s_cbranch_scc0 {lab_end}")
    a("s_waitcnt vmcnt(0)")
    a(f"ds_write_b128 v14, v[16:19] offset:{WL+1024}")
    a("s_waitcnt lgkmcnt(0)")
    a("s_barrier")
    a.label(lab_end)
    if LFINE:
        kern.PROF_V = 20; prof_flush(a, 2, 4, 256); kern.PROF_V = 1
    a("s_endpgm")
    a.label("L_g1_compute")
    if G1PRIO: a(f"s_setprio {G1PRIO}")
    srd(a, 56, 44, SZ_H, WS_H)
    a("s_and_b32 s15, s7, 1")
    a("s_lshr_b32 s11, s7, 1")
    a("v_and_b32 v4, 31, v3")
    a("v_lshrrev_b32 v6, 5, v3")
    a("v_bfe_u32 v7, v3, 2, 2")
    a("v_xor_b32 v7, v7, v6")
    a("v_lshlrev_b32 v4, 6, v4")
    a("v_lshl_add_u32 v4, v7, 4, v4")
    a("s_lshl_b32 s5, s11, 12")
    a("v_add_u32 v4, s5, v4")
    a("v_xor_b32 v5, 32, v4")
    a("v_bfe_u32 v7, v3, 2, 2")
    a("v_lshl_add_u32 v8, v6, 3, v7")
    a("v_lshlrev_b32 v8, 8, v8")
    a("v_bfe_u32 v9, v3, 4, 1")
    a("v_lshl_add_u32 v8, v9, 5, v8")
    a("v_and_b32 v9, 3, v3")
    a("v_lshl_add_u32 v8, v9, 3, v8")
    a(f"v_add_u32 v8, {WB}, v8")
    a("s_lshl_b32 s5, s15, 1")
    a("s_add_u32 s68, s5, s11")
    a("s_xor_b32 s69, s68, 1")
    a("v_xor_b32 v9, s69, v7")
    a("v_xor_b32 v6, s68, v7")
    a("v_lshl_add_u32 v7, v9, 6, v8")
    a("v_lshl_add_u32 v6, v6, 6, v8")
    SEL = 8; WACC = 12; ACC = 64; SETS = [16, 32, 48]
    a("v_and_b32 v2, 31, v3")
    a("v_cmp_eq_u32 vcc, 0, v2")
    a("v_cmp_eq_u32 s[70:71], 17, v2")
    a("s_or_b64 vcc, vcc, s[70:71]")
    a("v_mov_b32 v2, 0x3f803f80")
    a(f"v_cndmask_b32 v{SEL}, 0, v2, vcc")
    for i in range(1, 4): a(f"v_mov_b32 v{SEL+i}, v{SEL}")
    for i in range(4): a(f"v_mov_b32 v{WACC+i}, 0")
    for i in range(64): a(f"v_mov_b32 v{ACC+i}, 0")
    def rlist(c, st, S):
        if NOREAD: return []
        o = (c % NB) * 8192
        vb = 4 if st == 0 else 5
        return [f"ds_read_b64_tr_b16 v[{S}:{S+1}], v6 offset:{o+st*4096}",
                f"ds_read_b64_tr_b16 v[{S+2}:{S+3}], v6 offset:{o+st*4096+1024}",
                f"ds_read_b128 v[{S+8}:{S+11}], v{vb} offset:{o}",
                f"ds_read_b128 v[{S+12}:{S+15}], v{vb} offset:{o+2048}",
                f"ds_read_b64_tr_b16 v[{S+4}:{S+5}], v7 offset:{o+st*4096}",
                f"ds_read_b64_tr_b16 v[{S+6}:{S+7}], v7 offset:{o+st*4096+1024}"]
    def mlist(S):
        if NOMFMA: return []
        m = []
        for aa in range(2):
            for b in range(2):
                d = ACC + 16*(2*aa+b)
                m.append(f"v_mfma_f32_32x32x16_bf16 v[{d}:{d+15}], v[{S+4*aa}:{S+4*aa+3}], v[{S+8+4*b}:{S+8+4*b+3}], v[{d}:{d+15}]")
        m.append(f"v_mfma_f32_16x16x32_bf16 v[{WACC}:{WACC+3}], v[{SEL}:{SEL+3}], v[{S}:{S+3}], v[{WACC}:{WACC+3}]")
        return m
    a("s_barrier")
    stamp(a, 1)
    for ins in rlist(0, 0, SETS[0]) + rlist(0, 1, SETS[1]): a(ins)
    if EARLY: a("s_waitcnt lgkmcnt(0)")
    for c in range(NCH):
        if c < NCH - 1: a("s_barrier")
        if FINE: stamp(a, 8 + c)
        nxt = c + 1 < NCH
        for st in range(2):
            s_ = 2*c + st
            last = (s_ == 2*NCH - 1)
            newer = 0 if last else 6
            if EARLY and st == 0: newer = 0 if c > 0 else 0
            if not (EARLY and st == 0): a(f"s_waitcnt lgkmcnt({newer})")
            R = rlist(c + 1, st, SETS[(s_ + 2) % 3]) if nxt else []
            M = mlist(SETS[s_ % 3])
            pat = [1, 2, 1, 2, 0]
            ri = 0
            for i, m in enumerate(M):
                a(m)
                for _ in range(pat[i]):
                    if ri < len(R): a(R[ri]); ri += 1
            while ri < len(R): a(R[ri]); ri += 1
        if EARLY and nxt: a("s_waitcnt lgkmcnt(0)")
    stamp(a, 2)
    a("v_and_b32 v3, 63, v0")
    a("s_lshl_b32 s5, s68, 7")
    a("v_and_b32 v2, 15, v3")
    a("v_lshlrev_b32 v2, 2, v2")
    a("v_add_u32 v2, s5, v2")
    a("s_mov_b64 s[70:71], exec")
    a("s_mov_b64 exec, 0xffff")
    a(f"ds_write_b32 v2, v{WACC} offset:{WL}")
    a(f"ds_write_b32 v2, v{WACC+1} offset:{WL+64}")
    a("s_mov_b64 exec, s[70:71]")
    a("s_waitcnt lgkmcnt(0)")
    a("s_barrier")
    stamp(a, 4)
    WR = 16; ST = 48
    a("v_lshrrev_b32 v2, 5, v3")
    a("v_lshlrev_b32 v2, 4, v2")
    a("s_lshl_b32 s5, s68, 7")
    a("v_add_u32 v4, s5, v2")
    a("s_lshl_b32 s5, s69, 7")
    a("v_add_u32 v5, s5, v2")
    a("v_and_b32 v2, 31, v3")
    a("v_lshlrev_b32 v2, 3, v2")
    a("s_lshl_b32 s5, s11, 9")
    a("v_add_u32 v2, s5, v2")
    a(f"ds_read_b64 v[{ST}:{ST+1}], v2 offset:{WL+1024}")
    a(f"ds_read_b64 v[{ST+2}:{ST+3}], v2 offset:{WL+1024+256}")
    for aa in range(2):
        for q in range(4):
            a(f"ds_read_b128 v[{WR+16*aa+4*q}:{WR+16*aa+4*q+3}], v{4+aa} offset:{WL+32*q}")
    a("s_lshl_b32 s4, s12, 2")
    a("s_lshl_b32 s5, s11, 1")
    a("s_add_u32 s4, s4, s5")
    a("s_mul_i32 s4, s4, 112")
    a("s_lshl_b32 s5, s13, 3")
    a("s_add_u32 s4, s4, s5")
    a("s_lshl_b32 s5, s68, 1")
    a("s_add_u32 s74, s4, s5")
    a("s_lshl_b32 s74, s74, 10")
    a("s_lshl_b32 s5, s69, 1")
    a("s_add_u32 s75, s4, s5")
    a("s_lshl_b32 s75, s75, 10")
    a("v_lshlrev_b32 v3, 4, v3")
    a("s_waitcnt lgkmcnt(8)")
    a(f"v_mul_f32 v{ST}, v{ST}, v{ST+1}")
    a(f"v_mul_f32 v{ST+2}, v{ST+2}, v{ST+3}")
    a("s_waitcnt lgkmcnt(0)")
    TT = 52
    for aa in range(2):
        for b in range(2):
            d = ACC + 16*(2*aa+b); w = WR + 16*aa
            for k in range(8):
                t = TT + 2*(k % 4)
                a(f"v_pk_mul_f32 v[{t}:{t+1}], v[{w+2*k}:{w+2*k+1}], v[{ST+2*b}:{ST+2*b+1}] op_sel_hi:[1,0]")
                a(f"v_pk_fma_f32 v[{d+2*k}:{d+2*k+1}], v[{d+2*k}:{d+2*k+1}], v[{ST+2*b}:{ST+2*b+1}], v[{t}:{t+1}] op_sel:[0,1,0] op_sel_hi:[1,1,1] neg_lo:[0,0,1] neg_hi:[0,0,1]")
            for k in range(8):
                a(f"v_cvt_pk_bf16_f32 v{d+k}, v{d+2*k}, v{d+2*k+1}")
                a(f"v_pk_max_i16 v{d+k}, v{d+k}, 0")
            a(f"s_add_u32 s5, s{74+aa}, {b*112*1024}")
            a(f"buffer_store_dwordx4 v[{d}:{d+3}], v3, s[56:59], s5 offen {HSC}")
            a(f"buffer_store_dwordx4 v[{d+4}:{d+7}], v3, s[56:59], s5 offen offset:1024 {HSC}")
    stamp(a, 5)

def body_ln(a):
    X = 8; F = 40
    srd(a, 48, 16, SZ_X)
    srd(a, 56, 44, SZ_X, WS_XNT)
    srd(a, 60, 44, 16384, WS_ST)
    srd(a, 64, 42, 256)
    labz = a.newlabel("lnz")
    a("s_cmp_eq_u32 s3, 0")
    a(f"s_cbranch_scc0 {labz}")
    srd(a, 68, 44, 8192, WS_FLAG)
    a("v_lshlrev_b32 v1, 7, v0")
    a("v_mov_b32 v2, 0")
    a(f"buffer_store_dword v2, v1, s[68:71], 0 offen {SC}")
    a.label(labz)
    a("v_lshrrev_b32 v1, 3, v0")
    a("v_and_b32 v2, 7, v0")
    a("s_mul_i32 s4, s3, 57344")
    a("v_mul_u32_u24 v3, 896, v1")
    a("v_lshl_add_u32 v3, v2, 4, v3")
    for j in range(7):
        a(f"buffer_load_dwordx4 v[{X+4*j}:{X+4*j+3}], v3, s[48:51], s4 offen offset:{128*j}")
    a("v_mul_u32_u24 v5, 912, v1")
    a("v_lshl_add_u32 v5, v2, 4, v5")
    for j in range(7):
        a(f"s_waitcnt vmcnt({6-j})")
        if j == 6: stamp(a, 1)
        for k in range(4):
            unpack(a, F+8*j+2*k, F+8*j+2*k+1, X+4*j+k)
    a(f"v_add_f32 v6, v{F}, v{F+1}")
    a(f"v_add_f32 v7, v{F+2}, v{F+3}")
    a(f"v_add_f32 v96, v{F+4}, v{F+5}")
    a(f"v_add_f32 v97, v{F+6}, v{F+7}")
    accs = [6, 7, 96, 97]
    for i in range(8, 56):
        r = accs[i % 4]
        a(f"v_add_f32 v{r}, v{r}, v{F+i}")
    a("v_add_f32 v6, v6, v7")
    a("v_add_f32 v96, v96, v97")
    a("v_add_f32 v6, v6, v96")
    def red8(r):
        a(f"v_add_f32_dpp v{r}, v{r}, v{r} quad_perm:[1,0,3,2] row_mask:0xf bank_mask:0xf")
        a(f"v_add_f32_dpp v{r}, v{r}, v{r} quad_perm:[2,3,0,1] row_mask:0xf bank_mask:0xf")
        a(f"v_add_f32_dpp v{r}, v{r}, v{r} row_half_mirror row_mask:0xf bank_mask:0xf")
    red8(6)
    a(f"s_mov_b32 s5, {f32bits(1.0/448):#x}")
    a("v_mul_f32 v6, s5, v6")
    bf_round(a, 98, 6)
    accs = [7, 96, 97, 99]
    for i in range(4): a(f"v_mov_b32 v{accs[i]}, 0")
    for i in range(56):
        t = 100 + (i % 4)
        a(f"v_sub_f32 v{t}, v{F+i}, v6")
        a(f"v_fmac_f32 v{accs[i%4]}, v{t}, v{t}")
    a("v_add_f32 v7, v7, v96")
    a("v_add_f32 v97, v97, v99")
    a("v_add_f32 v7, v7, v97")
    red8(7)
    a("v_mul_f32 v7, s5, v7")
    bf_round(a, 7, 7)
    a(f"v_add_f32 v7, {f32bits(1e-5):#x}, v7")
    bf_round(a, 7, 7)
    a("v_sqrt_f32 v7, v7")
    bf_round(a, 99, 7)
    a("v_rcp_f32 v99, v99")
    a("s_lshl_b32 s6, s3, 9")
    a("v_lshlrev_b32 v100, 3, v1")
    a(f"buffer_store_dwordx2 v[98:99], v100, s[60:63], s6 offen {SC}")
    for j in range(7):
        for k in range(4):
            lo = F+8*j+2*k; hi = lo+1; d = X+4*j+k
            a(f"v_sub_f32 v{lo}, v{lo}, v98")
            a(f"v_sub_f32 v{hi}, v{hi}, v98")
            a(f"v_cvt_pk_bf16_f32 v{d}, v{lo}, v{hi}")
        if j == 1:
            a("s_waitcnt vmcnt(0)")
            a("s_barrier")
            lab = a.newlabel("lnpub")
            a("v_readfirstlane_b32 s7, v0")
            a("s_cmp_lt_u32 s7, 64")
            a(f"s_cbranch_scc0 {lab}")
            a("s_lshr_b32 s6, s3, 1")
            a("s_lshl_b32 s6, s6, 2")
            a("v_mov_b32 v100, 0")
            a("v_mov_b32 v101, 1")
            a("s_mov_b64 s[70:71], exec")
            a("s_mov_b64 exec, 1")
            a("buffer_atomic_add v101, v100, s[64:67], s6 offen")
            a("s_mov_b64 exec, s[70:71]")
            a.label(lab)
            stamp(a, 2)
        for k in range(4):
            lo = F+8*j+2*k; hi = lo+1; d = X+4*j+k
            unpack(a, lo, hi, d)
            a(f"v_mul_f32 v{lo}, v{lo}, v99")
            a(f"v_mul_f32 v{hi}, v{hi}, v99")
            a(f"v_cvt_pk_bf16_f32 v{d}, v{lo}, v{hi}")
        a(f"ds_write_b128 v5, v[{X+4*j}:{X+4*j+3}] offset:{128*j}")
    a("v_and_b32 v1, 63, v0")
    a("v_lshrrev_b32 v2, 4, v1")
    a("v_bfe_u32 v3, v1, 2, 2")
    a("v_and_b32 v6, 3, v1")
    a("v_bfe_u32 v8, v0, 6, 1")
    a("v_lshl_add_u32 v7, v2, 3, v3")
    a("v_lshl_add_u32 v7, v8, 5, v7")
    a("v_mul_u32_u24 v7, 912, v7")
    a("v_lshl_add_u32 v7, v6, 3, v7")
    a("v_lshrrev_b32 v6, 7, v0")
    a("v_lshl_add_u32 v7, v6, 5, v7")
    a("v_and_b32 v3, 15, v1")
    a("v_lshl_add_u32 v3, v6, 4, v3")
    a("v_lshlrev_b32 v3, 12, v3")
    a("v_lshl_add_u32 v3, v2, 4, v3")
    a("v_lshl_add_u32 v3, v8, 6, v3")
    a("s_lshl_b32 s6, s3, 7")
    a("s_waitcnt lgkmcnt(0)")
    a("s_barrier")
    R = 40
    for t in range(7):
        r = R + 4*t
        a(f"ds_read_b64_tr_b16 v[{r}:{r+1}], v7 offset:{128*t}")
        a(f"ds_read_b64_tr_b16 v[{r+2}:{r+3}], v7 offset:{128*t+4*912}")
    for t in range(7):
        r = R + 4*t
        a(f"s_waitcnt lgkmcnt({2*(6-t)})")
        a(f"buffer_store_dwordx4 v[{r}:{r+3}], v3, s[56:59], s6 offen {SC}")
        if t < 6: a(f"v_add_u32 v3, {64*4096}, v3")

KG8_W = 32 * KG_RS
def body_kg(a):
    LOG2E = 1.4426950408889634
    SZP = 448*256*2
    P = 8
    if KGPRIO: a(f"s_setprio {KGPRIO}")
    for i, ptr in enumerate([18, 20, 22, 24, 26, 28]):
        srd(a, 48 + 4*i, ptr, SZP)
    a("s_lshl_b32 s4, s3, 10")
    a("v_lshlrev_b32 v3, 1, v0")
    for i in range(6):
        a(f"buffer_load_ushort v{P+i}, v3, s[{48+4*i}:{51+4*i}], s4 offen")
    a("s_lshl_b32 s5, s3, 2")
    a("s_load_dword s8, s[30:31], s5")
    W = 124
    def w2load():
        srd(a, 72, 38, SZ_WF)
        a("v_lshrrev_b32 v116, 5, v0")
        a("v_and_b32 v117, 31, v0")
        a("s_lshr_b32 s4, s3, 1")
        a("s_mul_i32 s4, s4, 14336")
        a("s_and_b32 s5, s3, 1")
        a("s_mul_i32 s5, s5, 448")
        a("s_add_u32 s4, s4, s5")
        a("v_mul_u32_u24 v116, 896, v116")
        a("v_lshl_add_u32 v116, v117, 4, v116")
        a(f"buffer_load_dwordx4 v[{W}:{W+3}], v116, s[72:75], s4 offen")
    if not W2LATE: w2load()
    a("v_lshrrev_b32 v1, 6, v0")
    a("v_and_b32 v2, 63, v0")
    a(f"v_mul_u32_u24 v6, {KG8_W}, v1")
    a("v_lshl_add_u32 v7, v2, 2, v6")
    a("v_and_b32 v3, 31, v2")
    a(f"v_mul_u32_u24 v3, {KG_RS}, v3")
    a("v_add_u32 v6, v6, v3")
    a("v_lshrrev_b32 v3, 5, v2")
    a("v_lshl_add_u32 v6, v3, 4, v6")
    BF = 16; ACC = 48; CH = 64; T = 108
    for i in range(16): a(f"v_mov_b32 v{ACC+i}, 0")
    a("s_waitcnt lgkmcnt(0)")
    a("v_lshrrev_b32 v4, 8, v0")
    a("v_mov_b32 v5, s8")
    a("v_lshlrev_b32 v3, 16, v5")
    a("v_and_b32 v5, 0xffff0000, v5")
    a("v_cmp_eq_u32 vcc, 0, v4")
    a("v_cndmask_b32 v5, v5, v3, vcc")
    a(f"v_mul_f32 v5, {f32bits(LOG2E):#x}, v5")
    a("v_exp_f32 v5, v5")
    bf_round(a, 5, 5)
    a("s_waitcnt vmcnt(0)" if W2LATE else "s_waitcnt vmcnt(1)")
    stamp(a, 1)
    if W2LATE: w2load()
    for i in range(6): a(f"v_lshlrev_b32 v{P+i}, 16, v{P+i}")
    a(f"v_mul_f32 v14, v5, v{P}")
    a(f"v_mul_f32 v15, v5, v{P+1}")
    a(f"v_mul_f32 v14, {f32bits(LOG2E):#x}, v14")
    a("v_mul_f32 v15, 0.15915494, v15")
    a(f"v_mul_f32 v{P+2}, v5, v{P+2}")
    a(f"v_mul_f32 v{P+3}, v5, v{P+3}")
    regs = {}; nxt = [CH]
    def alloc(name):
        r = nxt[0]; nxt[0] += 2
        assert nxt[0] <= T, name
        regs[name] = (r, r + 1); return regs[name]
    def cmul(dst, x, w):
        (dr, di), (xr, xi), (wr, wi) = dst, x, w
        return [f"v_mul_f32 v{dr}, v{xi}, v{wi}", f"v_mul_f32 v{di}, v{xi}, v{wr}",
                f"v_fma_f32 v{dr}, v{xr}, v{wr}, -v{dr}", f"v_fma_f32 v{di}, v{xr}, v{wi}, v{di}"]
    tcount = [0, 0, 0, 0]; cur = [0]
    def emitrow(row, z, neg):
        t = T + 2*cur[0] + (tcount[cur[0]] % 2); tcount[cur[0]] += 1
        n = "-" if neg else ""
        return [f"v_cvt_pk_bf16_f32 v{t}, v{z[0]}, {n}v{z[1]}", f"ds_write_b32 v7, v{t} offset:{row*KG_RS}"]
    def direct(dst, tmul, tmp):
        (dr, di) = dst
        return [f"v_mul_f32 v{tmp}, {f32bits(float(tmul)):#x}, v14", f"v_mul_f32 v{tmp+1}, {f32bits(float(tmul)):#x}, v15",
                f"v_exp_f32 v{tmp}, v{tmp}", f"v_fract_f32 v{tmp+1}, v{tmp+1}",
                f"v_cos_f32 v{dr}, v{tmp+1}", f"v_sin_f32 v{di}, v{tmp+1}",
                f"v_mul_f32 v{dr}, v{dr}, v{tmp}", f"v_mul_f32 v{di}, v{di}, v{tmp}"]
    X0 = alloc("X0"); w1 = alloc("w1"); w8 = alloc("w8"); w256 = alloc("w256"); w512 = alloc("w512"); w1024 = alloc("w1024")
    w16 = alloc("w16"); ya = [alloc("ya0"), alloc("ya1")]; yb = [alloc("yb0"), alloc("yb1")]
    c0 = cmul(X0, (P+4, P+5), (P+2, P+3))
    for ins in interleave([direct(w8, 8, 86), direct(w16, 16, 88), direct(w1, 1, 90), direct(w256, 256, 92), c0]): a(ins)
    cur[0] = 2
    chY0 = [f"v_mov_b32 v{T+8}, 0x3f80", f"ds_write_b32 v7, v{T+8} offset:0"] + emitrow(2, w16, False)
    prev = w16
    for k, j in enumerate(range(4, 32, 2)):
        d = ya[k % 2]; chY0 += cmul(d, prev, w16) + emitrow(j, d, False); prev = d
    cur[0] = 3
    chY1 = emitrow(1, w8, False); prev = w8
    for k, j in enumerate(range(3, 32, 2)):
        d = yb[k % 2]; chY1 += cmul(d, prev, w16) + emitrow(j, d, False); prev = d
    nxt_save = nxt[0]
    X = {0: X0}
    for h in [8, 256, 264, 512, 520, 2, 4]: X[h] = alloc(f"X{h}")
    chP = cmul(w512, w256, w256) + cmul(X[8], X0, w8) + cmul(w1024, w512, w512) + cmul(X[256], X0, w256) + cmul(X[264], X[8], w256) + cmul(X[512], X0, w512) + cmul(X[520], X[8], w512)
    for ins in interleave([chY0, chY1, chP]): a(ins)
    a("s_waitcnt lgkmcnt(0)")
    for ks in range(8):
        a(f"ds_read_b128 v[{BF+4*ks}:{BF+4*ks+3}], v6 offset:{ks*32}")
    t1, t2, t3, t4, t5 = w16, ya[0], ya[1], yb[0], yb[1]
    for h in [768, 776, 6]: X[h] = alloc(f"X{h}")
    cur[0] = 0
    chA = emitrow(KG_H[0], X0, True)
    chA += cmul(t1, X0, w1) + emitrow(KG_H[1], t1, True)
    chA += cmul(X[2], t1, w1) + emitrow(KG_H[2], X[2], True)
    chA += cmul(t1, X[2], w1) + emitrow(KG_H[3], t1, True)
    chA += cmul(X[4], t1, w1) + emitrow(KG_H[4], X[4], True)
    chA += cmul(t1, X[4], w1) + emitrow(KG_H[5], t1, True)
    chA += cmul(X[6], t1, w1) + emitrow(KG_H[6], X[6], True)
    chA += cmul(t1, X[6], w1) + emitrow(KG_H[7], t1, True)
    chA += cmul(t1, X[2], w256) + emitrow(KG_H[258], t1, True)
    chA += cmul(t1, X[6], w256) + emitrow(KG_H[262], t1, True)
    cur[0] = 1
    chB = emitrow(KG_H[256], X[256], True) + emitrow(KG_H[264], X[264], True) + emitrow(KG_H[512], X[512], True) + emitrow(KG_H[520], X[520], True)
    chB += cmul(X[768], X[256], w512) + emitrow(KG_H[768], X[768], True)
    chB += cmul(X[776], X[264], w512) + emitrow(KG_H[776], X[776], True)
    for i, (h, src) in enumerate([(1024, 0), (1032, 8), (1280, 256), (1288, 264)]):
        t = t2 if i % 2 == 0 else t3
        chB += cmul(t, X[src], w1024) + emitrow(KG_H[h], t, True)
    cur[0] = 2
    chC = []
    for i, (h, src) in enumerate([(1536, 512), (1544, 520), (1792, 768), (1800, 776)]):
        t = t4 if i % 2 == 0 else t5
        chC.append((h, src, t))
    a("s_waitcnt lgkmcnt(0)")
    for ins in interleave([chA, chB]): a(ins)
    chC2 = []
    for (h, src, t) in chC: chC2 += cmul(t, X[src], w1024) + emitrow(KG_H[h], t, True)
    cur[0] = 3
    chD = cmul(t2, X[4], w256) + emitrow(KG_H[260], t2, True) + cmul(t3, t2, w512) + emitrow(KG_H[772], t3, True)
    cur[0] = 0
    chE = cmul(t1, X[4], w512) + emitrow(KG_H[516], t1, True)
    for ins in interleave([chC2, chD, chE]): a(ins)
    AF = CH
    a("s_waitcnt lgkmcnt(0)")
    for ks in range(8):
        a(f"ds_read_b128 v[{AF+4*ks}:{AF+4*ks+3}], v6 offset:{ks*32}")
    for ks in range(8):
        a(f"s_waitcnt lgkmcnt({7-ks})")
        a(f"v_mfma_f32_32x32x16_bf16 v[{ACC}:{ACC+15}], v[{AF+4*ks}:{AF+4*ks+3}], v[{BF+4*ks}:{BF+4*ks+3}], v[{ACC}:{ACC+15}]")
    stamp(a, 2)
    srd(a, 48, 44, SZ_X, WS_KREV)
    srd(a, 52, 44, SZ_WF, WS_W2F)
    a("v_readfirstlane_b32 s7, v1")
    a("s_waitcnt vmcnt(0)")
    stamp(a, 4)
    a("s_barrier")
    stamp(a, 5)
    a("v_lshrrev_b32 v3, 5, v0")
    a("v_and_b32 v4, 31, v0")
    a("v_mul_u32_u24 v3, 528, v3")
    a("v_lshl_add_u32 v3, v4, 4, v3")
    a(f"ds_write_b128 v3, v[{W}:{W+3}] offset:32768")
    a("s_and_b32 s9, s7, 3")
    a("s_lshr_b32 s10, s7, 2")
    a("s_mul_i32 s11, s10, 12288")
    a("v_lshlrev_b32 v4, 4, v2")
    a("v_add_u32 v4, s11, v4")
    lab1 = a.newlabel("kg_nw"); lab2 = a.newlabel("kg_w2"); lab3 = a.newlabel("kg_end")
    a("s_cmp_eq_u32 s9, 0")
    a(f"s_cbranch_scc1 {lab1}")
    a("s_sub_u32 s5, s9, 1")
    a("s_lshl_b32 s5, s5, 12")
    a("v_add_u32 v5, s5, v4")
    for q in range(4):
        a(f"ds_write_b128 v5, v[{ACC+4*q}:{ACC+4*q+3}] offset:{1024*q}")
    a.label(lab1)
    a("s_waitcnt lgkmcnt(0)")
    a("s_barrier")
    stamp(a, 6)
    a("s_cmp_eq_u32 s7, 7")
    a(f"s_cbranch_scc1 {lab2}")
    a("v_lshrrev_b32 v5, 5, v2")
    a("v_bfe_u32 v3, v2, 2, 2")
    a("v_lshl_add_u32 v5, v5, 2, v3")
    a("v_mul_u32_u24 v5, 528, v5")
    a("v_bfe_u32 v3, v2, 4, 1")
    a("v_lshl_add_u32 v5, v3, 5, v5")
    a("v_and_b32 v3, 3, v2")
    a("v_lshl_add_u32 v5, v3, 3, v5")
    a("s_lshl_b32 s5, s7, 6")
    a("v_add_u32 v5, s5, v5")
    a(f"ds_read_b64_tr_b16 v[{W}:{W+1}], v5 offset:32768")
    a(f"ds_read_b64_tr_b16 v[{W+2}:{W+3}], v5 offset:{32768+8*528}")
    a("s_and_b32 s5, s3, 1")
    a("s_mul_i32 s5, s5, 7")
    a("s_add_u32 s5, s5, s7")
    a("s_mul_i32 s5, s5, 112")
    a("s_lshr_b32 s6, s3, 1")
    a("s_add_u32 s5, s5, s6")
    a("s_lshl_b32 s5, s5, 10")
    a("v_lshlrev_b32 v3, 4, v2")
    a("s_waitcnt lgkmcnt(0)")
    a(f"buffer_store_dwordx4 v[{W}:{W+3}], v3, s[52:55], s5 offen {SC}")
    a.label(lab2)
    a("s_cmp_eq_u32 s9, 0")
    a(f"s_cbranch_scc0 {lab3}")
    R = 64
    for j in range(3):
        for q in range(4):
            a(f"ds_read_b128 v[{R+16*j+4*q}:{R+16*j+4*q+3}], v4 offset:{4096*j+1024*q}")
    for j in range(3):
        a(f"s_waitcnt lgkmcnt({4*(2-j)})")
        for i in range(16): a(f"v_add_f32 v{ACC+i}, v{ACC+i}, v{R+16*j+i}")
    a("s_lshl_b32 s4, s3, 13")
    a("s_lshl_b32 s5, s10, 12")
    a("s_add_u32 s4, s4, s5")
    a("v_and_b32 v5, 31, v2")
    a("v_lshlrev_b32 v5, 4, v5")
    a("v_sub_u32 v6, 4080, v5")
    def pk(d, lo, hi): a(f"v_cvt_pk_bf16_f32 v{d}, v{ACC+lo}, v{ACC+hi}")
    def store(base, d):
        a(f"v_subrev_u32 v7, {2*base}, v6")
        a(f"buffer_store_dwordx4 v[{d}:{d+3}], v7, s[48:51], s4 offen {SC}")
    O = 64
    a("s_mov_b64 s[10:11], exec")
    a("s_mov_b32 exec_lo, -1")
    a("s_mov_b32 exec_hi, 0")
    pk(O, 7, 6); pk(O+1, 5, 4); pk(O+2, 3, 2); pk(O+3, 1, 0); store(0, O)
    pk(O+4, 12, 11); pk(O+5, 10, 10); pk(O+6, 10, 9); pk(O+7, 8, 8); store(256, O+4)
    a("s_mov_b32 exec_lo, 0")
    a("s_mov_b32 exec_hi, -1")
    for b in range(2):
        o = O + 8 + 4*b; r0 = 3*b
        pk(o, r0+2, r0+2); pk(o+1, r0+1, r0+1); pk(o+2, r0+1, r0); pk(o+3, r0, r0); store(512 + 256*b, o)
    a("v_and_b32 v5, 1, v2")
    a("v_cmp_eq_u32 vcc, 0, v5")
    for b in range(4):
        o = O + 16 + 4*b; r0 = 6 + 2*b
        a(f"v_cndmask_b32 v{O+40}, v{ACC+r0+1}, v{ACC+r0}, vcc")
        pk(o, r0+1, r0+1)
        a(f"v_cvt_pk_bf16_f32 v{o+1}, v{ACC+r0+1}, v{O+40}")
        pk(o+2, r0, r0); pk(o+3, r0, r0); store(1024 + 256*b, o)
    a("s_mov_b64 exec, s[10:11]")
    stamp(a, 7)
    a.label(lab3)

def build_k1():
    kern.PROF_V = 127 if False else 123
    a = Asm()
    load_ptrs(a)
    a("s_cmp_ge_u32 s2, 480")
    a("s_cbranch_scc1 L_k1_end")
    a("s_waitcnt lgkmcnt(0)")
    prof2_start(a)
    a("s_cmp_ge_u32 s2, 256")
    a(f"s_cbranch_scc1 {'L_k1_kg' if G1FIRST else 'L_k1_g1'}")
    a("s_cmp_lt_u32 s2, 224")
    a(f"s_cbranch_scc1 {'L_k1_g1' if G1FIRST else 'L_k1_kg'}")
    a("s_sub_u32 s3, s2, 224")
    if "ln" not in ROLES: a("s_endpgm")
    kern.PROF_V = 123; stamp(a, 0)
    body_ln(a)
    if kern.PROF: a("s_waitcnt vmcnt(0)")
    stamp(a, 3); prof_flush(a, 0, 4); prof2_end(a, 0, 0)
    a("s_endpgm")
    a.label("L_k1_kg")
    a("s_sub_u32 s3, s2, 256" if G1FIRST else "s_mov_b32 s3, s2")
    if "kg" not in ROLES: a("s_endpgm")
    kern.PROF_V = 123; stamp(a, 0)
    body_kg(a)
    if kern.PROF: a("s_waitcnt vmcnt(0)")
    stamp(a, 3); prof_flush(a, 0, 4); prof2_end(a, 0, 0)
    a("s_endpgm")
    a.label("L_k1_g1")
    a("s_mov_b32 s3, s2" if G1FIRST else "s_sub_u32 s3, s2, 256")
    if "g1" not in ROLES: a("s_endpgm")
    kern.PROF_V = 1; stamp(a, 0)
    body_g1(a)
    if kern.PROF: a("s_waitcnt vmcnt(0)")
    stamp(a, 3); prof_flush(a, 0, 4); prof2_end(a, 0, 0)
    a.label("L_k1_end")
    a("s_endpgm")
    return a

def assemble(kernels, path):
    hdr = "; generated by dev/kern3.py (own generator)\n"
    for name, asm, vgpr, grid, lds, blk in kernels:
        hdr += f"; @launch kernel={name} grid=({grid},1,1) block=({blk},1,1) lds={lds}\n"
    hdr += '.amdgcn_target "amdgcn-amd-amdhsa--gfx950"\n'
    txt = ""; desc = ""
    for name, asm, vgpr, grid, lds, blk in kernels:
        t, d, n = kernel_text(name, asm, vgpr)
        txt += t; desc += d
        print(f"{name}: {len(t.splitlines())} lines, {n} hazard pads")
    open(path, "w").write(hdr + txt + desc)

def build(path):
    kern2.NOWAIT = NOWAIT; kern2.FINE = FINE; kern2.ROLES = ROLES
    assemble([("k1_kernel", build_k1(), 128, 480, 81920, 512), ("k2_kernel", kern2.build_k2(), 236, 480, 2*CV_CH, 256)], path)

if __name__ == "__main__":
    kern2.TOUCH2 = False
    build("r.s")
    TLATE = True; build("r_tl.s")
    G1FIRST = True; build("r_tl_gf.s")
    TLATE = False; build("r_gf.s")
    TOUCH1 = False; build("r_gf_nt.s")
    G1FIRST = False; build("r_nt.s")
```

```python
from asmgen import Asm, kernel_text
import kern
from kern import (srd, load_ptrs, f32bits, bf_round, unpack, interleave, kg_row, KG_H, KG_RS,
                  WS_H, WS_W2F, WS_XNT, WS_AOUT, SZ_H, SZ_WF, SZ_X, stamp, prof_flush)
from kern2 import VM
SC = "sc1"
WS_ST = 0x1300000
WS_FL = 0x1400000
F_E = 0; F_S = 128; F_H = 384; F_W = 1536
R_X = 0; R_C = 1024
SPIN = 0x20000
LFINE = False
TOUCH1 = True
NOP2 = False
G1PK = False
LNPK = False
EPRIO = 0
SKIPW = ''
G1PRIO = 1
CV_BS = 320; CV_CS = 7376; CV_K = 4*CV_CS; CV_CH = CV_K + 4352
def cvbase(rho): return ((rho + 1) & 3) * CV_CS

def so(soff):
    return f"{soff} offen" if isinstance(soff, str) else f"0 offen offset:{soff}"

def publish(a, soff, t0, t1):
    a(f"v_mov_b32 v{t0}, 0")
    a(f"v_mov_b32 v{t1}, s46")
    a("s_mov_b64 s[86:87], exec")
    a("s_mov_b64 exec, 1")
    a(f"buffer_store_dword v{t1}, v{t0}, s[80:83], {so(soff)} {SC}")
    a("s_mov_b64 exec, s[86:87]")

def publish_rep(a, soff, t0, t1):
    a(f"v_and_b32 v{t0}, 7, v0")
    a(f"v_lshlrev_b32 v{t0}, 12, v{t0}")
    a(f"v_add_u32 v{t0}, 4096, v{t0}")
    a(f"v_mov_b32 v{t1}, s46")
    a("s_mov_b64 s[86:87], exec")
    a("s_mov_b64 exec, 0xff")
    a(f"buffer_store_dword v{t1}, v{t0}, s[80:83], {soff} offen {SC}")
    a("s_mov_b64 exec, s[86:87]")

SLEEP = 8
def wg_wait(a, fn):
    lab = a.newlabel("wgw")
    a("s_cmp_eq_u32 s7, 0")
    a(f"s_cbranch_scc0 {lab}")
    fn()
    a.label(lab)
    a("s_barrier")

def wait_flags(a, n, soff, t0, t1, wide=False):
    lab = a.newlabel("wf"); ok = a.newlabel("wfok")
    a(f"v_and_b32 v{t0}, 63, v0")
    a(f"v_lshlrev_b32 v{t0}, {4 if wide else 2}, v{t0}")
    a("s_mov_b64 s[86:87], exec")
    m = (1 << n) - 1
    a(f"s_mov_b32 exec_lo, {m & 0xffffffff:#x}")
    a(f"s_mov_b32 exec_hi, {m >> 32:#x}")
    a("s_mov_b32 s77, 0")
    a.label(lab)
    if wide:
        a(f"buffer_load_dwordx4 v[{t1}:{t1+3}], v{t0}, s[80:83], {so(soff)} {SC}")
        a("s_waitcnt vmcnt(0)")
        a(f"v_cmp_ne_u32 vcc, s46, v{t1}")
        for i in range(1, 4):
            a(f"v_cmp_ne_u32 s[88:89], s46, v{t1+i}")
            a("s_or_b64 vcc, vcc, s[88:89]")
    else:
        a(f"buffer_load_dword v{t1}, v{t0}, s[80:83], {so(soff)} {SC}")
        a("s_waitcnt vmcnt(0)")
        a(f"v_cmp_ne_u32 vcc, s46, v{t1}")
    a(f"s_cbranch_vccz {ok}")
    a("s_add_u32 s77, s77, 1")
    a(f"s_cmp_ge_u32 s77, {SPIN:#x}")
    a(f"s_cbranch_scc1 {ok}")
    a(f"s_sleep {SLEEP}")
    a(f"s_branch {lab}")
    a.label(ok)
    a("s_mov_b64 exec, s[86:87]")

def body_g1(a):
    NB = 5; NCH = 14; WB = NB*8192
    WL = 4*8192
    a("s_lshr_b32 s14, s3, 3")
    a("s_mul_hi_u32 s5, s14, 0x24924925")
    a("s_mul_i32 s13, s5, 7")
    a("s_sub_u32 s13, s14, s13")
    a("s_and_b32 s6, s3, 1")
    a("s_mul_i32 s6, s6, 7")
    a("s_add_u32 s13, s13, s6")
    a("s_bfe_u32 s12, s3, 0x20001")
    a("s_lshl_b32 s12, s12, 2")
    a("s_add_u32 s12, s12, s5")
    a("v_lshrrev_b32 v2, 6, v0")
    a("v_and_b32 v3, 63, v0")
    a("v_readfirstlane_b32 s7, v2")
    a("s_cmp_lt_u32 s7, 4")
    a("s_cbranch_scc1 L_g1_compute")
    vm = VM()
    srd(a, 48, 16, SZ_X)
    srd(a, 52, 36, SZ_WF)
    a("s_sub_u32 s15, s7, 4")
    a("v_lshrrev_b32 v8, 2, v3")
    a("v_and_b32 v4, 3, v3")
    a("v_bfe_u32 v5, v3, 4, 2")
    a("v_xor_b32 v4, v4, v5")
    a("v_mul_u32_u24 v8, 896, v8")
    a("v_lshl_add_u32 v8, v4, 4, v8")
    a("v_lshrrev_b32 v9, 4, v3")
    a("v_and_b32 v5, 15, v3")
    a("v_lshlrev_b32 v6, 2, v9")
    a("v_xor_b32 v5, v5, v6")
    a("v_mul_u32_u24 v9, 3584, v9")
    a("v_lshl_add_u32 v9, v5, 4, v9")
    a("s_lshl_b32 s8, s12, 2")
    a("s_add_u32 s8, s8, s15")
    a("s_mul_i32 s8, s8, 28672")
    a("s_mul_i32 s9, s15, 28672")
    a("s_lshl_b32 s5, s13, 8")
    a("s_add_u32 s9, s9, s5")
    a("s_lshl_b32 s10, s15, 11")
    def dma(c):
        buf = (c % NB) * 8192
        a(f"s_add_u32 m0, s10, {buf}")
        a("s_add_u32 s5, s8, 14336")
        a(f"buffer_load_dwordx4 v8, s[48:51], s8 offen lds")
        a(f"s_add_u32 m0, s10, {buf+WB}")
        a("s_add_u32 s6, s9, 14336")
        a(f"buffer_load_dwordx4 v9, s[52:55], s9 offen lds")
        a(f"s_add_u32 m0, s10, {buf+1024}")
        a("s_add_u32 s8, s8, 64")
        a(f"buffer_load_dwordx4 v8, s[48:51], s5 offen lds")
        a(f"s_add_u32 m0, s10, {buf+WB+1024}")
        a("s_add_u32 s9, s9, 114688")
        a(f"buffer_load_dwordx4 v9, s[52:55], s6 offen lds")
        vm.issue(("c", c), 4)
    for c in range(4): dma(c)
    if TOUCH1:
        a("v_add_u32 v10, -256, v0")
        a("s_mul_i32 s5, s14, 224")
        a("v_add_u32 v5, s5, v10")
        a("s_mov_b32 s6, 0x12492493")
        a("v_mul_hi_u32 v6, v5, s6")
        a("v_mul_u32_u24 v7, 14, v6")
        a("v_sub_u32 v7, v5, v7")
        a("v_mul_u32_u24 v6, 3584, v6")
        a("v_lshl_add_u32 v6, v7, 7, v6")
        a("s_and_b32 s6, s3, 1")
        a("s_mul_i32 s6, s6, 1792")
        a("v_cmp_gt_u32 vcc, 224, v10")
        a("v_mov_b32 v7, 0x7ffffff0")
        a("v_cndmask_b32 v6, v7, v6, vcc")
        a("buffer_load_dword v11, v6, s[52:55], s6 offen")
        a("s_bfe_u32 s5, s3, 0x20001")
        a("s_mul_i32 s5, s5, 458752")
        a("s_lshl_b32 s6, s14, 14")
        a("s_add_u32 s5, s5, s6")
        a("v_lshlrev_b32 v5, 7, v10")
        a("v_cmp_gt_u32 vcc, 128, v10")
        a("v_mov_b32 v7, 0x7ffffff0")
        a("v_cndmask_b32 v6, v7, v5, vcc")
        a("buffer_load_dword v12, v6, s[48:51], s5 offen")
        vm.issue("touch", 2)
    srd(a, 60, 44, 16384, WS_ST)
    a("s_cmp_eq_u32 s15, 0")
    a("s_cselect_b32 s5, 0, 0x7ffffff0")
    a("v_and_b32 v13, 1, v3")
    a("v_lshlrev_b32 v13, 2, v13")
    a("v_add_u32 v13, s5, v13")
    a("v_mov_b32 v15, s5")
    a("s_lshl_b32 s72, s12, 3")
    a(f"s_add_u32 s72, s72, {F_S}")
    a(f"s_waitcnt vmcnt({vm.wait_for(('c', 0))})")
    a("s_barrier")
    for c in range(NCH - 1):
        a(f"s_waitcnt vmcnt({vm.wait_for(('c', c + 1))})")
        a("s_barrier")
        if LFINE:
            kern.PROF_V = 20; stamp(a, 8 + c); kern.PROF_V = 1
        if c + 4 < NCH: dma(c + 4)
        if c == 8:
            a(f"buffer_load_dword v14, v13, s[80:83], s72 offen {SC}")
            vm.issue("poll")
        if c == 11:
            a(f"s_waitcnt vmcnt({vm.wait_for('poll')})")
            labs = a.newlabel("g1sk"); lab = a.newlabel("g1sp")
            a("s_cmp_eq_u32 s15, 0")
            a(f"s_cbranch_scc0 {labs}")
            a("s_mov_b32 s77, 0")
            a.label(lab)
            a("v_cmp_ne_u32 vcc, s46, v14")
            a(f"s_cbranch_vccz {labs}")
            a("s_add_u32 s77, s77, 1")
            a(f"s_cmp_ge_u32 s77, {SPIN:#x}")
            a(f"s_cbranch_scc1 {labs}")
            a("s_sleep 8")
            a(f"buffer_load_dword v14, v13, s[80:83], s72 offen {SC}")
            a("s_waitcnt vmcnt(0)")
            a(f"s_branch {lab}")
            a.label(labs)
            a("s_lshl_b32 s5, s12, 10")
            a("v_lshlrev_b32 v14, 4, v3")
            a("v_add_u32 v14, v15, v14")
            a(f"buffer_load_dwordx4 v[16:19], v14, s[60:63], s5 offen {SC}")
            vm.issue("stats")
    lab_end = a.newlabel("g1ldend")
    a("s_cmp_eq_u32 s15, 0")
    a(f"s_cbranch_scc0 {lab_end}")
    a("s_waitcnt vmcnt(0)")
    a(f"ds_write_b128 v14, v[16:19] offset:{WL+1024}")
    a("s_waitcnt lgkmcnt(0)")
    a.label(lab_end)
    a("s_waitcnt vmcnt(0)")
    a("s_barrier")
    if LFINE:
        kern.PROF_V = 20; prof_flush(a, 2, 4, 256); kern.PROF_V = 1
    a("s_branch L_g1_done")
    a.label("L_g1_compute")
    if G1PRIO: a(f"s_setprio {G1PRIO}")
    srd(a, 56, 44, SZ_H, WS_H)
    a("s_and_b32 s15, s7, 1")
    a("s_lshr_b32 s11, s7, 1")
    a("v_and_b32 v4, 31, v3")
    a("v_lshrrev_b32 v6, 5, v3")
    a("v_bfe_u32 v7, v3, 2, 2")
    a("v_xor_b32 v7, v7, v6")
    a("v_lshlrev_b32 v4, 6, v4")
    a("v_lshl_add_u32 v4, v7, 4, v4")
    a("s_lshl_b32 s5, s11, 12")
    a("v_add_u32 v4, s5, v4")
    a("v_xor_b32 v5, 32, v4")
    a("v_bfe_u32 v7, v3, 2, 2")
    a("v_lshl_add_u32 v8, v6, 3, v7")
    a("v_lshlrev_b32 v8, 8, v8")
    a("v_bfe_u32 v9, v3, 4, 1")
    a("v_lshl_add_u32 v8, v9, 5, v8")
    a("v_and_b32 v9, 3, v3")
    a("v_lshl_add_u32 v8, v9, 3, v8")
    a(f"v_add_u32 v8, {WB}, v8")
    a("s_lshl_b32 s5, s15, 1")
    a("s_add_u32 s68, s5, s11")
    a("s_xor_b32 s69, s68, 1")
    a("v_xor_b32 v9, s69, v7")
    a("v_xor_b32 v6, s68, v7")
    a("v_lshl_add_u32 v7, v9, 6, v8")
    a("v_lshl_add_u32 v6, v6, 6, v8")
    SEL = 8; WACC = 12; ACC = 64; SETS = [16, 32, 48]
    a("v_and_b32 v2, 31, v3")
    a("v_cmp_eq_u32 vcc, 0, v2")
    a("v_cmp_eq_u32 s[70:71], 17, v2")
    a("s_or_b64 vcc, vcc, s[70:71]")
    a("v_mov_b32 v2, 0x3f803f80")
    a(f"v_cndmask_b32 v{SEL}, 0, v2, vcc")
    for i in range(1, 4): a(f"v_mov_b32 v{SEL+i}, v{SEL}")
    for i in range(4): a(f"v_mov_b32 v{WACC+i}, 0")
    for i in range(64): a(f"v_mov_b32 v{ACC+i}, 0")
    def rlist(c, st, S):
        o = (c % NB) * 8192
        vb = 4 if st == 0 else 5
        return [f"ds_read_b64_tr_b16 v[{S}:{S+1}], v6 offset:{o+st*4096}",
                f"ds_read_b64_tr_b16 v[{S+2}:{S+3}], v6 offset:{o+st*4096+1024}",
                f"ds_read_b128 v[{S+8}:{S+11}], v{vb} offset:{o}",
                f"ds_read_b128 v[{S+12}:{S+15}], v{vb} offset:{o+2048}",
                f"ds_read_b64_tr_b16 v[{S+4}:{S+5}], v7 offset:{o+st*4096}",
                f"ds_read_b64_tr_b16 v[{S+6}:{S+7}], v7 offset:{o+st*4096+1024}"]
    def mlist(S):
        m = []
        for aa in range(2):
            for b in range(2):
                d = ACC + 16*(2*aa+b)
                m.append(f"v_mfma_f32_32x32x16_bf16 v[{d}:{d+15}], v[{S+4*aa}:{S+4*aa+3}], v[{S+8+4*b}:{S+8+4*b+3}], v[{d}:{d+15}]")
        m.append(f"v_mfma_f32_16x16x32_bf16 v[{WACC}:{WACC+3}], v[{SEL}:{SEL+3}], v[{S}:{S+3}], v[{WACC}:{WACC+3}]")
        return m
    a("s_barrier")
    stamp(a, 1)
    for ins in rlist(0, 0, SETS[0]) + rlist(0, 1, SETS[1]): a(ins)
    for c in range(NCH):
        if c < NCH - 1: a("s_barrier")
        nxt = c + 1 < NCH
        for st in range(2):
            s_ = 2*c + st
            a(f"s_waitcnt lgkmcnt({0 if s_ == 2*NCH - 1 else 6})")
            R = rlist(c + 1, st, SETS[(s_ + 2) % 3]) if nxt else []
            M = mlist(SETS[s_ % 3])
            pat = [1, 2, 1, 2, 0]; ri = 0
            for i, m in enumerate(M):
                a(m)
                for _ in range(pat[i]):
                    if ri < len(R): a(R[ri]); ri += 1
    stamp(a, 2)
    if EPRIO: a(f"s_setprio {EPRIO}")
    a("v_and_b32 v3, 63, v0")
    a("s_lshl_b32 s5, s68, 7")
    a("v_and_b32 v2, 15, v3")
    a("v_lshlrev_b32 v2, 2, v2")
    a("v_add_u32 v2, s5, v2")
    a("s_mov_b64 s[70:71], exec")
    a("s_mov_b64 exec, 0xffff")
    a(f"ds_write_b32 v2, v{WACC} offset:{WL}")
    a(f"ds_write_b32 v2, v{WACC+1} offset:{WL+64}")
    a("s_mov_b64 exec, s[70:71]")
    a("s_waitcnt lgkmcnt(0)")
    a("s_barrier")
    WR = 16; ST = 48
    a("v_lshrrev_b32 v2, 5, v3")
    a("v_lshlrev_b32 v2, 4, v2")
    a("s_lshl_b32 s5, s68, 7")
    a("v_add_u32 v4, s5, v2")
    a("s_lshl_b32 s5, s69, 7")
    a("v_add_u32 v5, s5, v2")
    a("v_and_b32 v2, 31, v3")
    a("v_lshlrev_b32 v2, 3, v2")
    a("s_lshl_b32 s5, s11, 9")
    a("v_add_u32 v2, s5, v2")
    a(f"ds_read_b64 v[{ST}:{ST+1}], v2 offset:{WL+1024}")
    a(f"ds_read_b64 v[{ST+2}:{ST+3}], v2 offset:{WL+1024+256}")
    for aa in range(2):
        for q in range(4):
            a(f"ds_read_b128 v[{WR+16*aa+4*q}:{WR+16*aa+4*q+3}], v{4+aa} offset:{WL+32*q}")
    a("s_lshl_b32 s4, s12, 2")
    a("s_lshl_b32 s5, s11, 1")
    a("s_add_u32 s4, s4, s5")
    a("s_mul_i32 s4, s4, 112")
    a("s_lshl_b32 s5, s13, 3")
    a("s_add_u32 s4, s4, s5")
    a("s_lshl_b32 s5, s68, 1")
    a("s_add_u32 s74, s4, s5")
    a("s_lshl_b32 s74, s74, 10")
    a("s_lshl_b32 s5, s69, 1")
    a("s_add_u32 s75, s4, s5")
    a("s_lshl_b32 s75, s75, 10")
    a("v_lshlrev_b32 v3, 4, v3")
    a("s_waitcnt lgkmcnt(8)")
    a(f"v_mul_f32 v{ST}, v{ST}, v{ST+1}")
    a(f"v_mul_f32 v{ST+2}, v{ST+2}, v{ST+3}")
    a("s_waitcnt lgkmcnt(0)")
    TT = 52
    for aa in range(2):
        for b in range(2):
            d = ACC + 16*(2*aa+b); w = WR + 16*aa
            if G1PK:
                for k in range(8):
                    t = TT + 2*(k % 4)
                    a(f"v_pk_mul_f32 v[{t}:{t+1}], v[{w+2*k}:{w+2*k+1}], v[{ST+2*b}:{ST+2*b+1}] op_sel_hi:[1,0]")
                    a(f"v_pk_fma_f32 v[{d+2*k}:{d+2*k+1}], v[{d+2*k}:{d+2*k+1}], v[{ST+2*b}:{ST+2*b+1}], v[{t}:{t+1}] op_sel:[0,1,0] op_sel_hi:[1,1,1] neg_lo:[0,0,1] neg_hi:[0,0,1]")
            else:
                for k in range(16):
                    t = TT + (k % 8)
                    a(f"v_mul_f32 v{t}, v{w+k}, v{ST+2*b}")
                    a(f"v_fma_f32 v{d+k}, v{d+k}, v{ST+2*b+1}, -v{t}")
            for k in range(8):
                if G1PK:
                    a(f"v_cvt_pk_bf16_f32 v{d+k}, v{d+2*k}, v{d+2*k+1}")
                    a(f"v_pk_max_i16 v{d+k}, v{d+k}, 0")
                else:
                    a(f"v_max_f32 v{d+2*k}, 0, v{d+2*k}")
                    a(f"v_max_f32 v{d+2*k+1}, 0, v{d+2*k+1}")
                    a(f"v_cvt_pk_bf16_f32 v{d+k}, v{d+2*k}, v{d+2*k+1}")
            a(f"s_add_u32 s5, s{74+aa}, {b*112*1024}")
            a(f"buffer_store_dwordx4 v[{d}:{d+3}], v3, s[56:59], s5 offen {SC}")
            a(f"buffer_store_dwordx4 v[{d+4}:{d+7}], v3, s[56:59], s5 offen offset:1024 {SC}")
    stamp(a, 5)
    a("s_setprio 0")
    a("s_waitcnt vmcnt(0)")
    a.label("L_g1_done")
    a("s_barrier")
    lab = a.newlabel("g1pub")
    a("s_cmp_eq_u32 s7, 0")
    a(f"s_cbranch_scc0 {lab}")
    a("s_lshl_b32 s5, s12, 6")
    a("s_lshl_b32 s6, s13, 2")
    a("s_add_u32 s5, s5, s6")
    a(f"s_add_u32 s5, s5, {F_H}")
    publish(a, "s5", 2, 3)
    a.label(lab)
    stamp(a, 3)

def body_g2(a):
    PF = 3; NK = 14
    vm = VM()
    srd(a, 48, 44, SZ_WF, WS_W2F)
    srd(a, 52, 44, SZ_H, WS_H)
    a("s_lshr_b32 s14, s3, 3")
    a("s_mul_hi_u32 s5, s14, 0x24924925")
    a("s_mul_i32 s13, s5, 7")
    a("s_sub_u32 s13, s14, s13")
    a("s_and_b32 s12, s3, 7")
    a("s_lshl_b32 s12, s12, 2")
    a("s_add_u32 s12, s12, s5")
    a("v_and_b32 v2, 63, v0")
    a("v_lshlrev_b32 v3, 4, v2")
    a("s_mul_i32 s4, s7, 14")
    a("s_lshl_b32 s5, s13, 1")
    a("s_mul_i32 s5, s5, 112")
    a("s_add_u32 s5, s5, s4")
    a("s_lshl_b32 s68, s5, 10")
    a(f"s_add_u32 s69, s68, {112*1024}")
    a("s_lshl_b32 s5, s12, 1")
    a("s_mul_i32 s5, s5, 112")
    a("s_add_u32 s5, s5, s4")
    a("s_lshl_b32 s70, s5, 10")
    a(f"s_add_u32 s71, s70, {112*1024}")
    ACC = 64; FR = 16
    for i in range(64): a(f"v_mov_b32 v{ACC+i}, 0")
    def off(ks): return (ks % 4) * 1024
    def inc(ks, regs):
        return [f"s_add_u32 s{r}, s{r}, 4096" for r in regs] if ks % 4 == 3 else []
    def lA(ks):
        S = FR + 16*(ks % PF)
        return [[f"buffer_load_dwordx4 v[{S}:{S+3}], v3, s[48:51], s68 offen offset:{off(ks)} {SC}"],
                [f"buffer_load_dwordx4 v[{S+4}:{S+7}], v3, s[48:51], s69 offen offset:{off(ks)} {SC}"] + inc(ks, (68, 69))]
    def lB(ks):
        S = FR + 16*(ks % PF)
        return [[f"buffer_load_dwordx4 v[{S+8}:{S+11}], v3, s[52:55], s70 offen offset:{off(ks)} {SC}"],
                [f"buffer_load_dwordx4 v[{S+12}:{S+15}], v3, s[52:55], s71 offen offset:{off(ks)} {SC}"] + inc(ks, (70, 71))]
    wg_wait(a, lambda: wait_flags(a, 56, F_W, 4, 8, wide=True) if "W" not in SKIPW else None)
    for ks in range(PF):
        for g in lA(ks):
            for ins in g: a(ins)
    a("s_lshr_b32 s5, s12, 1")
    a("s_lshl_b32 s5, s5, 6")
    a(f"s_add_u32 s5, s5, {F_H}")
    wg_wait(a, lambda: wait_flags(a, 14, "s5", 4, 8) if "H" not in SKIPW else None)
    stamp(a, 6)
    vm.issue("A0", 2*PF)
    for ks in range(PF):
        for g in lB(ks):
            for ins in g: a(ins)
        vm.issue(("k", ks), 2)
    srd(a, 56, 44, SZ_X, WS_AOUT)
    srd(a, 60, 16, SZ_X)
    srd(a, 64, 40, SZ_X)
    a("s_lshr_b32 s8, s7, 2")
    a("s_bfe_u32 s9, s7, 0x10001")
    a("s_and_b32 s15, s7, 1")
    a("s_lshl_b32 s4, s12, 6")
    a("s_lshl_b32 s5, s9, 5")
    a("s_add_u32 s4, s4, s5")
    a("s_lshl_b32 s5, s13, 6")
    a("s_lshl_b32 s6, s8, 5")
    a("s_add_u32 s5, s5, s6")
    a("s_lshl_b32 s6, s15, 4")
    a("s_add_u32 s5, s5, s6")
    a("s_mul_i32 s10, s4, 896")
    a("s_lshl_b32 s6, s5, 1")
    a("s_add_u32 s10, s10, s6")
    a("s_lshl_b32 s11, s5, 12")
    a("s_lshl_b32 s6, s4, 1")
    a("s_add_u32 s11, s11, s6")
    a("v_and_b32 v4, 31, v2")
    a("v_lshrrev_b32 v5, 5, v2")
    a("v_mul_u32_u24 v6, 896, v4")
    a("v_lshl_add_u32 v6, v5, 3, v6")
    a("v_lshlrev_b32 v7, 14, v5")
    a("v_lshl_add_u32 v7, v4, 1, v7")
    XR = 8
    for q in range(2):
        a(f"buffer_load_dwordx2 v[{XR+2*q}:{XR+2*q+1}], v6, s[60:63], s10 offen offset:{16*q}")
    vm.issue("x", 2)
    for ks in range(NK):
        a(f"s_waitcnt vmcnt({vm.wait_for(('k', ks))})")
        if ks == 0: stamp(a, 7)
        S = FR + 16*(ks % PF)
        nx = ks + PF < NK
        LA = lA(ks + PF) if nx else None; LB = lB(ks + PF) if nx else None
        ms = []
        for aa in range(2):
            for b in range(2):
                d = ACC + 16*(2*aa+b)
                ms.append(f"v_mfma_f32_32x32x16_bf16 v[{d}:{d+15}], v[{S+4*aa}:{S+4*aa+3}], v[{S+8+4*b}:{S+8+4*b+3}], v[{d}:{d+15}]")
        a(ms[0]); a(ms[1])
        if nx:
            for ins in LA[0]: a(ins)
        a(ms[2])
        if nx:
            for ins in LB[0]: a(ins)
        a(ms[3])
        if nx:
            for ins in LA[1] + LB[1]: a(ins)
            vm.issue(("k", ks + PF), 4)
    stamp(a, 8)
    a("s_lshl_b32 s5, s13, 7")
    a("s_and_b32 s6, s2, 7")
    a("s_lshl_b32 s6, s6, 12")
    a("s_add_u32 s5, s5, s6")
    a(f"s_add_u32 s5, s5, {4096 + R_C}")
    labc = a.newlabel("g2c")
    a("s_cmp_eq_u32 s7, 0")
    a(f"s_cbranch_scc0 {labc}")
    wait_flags(a, 32, "s5", 12, 13)
    a.label(labc)
    AR = 16
    a("s_lshl_b32 s4, s7, 13")
    a("v_add_u32 v12, s4, v3")
    l1 = a.newlabel("g2r"); l2 = a.newlabel("g2re")
    a("s_cmp_eq_u32 s8, 0")
    a(f"s_cbranch_scc0 {l1}")
    for i in range(8): a(f"ds_write_b128 v12, v[{ACC+32+4*i}:{ACC+32+4*i+3}] offset:{1024*i}")
    a(f"s_branch {l2}")
    a.label(l1)
    for i in range(8): a(f"ds_write_b128 v12, v[{ACC+4*i}:{ACC+4*i+3}] offset:{1024*i}")
    for i in range(32): a(f"v_mov_b32 v{ACC+i}, v{ACC+32+i}")
    a.label(l2)
    a("s_xor_b32 s4, s7, 4")
    a("s_lshl_b32 s4, s4, 13")
    a("v_add_u32 v12, s4, v3")
    a("s_waitcnt lgkmcnt(0)")
    stamp(a, 10)
    a("s_barrier")
    stamp(a, 11)
    for q in range(2):
        for r in range(4):
            a(f"s_add_u32 s6, s11, {(8*q+r)*4096}")
            a(f"buffer_load_ushort v{AR+4*q+r}, v7, s[56:59], s6 offen {SC}")
    R = ACC + 32
    for i in range(8): a(f"ds_read_b128 v[{R+4*i}:{R+4*i+3}], v12 offset:{1024*i}")
    for i in range(8):
        a(f"s_waitcnt lgkmcnt({7-i})")
        for k in range(4): a(f"v_add_f32 v{ACC+4*i+k}, v{ACC+4*i+k}, v{R+4*i+k}")
    a("s_barrier")
    stamp(a, 12)
    a("s_and_b32 s4, s7, 3")
    a("s_lshl_b32 s5, s8, 15")
    a("s_lshl_b32 s6, s4, 11")
    a("s_add_u32 s6, s6, s5")
    a("v_add_u32 v12, s6, v3")
    OWN = 40
    for p in range(4):
        lo = a.newlabel("g2o"); le = a.newlabel("g2e")
        a(f"s_cmp_eq_u32 s4, {p}")
        a(f"s_cbranch_scc1 {lo}")
        for j in range(2):
            a(f"ds_write_b128 v12, v[{ACC+8*p+4*j}:{ACC+8*p+4*j+3}] offset:{p*8192+j*1024}")
        a(f"s_branch {le}")
        a.label(lo)
        for k in range(8): a(f"v_mov_b32 v{OWN+k}, v{ACC+8*p+k}")
        a.label(le)
    a("s_lshl_b32 s6, s4, 13")
    a("s_add_u32 s6, s6, s5")
    a("v_add_u32 v12, s6, v3")
    a("s_waitcnt lgkmcnt(0)")
    a("s_barrier")
    stamp(a, 13)
    for j in range(3):
        a(f"s_add_u32 s6, s4, {1+j}")
        a("s_and_b32 s6, s6, 3")
        a("s_lshl_b32 s6, s6, 11")
        a(f"v_add_u32 v{13+j}, s6, v12")
        for jj in range(2):
            a(f"ds_read_b128 v[{R+8*j+4*jj}:{R+8*j+4*jj+3}], v{13+j} offset:{jj*1024}")
    a("s_waitcnt lgkmcnt(2)")
    for k in range(8): a(f"v_add_f32 v{R+k}, v{R+k}, v{R+8+k}")
    a("s_waitcnt lgkmcnt(0)")
    for k in range(8): a(f"v_add_f32 v{R+16+k}, v{R+16+k}, v{OWN+k}")
    for k in range(8): a(f"v_add_f32 v{R+k}, v{R+k}, v{R+16+k}")
    stamp(a, 14)
    a("s_waitcnt vmcnt(0)")
    stamp(a, 15)
    T = 24
    for q in range(2):
        for hh in range(2):
            f0 = R + 4*q + 2*hh; x = XR + 2*q + hh; ao = AR + 4*q + 2*hh
            a(f"v_cvt_pk_bf16_f32 v{T}, v{f0}, v{f0+1}")
            unpack(a, T+1, T+2, T)
            unpack(a, T+3, T+4, x)
            a(f"v_lshlrev_b32 v{ao}, 16, v{ao}")
            a(f"v_lshlrev_b32 v{ao+1}, 16, v{ao+1}")
            a(f"v_add_f32 v{T+3}, v{T+3}, v{ao}")
            a(f"v_add_f32 v{T+4}, v{T+4}, v{ao+1}")
            a(f"v_cvt_pk_bf16_f32 v{T}, v{T+3}, v{T+4}")
            unpack(a, T+3, T+4, T)
            a(f"v_add_f32 v{T+1}, v{T+1}, v{T+3}")
            a(f"v_add_f32 v{T+2}, v{T+2}, v{T+4}")
            a(f"v_cvt_pk_bf16_f32 v{32+2*q+hh}, v{T+1}, v{T+2}")
        a(f"buffer_store_dwordx2 v[{32+2*q}:{32+2*q+1}], v6, s[64:67], s10 offen offset:{16*q}")
    stamp(a, 16)
    lab = a.newlabel("g2ep")
    a("s_or_b32 s4, s3, s7")
    a("s_cmp_eq_u32 s4, 0")
    a(f"s_cbranch_scc0 {lab}")
    a("v_and_b32 v4, 63, v0")
    a("v_lshlrev_b32 v5, 4, v4")
    a("s_mov_b32 s77, 0")
    lp = a.newlabel("g2el"); ok = a.newlabel("g2eo")
    a.label(lp)
    a(f"buffer_load_dwordx4 v[8:11], v5, s[80:83], 0 offen offset:{F_H} {SC}")
    a("s_waitcnt vmcnt(0)")
    a("v_and_b32 v6, 3, v4")
    a("v_cmp_eq_u32 vcc, 3, v6")
    a("v_mov_b32 v7, s46")
    a("v_cndmask_b32 v10, v10, v7, vcc")
    a("v_cndmask_b32 v11, v11, v7, vcc")
    a("v_cmp_ne_u32 vcc, s46, v8")
    for i in range(9, 12):
        a(f"v_cmp_ne_u32 s[88:89], s46, v{i}")
        a("s_or_b64 vcc, vcc, s[88:89]")
    a(f"s_cbranch_vccz {ok}")
    a("s_add_u32 s77, s77, 1")
    a(f"s_cmp_ge_u32 s77, {SPIN:#x}")
    a(f"s_cbranch_scc1 {ok}")
    a("s_sleep 2")
    a(f"s_branch {lp}")
    a.label(ok)
    publish(a, F_E, 4, 5)
    a.label(lab)

def body_ln(a):
    X = 8; F = 40
    srd(a, 48, 16, SZ_X)
    srd(a, 56, 44, SZ_X, WS_XNT)
    srd(a, 60, 44, 16384, WS_ST)
    a("v_lshrrev_b32 v1 , 3, v0".replace("v1 ", "v104"))
    a("v_and_b32 v2, 7, v0")
    a("s_mul_i32 s4, s3, 57344")
    a("v_mul_u32_u24 v3, 896, v104")
    a("v_lshl_add_u32 v3, v2, 4, v3")
    for j in range(7):
        a(f"buffer_load_dwordx4 v[{X+4*j}:{X+4*j+3}], v3, s[48:51], s4 offen offset:{128*j}")
    a("v_mul_u32_u24 v5, 912, v104")
    a("v_lshl_add_u32 v5, v2, 4, v5")
    for j in range(7):
        a(f"s_waitcnt vmcnt({6-j})")
        if j == 6: stamp(a, 1)
        for k in range(4):
            unpack(a, F+8*j+2*k, F+8*j+2*k+1, X+4*j+k)
    def pkadd(d, x, y, neg=False, bc=None):
        if LNPK:
            m = ""
            if bc == 0: m += " op_sel_hi:[1,0]"
            if neg: m += " neg_lo:[0,1] neg_hi:[0,1]"
            a(f"v_pk_add_f32 v[{d}:{d+1}], v[{x}:{x+1}], v[{y}:{y+1}]{m}")
        else:
            op = "v_sub_f32" if neg else "v_add_f32"
            a(f"{op} v{d}, v{x}, v{y}"); a(f"{op} v{d+1}, v{x+1}, v{y if bc == 0 else y+1}")
    pkadd(6, F, F+2); pkadd(96, F+4, F+6)
    for i in range(4, 28):
        r = 6 if i % 2 == 0 else 96
        pkadd(r, r, F+2*i)
    a("v_add_f32 v6, v6, v7")
    a("v_add_f32 v96, v96, v97")
    a("v_add_f32 v6, v6, v96")
    def red8(r):
        a(f"v_add_f32_dpp v{r}, v{r}, v{r} quad_perm:[1,0,3,2] row_mask:0xf bank_mask:0xf")
        a(f"v_add_f32_dpp v{r}, v{r}, v{r} quad_perm:[2,3,0,1] row_mask:0xf bank_mask:0xf")
        a(f"v_add_f32_dpp v{r}, v{r}, v{r} row_half_mirror row_mask:0xf bank_mask:0xf")
    red8(6)
    a(f"s_mov_b32 s5, {f32bits(1.0/448):#x}")
    a("v_mul_f32 v6, s5, v6")
    bf_round(a, 98, 6)
    a("v_mov_b32 v7, v6")
    for i in range(4): a(f"v_mov_b32 v{106+i}, 0")
    for i in range(28):
        t = 100 + 2*(i % 2)
        acc = 106 + 2*(i % 2)
        pkadd(t, F+2*i, 6, neg=True)
        if LNPK: a(f"v_pk_fma_f32 v[{acc}:{acc+1}], v[{t}:{t+1}], v[{t}:{t+1}], v[{acc}:{acc+1}]")
        else:
            a(f"v_fmac_f32 v{acc}, v{t}, v{t}"); a(f"v_fmac_f32 v{acc+1}, v{t+1}, v{t+1}")
    a("v_add_f32 v106, v106, v107")
    a("v_add_f32 v108, v108, v109")
    a("v_add_f32 v7, v106, v108")
    red8(7)
    a("v_mul_f32 v7, s5, v7")
    bf_round(a, 7, 7)
    a(f"v_add_f32 v7, {f32bits(1e-5):#x}, v7")
    bf_round(a, 7, 7)
    a("v_sqrt_f32 v7, v7")
    bf_round(a, 99, 7)
    a("v_rcp_f32 v99, v99")
    a("s_lshl_b32 s6, s3, 9")
    a("v_lshlrev_b32 v100, 3, v104")
    a(f"buffer_store_dwordx2 v[98:99], v100, s[60:63], s6 offen {SC}")
    a("v_readfirstlane_b32 s7, v0")
    for j in range(7):
        for k in range(4):
            lo = F+8*j+2*k; d = X+4*j+k
            pkadd(lo, lo, 98, neg=True, bc=0)
            a(f"v_cvt_pk_bf16_f32 v{d}, v{lo}, v{lo+1}")
        for k in range(4):
            lo = F+8*j+2*k; d = X+4*j+k
            unpack(a, lo, lo+1, d)
            if LNPK: a(f"v_pk_mul_f32 v[{lo}:{lo+1}], v[{lo}:{lo+1}], v[98:99] op_sel:[0,1] op_sel_hi:[1,1]")
            else:
                a(f"v_mul_f32 v{lo}, v{lo}, v99"); a(f"v_mul_f32 v{lo+1}, v{lo+1}, v99")
            a(f"v_cvt_pk_bf16_f32 v{d}, v{lo}, v{lo+1}")
        a(f"ds_write_b128 v5, v[{X+4*j}:{X+4*j+3}] offset:{128*j}")
    a("v_and_b32 v104, 63, v0")
    a("v_lshrrev_b32 v2, 4, v104")
    a("v_bfe_u32 v3, v104, 2, 2")
    a("v_and_b32 v6, 3, v104")
    a("v_bfe_u32 v8, v0, 6, 1")
    a("v_lshl_add_u32 v7, v2, 3, v3")
    a("v_lshl_add_u32 v7, v8, 5, v7")
    a("v_mul_u32_u24 v7, 912, v7")
    a("v_lshl_add_u32 v7, v6, 3, v7")
    a("v_lshrrev_b32 v6, 7, v0")
    a("v_lshl_add_u32 v7, v6, 5, v7")
    a("v_and_b32 v3, 15, v104")
    a("v_lshl_add_u32 v3, v6, 4, v3")
    a("v_lshlrev_b32 v3, 6, v3")
    a("v_lshl_add_u32 v3, v2, 4, v3")
    a("v_mul_u32_u24 v8, 28672, v8")
    a("v_add_u32 v3, v3, v8")
    a("s_mul_i32 s6, s3, 57344")
    a("s_waitcnt vmcnt(0) lgkmcnt(0)")
    a("s_barrier")
    lab = a.newlabel("lnpub")
    a("s_cmp_lt_u32 s7, 64")
    a(f"s_cbranch_scc0 {lab}")
    a("s_lshl_b32 s5, s3, 2")
    a(f"s_add_u32 s5, s5, {F_S}")
    publish(a, "s5", 100, 101)
    a.label(lab)
    stamp(a, 2)
    R = 40
    for t in range(7):
        r = R + 4*t
        a(f"ds_read_b64_tr_b16 v[{r}:{r+1}], v7 offset:{128*t}")
        a(f"ds_read_b64_tr_b16 v[{r+2}:{r+3}], v7 offset:{128*t+4*912}")
    for t in range(7):
        r = R + 4*t
        a(f"s_waitcnt lgkmcnt({2*(6-t)})")
        a(f"buffer_store_dwordx4 v[{r}:{r+3}], v3, s[56:59], s6 offen {SC}")
        if t < 6: a(f"v_add_u32 v3, {64*64}, v3")
    a("s_waitcnt vmcnt(0)")
    a("s_barrier")
    lab = a.newlabel("lnpub2")
    a("s_cmp_lt_u32 s7, 64")
    a(f"s_cbranch_scc0 {lab}")
    a("s_lshl_b32 s6, s3, 2")
    a(f"s_add_u32 s6, s6, {R_X}")
    publish_rep(a, "s6", 100, 101)
    a.label(lab)

KG8_W = 32 * KG_RS
def body_kg(a):
    LOG2E = 1.4426950408889634
    SZP = 448*256*2
    P = 8
    for i, ptr in enumerate([18, 20, 22, 24, 26, 28]):
        srd(a, 48 + 4*i, ptr, SZP)
    a("s_lshl_b32 s4, s3, 10")
    a("v_lshlrev_b32 v3, 1, v0")
    for i in range(6):
        a(f"buffer_load_ushort v{P+i}, v3, s[{48+4*i}:{51+4*i}], s4 offen")
    a("s_lshl_b32 s5, s3, 2")
    a("s_load_dword s8, s[30:31], s5")
    a("s_load_dword s9, s[32:33], s5")
    W = 124
    srd(a, 72, 38, SZ_WF)
    a("v_lshrrev_b32 v116, 5, v0")
    a("v_and_b32 v117, 31, v0")
    a("s_lshr_b32 s4, s3, 1")
    a("s_mul_i32 s4, s4, 14336")
    a("s_and_b32 s5, s3, 1")
    a("s_mul_i32 s5, s5, 448")
    a("s_add_u32 s4, s4, s5")
    a("v_mul_u32_u24 v116, 896, v116")
    a("v_lshl_add_u32 v116, v117, 4, v116")
    a(f"buffer_load_dwordx4 v[{W}:{W+3}], v116, s[72:75], s4 offen")
    a("v_lshrrev_b32 v4, 6, v0")
    a("v_and_b32 v2, 63, v0")
    a(f"v_mul_u32_u24 v6, {KG8_W}, v4")
    a("v_lshl_add_u32 v7, v2, 2, v6")
    a("v_and_b32 v3, 31, v2")
    a(f"v_mul_u32_u24 v3, {KG_RS}, v3")
    a("v_add_u32 v6, v6, v3")
    a("v_lshrrev_b32 v3, 5, v2")
    a("v_lshl_add_u32 v6, v3, 4, v6")
    a("v_readfirstlane_b32 s7, v4")
    BF = 16; ACC = 48; CH = 64; T = 108
    for i in range(16): a(f"v_mov_b32 v{ACC+i}, 0")
    a("s_waitcnt lgkmcnt(0)")
    a("s_mov_b32 s47, s9")
    a("v_lshrrev_b32 v4, 8, v0")
    a("v_mov_b32 v5, s8")
    a("v_lshlrev_b32 v3, 16, v5")
    a("v_and_b32 v5, 0xffff0000, v5")
    a("v_cmp_eq_u32 vcc, 0, v4")
    a("v_cndmask_b32 v5, v5, v3, vcc")
    a(f"v_mul_f32 v5, {f32bits(LOG2E):#x}, v5")
    a("v_exp_f32 v5, v5")
    bf_round(a, 5, 5)
    W2S = 8*KG8_W
    srd(a, 72, 44, SZ_WF, WS_W2F)
    a("v_lshrrev_b32 v3, 5, v0")
    a("v_and_b32 v4, 31, v0")
    a("v_mul_u32_u24 v3, 528, v3")
    a("v_lshl_add_u32 v3, v4, 4, v3")
    a(f"v_add_u32 v3, {W2S}, v3")
    a("s_waitcnt vmcnt(0)")
    stamp(a, 1)
    a(f"ds_write_b128 v3, v[{W}:{W+3}]")
    for i in range(6): a(f"v_lshlrev_b32 v{P+i}, 16, v{P+i}")
    a("v_lshrrev_b32 v4, 5, v2")
    a("v_bfe_u32 v3, v2, 2, 2")
    a("v_lshl_add_u32 v4, v4, 2, v3")
    a("v_mul_u32_u24 v4, 528, v4")
    a("v_bfe_u32 v3, v2, 4, 1")
    a("v_lshl_add_u32 v4, v3, 5, v4")
    a("v_and_b32 v3, 3, v2")
    a("v_lshl_add_u32 v4, v3, 3, v4")
    a("s_lshl_b32 s5, s7, 6")
    a(f"s_add_u32 s5, s5, {W2S}")
    a("v_add_u32 v4, s5, v4")
    a("s_waitcnt lgkmcnt(0)")
    a("s_barrier")
    labw = a.newlabel("kgw2")
    a("s_cmp_eq_u32 s7, 7")
    a(f"s_cbranch_scc1 {labw}")
    a(f"ds_read_b64_tr_b16 v[{W}:{W+1}], v4")
    a(f"ds_read_b64_tr_b16 v[{W+2}:{W+3}], v4 offset:{8*528}")
    a("s_and_b32 s5, s3, 1")
    a("s_mul_i32 s5, s5, 7")
    a("s_add_u32 s5, s5, s7")
    a("s_mul_i32 s5, s5, 112")
    a("s_lshr_b32 s6, s3, 1")
    a("s_add_u32 s5, s5, s6")
    a("s_lshl_b32 s5, s5, 10")
    a("v_lshlrev_b32 v3, 4, v2")
    a("s_waitcnt lgkmcnt(0)")
    a(f"buffer_store_dwordx4 v[{W}:{W+3}], v3, s[72:75], s5 offen {SC}")
    a.label(labw)
    a(f"v_mul_f32 v14, v5, v{P}")
    a(f"v_mul_f32 v15, v5, v{P+1}")
    a(f"v_mul_f32 v14, {f32bits(LOG2E):#x}, v14")
    a("v_mul_f32 v15, 0.15915494, v15")
    a(f"v_mul_f32 v{P+2}, v5, v{P+2}")
    a(f"v_mul_f32 v{P+3}, v5, v{P+3}")
    regs = {}; nxt = [CH]
    def alloc(name):
        r = nxt[0]; nxt[0] += 2
        assert nxt[0] <= T, name
        regs[name] = (r, r + 1); return regs[name]
    def cmul(dst, x, w):
        (dr, di), (xr, xi), (wr, wi) = dst, x, w
        return [f"v_mul_f32 v{dr}, v{xi}, v{wi}", f"v_mul_f32 v{di}, v{xi}, v{wr}",
                f"v_fma_f32 v{dr}, v{xr}, v{wr}, -v{dr}", f"v_fma_f32 v{di}, v{xr}, v{wi}, v{di}"]
    tcount = [0, 0, 0, 0]; cur = [0]
    def emitrow(row, z, neg):
        t = T + 2*cur[0] + (tcount[cur[0]] % 2); tcount[cur[0]] += 1
        n = "-" if neg else ""
        return [f"v_cvt_pk_bf16_f32 v{t}, v{z[0]}, {n}v{z[1]}", f"ds_write_b32 v7, v{t} offset:{row*KG_RS}"]
    def direct(dst, tmul, tmp):
        (dr, di) = dst
        return [f"v_mul_f32 v{tmp}, {f32bits(float(tmul)):#x}, v14", f"v_mul_f32 v{tmp+1}, {f32bits(float(tmul)):#x}, v15",
                f"v_exp_f32 v{tmp}, v{tmp}", f"v_fract_f32 v{tmp+1}, v{tmp+1}",
                f"v_cos_f32 v{dr}, v{tmp+1}", f"v_sin_f32 v{di}, v{tmp+1}",
                f"v_mul_f32 v{dr}, v{dr}, v{tmp}", f"v_mul_f32 v{di}, v{di}, v{tmp}"]
    X0 = alloc("X0"); w1 = alloc("w1"); w8 = alloc("w8"); w256 = alloc("w256"); w512 = alloc("w512"); w1024 = alloc("w1024")
    w16 = alloc("w16"); ya = [alloc("ya0"), alloc("ya1")]; yb = [alloc("yb0"), alloc("yb1")]
    c0 = cmul(X0, (P+4, P+5), (P+2, P+3))
    for ins in interleave([direct(w8, 8, 86), direct(w16, 16, 88), direct(w1, 1, 90), direct(w256, 256, 92), c0]): a(ins)
    cur[0] = 2
    chY0 = [f"v_mov_b32 v{T+8}, 0x3f80", f"ds_write_b32 v7, v{T+8} offset:0"] + emitrow(2, w16, False)
    prev = w16
    for k, j in enumerate(range(4, 32, 2)):
        d = ya[k % 2]; chY0 += cmul(d, prev, w16) + emitrow(j, d, False); prev = d
    cur[0] = 3
    chY1 = emitrow(1, w8, False); prev = w8
    for k, j in enumerate(range(3, 32, 2)):
        d = yb[k % 2]; chY1 += cmul(d, prev, w16) + emitrow(j, d, False); prev = d
    X = {0: X0}
    for h in [8, 256, 264, 512, 520, 2, 4]: X[h] = alloc(f"X{h}")
    chP = cmul(w512, w256, w256) + cmul(X[8], X0, w8) + cmul(w1024, w512, w512) + cmul(X[256], X0, w256) + cmul(X[264], X[8], w256) + cmul(X[512], X0, w512) + cmul(X[520], X[8], w512)
    for ins in interleave([chY0, chY1, chP]): a(ins)
    a("s_waitcnt lgkmcnt(0)")
    for ks in range(8):
        a(f"ds_read_b128 v[{BF+4*ks}:{BF+4*ks+3}], v6 offset:{ks*32}")
    t1, t2, t3, t4, t5 = w16, ya[0], ya[1], yb[0], yb[1]
    for h in [768, 776, 6]: X[h] = alloc(f"X{h}")
    cur[0] = 0
    chA = emitrow(KG_H[0], X0, True)
    chA += cmul(t1, X0, w1) + emitrow(KG_H[1], t1, True)
    chA += cmul(X[2], t1, w1) + emitrow(KG_H[2], X[2], True)
    chA += cmul(t1, X[2], w1) + emitrow(KG_H[3], t1, True)
    chA += cmul(X[4], t1, w1) + emitrow(KG_H[4], X[4], True)
    chA += cmul(t1, X[4], w1) + emitrow(KG_H[5], t1, True)
    chA += cmul(X[6], t1, w1) + emitrow(KG_H[6], X[6], True)
    chA += cmul(t1, X[6], w1) + emitrow(KG_H[7], t1, True)
    chA += cmul(t1, X[2], w256) + emitrow(KG_H[258], t1, True)
    chA += cmul(t1, X[6], w256) + emitrow(KG_H[262], t1, True)
    cur[0] = 1
    chB = emitrow(KG_H[256], X[256], True) + emitrow(KG_H[264], X[264], True) + emitrow(KG_H[512], X[512], True) + emitrow(KG_H[520], X[520], True)
    chB += cmul(X[768], X[256], w512) + emitrow(KG_H[768], X[768], True)
    chB += cmul(X[776], X[264], w512) + emitrow(KG_H[776], X[776], True)
    for i, (h, src) in enumerate([(1024, 0), (1032, 8), (1280, 256), (1288, 264)]):
        t = t2 if i % 2 == 0 else t3
        chB += cmul(t, X[src], w1024) + emitrow(KG_H[h], t, True)
    a("s_waitcnt lgkmcnt(0)")
    for ins in interleave([chA, chB]): a(ins)
    cur[0] = 2
    chC2 = []
    for i, (h, src) in enumerate([(1536, 512), (1544, 520), (1792, 768), (1800, 776)]):
        t = t4 if i % 2 == 0 else t5
        chC2 += cmul(t, X[src], w1024) + emitrow(KG_H[h], t, True)
    cur[0] = 3
    chD = cmul(t2, X[4], w256) + emitrow(KG_H[260], t2, True) + cmul(t3, t2, w512) + emitrow(KG_H[772], t3, True)
    cur[0] = 0
    chE = cmul(t1, X[4], w512) + emitrow(KG_H[516], t1, True)
    for ins in interleave([chC2, chD, chE]): a(ins)
    AF = CH
    a("s_waitcnt lgkmcnt(0)")
    for ks in range(8):
        a(f"ds_read_b128 v[{AF+4*ks}:{AF+4*ks+3}], v6 offset:{ks*32}")
    for ks in range(8):
        a(f"s_waitcnt lgkmcnt({7-ks})")
        a(f"v_mfma_f32_32x32x16_bf16 v[{ACC}:{ACC+15}], v[{AF+4*ks}:{AF+4*ks+3}], v[{BF+4*ks}:{BF+4*ks+3}], v[{ACC}:{ACC+15}]")
    stamp(a, 2)
    a("s_waitcnt vmcnt(0)")
    a("s_barrier")
    labp = a.newlabel("kgpub")
    a("s_cmp_eq_u32 s7, 0")
    a(f"s_cbranch_scc0 {labp}")
    a("s_lshl_b32 s6, s3, 2")
    a(f"s_add_u32 s6, s6, {F_W}")
    publish(a, "s6", 3, 4)
    a.label(labp)
    a("s_and_b32 s9, s7, 3")
    a("s_lshr_b32 s10, s7, 2")
    a(f"s_mul_i32 s11, s10, {CV_CH}")
    a("v_lshlrev_b32 v4, 4, v2")
    a("v_add_u32 v4, s11, v4")
    lab1 = a.newlabel("kg_nw"); lab2 = a.newlabel("kg_w2"); lab3 = a.newlabel("kg_end")
    a("s_cmp_eq_u32 s9, 0")
    a(f"s_cbranch_scc1 {lab1}")
    a("s_sub_u32 s5, s9, 1")
    a("s_lshl_b32 s5, s5, 12")
    a("v_add_u32 v5, s5, v4")
    for q in range(4):
        a(f"ds_write_b128 v5, v[{ACC+4*q}:{ACC+4*q+3}] offset:{1024*q}")
    a.label(lab1)
    a("s_waitcnt lgkmcnt(0)")
    a("s_barrier")
    a("s_cmp_eq_u32 s9, 0")
    a(f"s_cbranch_scc0 {lab3}")
    R = 64
    for j in range(3):
        for q in range(4):
            a(f"ds_read_b128 v[{R+16*j+4*q}:{R+16*j+4*q+3}], v4 offset:{4096*j+1024*q}")
    for j in range(3):
        a(f"s_waitcnt lgkmcnt({4*(2-j)})")
        for i in range(16): a(f"v_add_f32 v{ACC+i}, v{ACC+i}, v{R+16*j+i}")
    a("v_and_b32 v5, 31, v2")
    a("v_lshlrev_b32 v5, 4, v5")
    a(f"v_sub_u32 v6, {CV_K + 4080 - 3584}, v5")
    a("v_add_u32 v6, s11, v6")
    def pk(d, lo, hi): a(f"v_cvt_pk_bf16_f32 v{d}, v{ACC+lo}, v{ACC+hi}")
    def store(base, d): a(f"ds_write_b128 v6, v[{d}:{d+3}] offset:{3584 - 2*base}")
    O = 64
    a("s_mov_b64 s[10:11], exec")
    a("s_mov_b32 exec_lo, -1")
    a("s_mov_b32 exec_hi, 0")
    pk(O, 7, 6); pk(O+1, 5, 4); pk(O+2, 3, 2); pk(O+3, 1, 0); store(0, O)
    pk(O+4, 12, 11); pk(O+5, 10, 10); pk(O+6, 10, 9); pk(O+7, 8, 8); store(256, O+4)
    a("s_mov_b32 exec_lo, 0")
    a("s_mov_b32 exec_hi, -1")
    for b in range(2):
        o = O + 8 + 4*b; r0 = 3*b
        pk(o, r0+2, r0+2); pk(o+1, r0+1, r0+1); pk(o+2, r0+1, r0); pk(o+3, r0, r0); store(512 + 256*b, o)
    a("v_and_b32 v5, 1, v2")
    a("v_cmp_eq_u32 vcc, 0, v5")
    for b in range(4):
        o = O + 16 + 4*b; r0 = 6 + 2*b
        a(f"v_cndmask_b32 v{O+40}, v{ACC+r0+1}, v{ACC+r0}, vcc")
        pk(o, r0+1, r0+1)
        a(f"v_cvt_pk_bf16_f32 v{o+1}, v{ACC+r0+1}, v{O+40}")
        pk(o+2, r0, r0); pk(o+3, r0, r0); store(1024 + 256*b, o)
    a("s_mov_b64 exec, s[10:11]")
    a.label(lab3)
    a("s_waitcnt lgkmcnt(0)")
    a("s_barrier")
    stamp(a, 3)

def body_cv(a):
    srd(a, 48, 44, SZ_X, WS_XNT)
    srd(a, 56, 44, SZ_X, WS_AOUT)
    a("v_lshrrev_b32 v12, 8, v0")
    a("v_and_b32 v2, 255, v0")
    a(f"v_mul_u32_u24 v5, {CV_CH}, v12")
    for i in range(4): a(f"v_mov_b32 v{48+i}, 0")
    a("v_lshl_add_u32 v6, v2, 4, v5")
    a("v_cmp_gt_u32 vcc, 140, v2")
    a("s_and_saveexec_b64 s[10:11], vcc")
    for rho in range(4):
        a(f"ds_write_b128 v6, v[48:51] offset:{cvbase(rho)}")
    a("s_mov_b64 exec, s[10:11]")
    a("v_cmp_gt_u32 vcc, 16, v2")
    a("s_and_saveexec_b64 s[10:11], vcc")
    a(f"ds_write_b128 v6, v[48:51] offset:{CV_K+4096}")
    a("s_mov_b64 exec, s[10:11]")
    a("s_and_b32 s5, s2, 7")
    a("s_lshl_b32 s5, s5, 12")
    a(f"s_add_u32 s5, s5, {4096 + R_X}")
    wg_wait(a, lambda: wait_flags(a, 32, "s5", 3, 4) if "X" not in SKIPW else None)
    stamp(a, 4)
    a("s_lshl_b32 s4, s3, 7")
    a("v_lshrrev_b32 v3, 2, v2")
    a("v_mul_u32_u24 v3, 28672, v3")
    a("v_lshl_add_u32 v3, v12, 6, v3")
    a("v_and_b32 v4, 3, v2")
    a("v_lshl_add_u32 v3, v4, 4, v3")
    D = 16
    a(f"buffer_load_dwordx4 v[{D}:{D+3}], v3, s[48:51], s4 offen {SC}")
    a("v_cmp_eq_u32 vcc, 0, v4")
    a(f"v_mov_b32 v4, {-8 & 0xffffffff:#x}")
    a(f"v_mov_b32 v6, {(56 - 28672) & 0xffffffff:#x}")
    a("v_cndmask_b32 v4, v4, v6, vcc")
    a("v_add_u32 v4, v4, v3")
    a("v_max_i32 v4, 0, v4")
    a(f"buffer_load_dwordx2 v[{D+4}:{D+5}], v4, s[48:51], s4 offen {SC}")
    a("s_lshl_b32 s4, s3, 13")
    a("v_lshrrev_b32 v7, 4, v2")
    a(f"v_mul_u32_u24 v7, {CV_BS}, v7")
    a("v_and_b32 v8, 15, v2")
    a("v_lshl_add_u32 v7, v8, 4, v7")
    a("v_add_u32 v7, v7, v5")
    a("v_cmp_eq_u32 vcc, 0, v2")
    a("v_and_b32 v13, 63, v0")
    a("v_bfe_u32 v14, v0, 6, 2")
    a("v_lshrrev_b32 v3, 5, v13")
    a("v_and_b32 v4, 3, v13")
    a("v_add_u32 v4, 1, v4")
    a("v_and_b32 v4, 3, v4")
    a("v_bfe_u32 v6, v13, 2, 3")
    a(f"v_mul_u32_u24 v8, {CV_CS}, v4")
    a(f"v_mul_u32_u24 v9, {CV_BS}, v6")
    a("v_add3_u32 v8, v8, v9, v5")
    a("v_lshl_add_u32 v8, v3, 4, v8")
    a(f"v_mul_u32_u24 v9, {2*CV_BS}, v14")
    a("v_sub_u32 v8, v8, v9")
    a("v_and_b32 v4, 31, v13")
    a("v_lshlrev_b32 v9, 3, v4")
    a("v_sub_u32 v9, v5, v9")
    a("v_lshl_add_u32 v9, v3, 4, v9")
    a("v_lshlrev_b32 v10, 9, v14")
    a("v_sub_u32 v9, v9, v10")
    a(f"v_add_u32 v9, {CV_K + 2*(2156-240)}, v9")
    a("v_add_u32 v10, -2048, v9")
    A0 = 64; A1 = 80
    for i in range(32): a(f"v_mov_b32 v{A0+i}, 0")
    a("s_waitcnt vmcnt(0)")
    a(f"v_cndmask_b32_e64 v{D+4}, v{D+4}, 0, vcc")
    a(f"v_cndmask_b32_e64 v{D+5}, v{D+5}, 0, vcc")
    d = D; p = d + 4; ob = 7*CV_BS; E = 52
    a(f"ds_write_b128 v7, v[{d}:{d+3}] offset:{cvbase(3)+ob}")
    a(f"v_mov_b32 v{E}, v{p+1}"); a(f"v_mov_b32 v{E+1}, v{d}"); a(f"v_mov_b32 v{E+2}, v{d+1}"); a(f"v_mov_b32 v{E+3}, v{d+2}")
    a(f"ds_write_b128 v7, v[{E}:{E+3}] offset:{cvbase(1)+ob}")
    a(f"v_alignbit_b32 v{E+4}, v{d}, v{p+1}, 16")
    a(f"v_alignbit_b32 v{E+5}, v{d+1}, v{d}, 16")
    a(f"v_alignbit_b32 v{E+6}, v{d+2}, v{d+1}, 16")
    a(f"v_alignbit_b32 v{E+7}, v{d+3}, v{d+2}, 16")
    a(f"ds_write_b128 v7, v[{E+4}:{E+7}] offset:{cvbase(2)+ob}")
    a(f"v_alignbit_b32 v{E+8}, v{p+1}, v{p}, 16")
    a(f"v_mov_b32 v{E+9}, v{E+4}"); a(f"v_mov_b32 v{E+10}, v{E+5}"); a(f"v_mov_b32 v{E+11}, v{E+6}")
    a(f"ds_write_b128 v7, v[{E+8}:{E+11}] offset:{cvbase(0)+ob}")
    a("s_waitcnt lgkmcnt(0)")
    a("s_barrier")
    stamp(a, 5)
    NS = 3; NSTEP = 16
    def rdl(sp):
        S = 16 + 16*(sp % NS)
        z = 1008 - 16*sp
        ou = (z >> 7)*CV_BS + (z & 127)*2
        ok = 32*(15 - sp)
        return [f"ds_read_b128 v[{S}:{S+3}], v8 offset:{ou}",
                f"ds_read_b64 v[{S+8}:{S+9}], v9 offset:{ok}",
                f"ds_read_b64 v[{S+10}:{S+11}], v9 offset:{ok+8}",
                f"ds_read_b128 v[{S+4}:{S+7}], v8 offset:{ou+8*CV_BS}",
                f"ds_read_b64 v[{S+12}:{S+13}], v10 offset:{ok}",
                f"ds_read_b64 v[{S+14}:{S+15}], v10 offset:{ok+8}"]
    for ins in rdl(0) + rdl(1): a(ins)
    for sp in range(NSTEP):
        a(f"s_waitcnt lgkmcnt({6 if sp < NSTEP-1 else 0})")
        S = 16 + 16*(sp % NS)
        R = rdl(sp + 2) if sp + 2 < NSTEP else []
        M = [f"v_mfma_f32_32x32x16_bf16 v[{A0}:{A0+15}], v[{S}:{S+3}], v[{S+8}:{S+11}], v[{A0}:{A0+15}]",
             f"v_mfma_f32_32x32x16_bf16 v[{A1}:{A1+15}], v[{S+4}:{S+7}], v[{S+8}:{S+11}], v[{A1}:{A1+15}]",
             f"v_mfma_f32_32x32x16_bf16 v[{A1}:{A1+15}], v[{S}:{S+3}], v[{S+12}:{S+15}], v[{A1}:{A1+15}]"]
        for i in range(3):
            a(M[i])
            for ins in R[2*i:2*i+2]: a(ins)
    stamp(a, 6)
    a("v_lshlrev_b32 v3, 4, v13")
    a("v_add_u32 v3, v3, v5")
    a("s_and_b32 s9, s7, 3")
    a("s_barrier")
    OWN = 40
    for p_ in range(4):
        lo = a.newlabel("cvo"); le = a.newlabel("cve")
        a(f"s_cmp_eq_u32 s9, {p_}")
        a(f"s_cbranch_scc1 {lo}")
        a(f"s_cmp_gt_u32 s9, {p_}")
        a("s_cselect_b32 s5, 1, 0")
        a("s_sub_u32 s5, s9, s5")
        a("s_lshl_b32 s5, s5, 11")
        a("v_add_u32 v4, s5, v3")
        for j in range(2):
            a(f"ds_write_b128 v4, v[{A0+8*p_+4*j}:{A0+8*p_+4*j+3}] offset:{CV_CS+p_*3*2048+j*1024}")
        a(f"s_branch {le}")
        a.label(lo)
        for k in range(8): a(f"v_mov_b32 v{OWN+k}, v{A0+8*p_+k}")
        a.label(le)
    a("s_mul_i32 s5, s9, 6144")
    a("v_add_u32 v4, s5, v3")
    a("v_lshrrev_b32 v3, 5, v13")
    a("v_lshrrev_b32 v6, 1, v14")
    a("v_and_b32 v7, 1, v14")
    a("v_lshl_add_u32 v6, v6, 3, v3")
    a("v_lshl_add_u32 v6, v7, 2, v6")
    a(f"v_mul_u32_u24 v7, {CV_BS}, v6")
    a("v_and_b32 v9, 31, v13")
    a("v_lshl_add_u32 v7, v9, 3, v7")
    a("v_add_u32 v7, v7, v5")
    a("v_lshlrev_b32 v8, 12, v12")
    a("v_lshl_add_u32 v8, v6, 8, v8")
    a("v_lshl_add_u32 v8, v9, 3, v8")
    a("v_mov_b32 v10, s47")
    a("v_lshlrev_b32 v11, 16, v10")
    a("v_and_b32 v10, 0xffff0000, v10")
    a("v_cmp_eq_u32 vcc, 0, v12")
    a("v_cndmask_b32 v10, v10, v11, vcc")
    a("s_waitcnt lgkmcnt(0)")
    a("s_barrier")
    R = 16
    for src in range(3):
        for j in range(2):
            a(f"ds_read_b128 v[{R+8*src+4*j}:{R+8*src+4*j+3}], v4 offset:{CV_CS+src*2048+j*1024}")
    X = 48
    for qq in range(2): a(f"ds_read_b64 v[{X+2*qq}:{X+2*qq+1}], v7 offset:{cvbase(3) + (7+2*qq)*CV_BS}")
    a("s_waitcnt lgkmcnt(4)")
    for k in range(8): a(f"v_add_f32 v{R+k}, v{R+k}, v{R+8+k}")
    a("s_waitcnt lgkmcnt(2)")
    for k in range(8): a(f"v_add_f32 v{R+16+k}, v{R+16+k}, v{OWN+k}")
    for k in range(8): a(f"v_add_f32 v{R+k}, v{R+k}, v{R+16+k}")
    a("s_waitcnt lgkmcnt(0)")
    T = 56
    for qq in range(2):
        for hh in range(2):
            y0 = R + 4*qq + 2*hh; x = X + 2*qq + hh
            a(f"v_cvt_pk_bf16_f32 v{T}, v{y0}, v{y0+1}")
            unpack(a, T+1, T+2, T)
            unpack(a, T+3, T+4, x)
            a(f"v_mul_f32 v{T+3}, v{T+3}, v10")
            a(f"v_mul_f32 v{T+4}, v{T+4}, v10")
            a(f"v_cvt_pk_bf16_f32 v{T}, v{T+3}, v{T+4}")
            unpack(a, T+3, T+4, T)
            a(f"v_add_f32 v{T+1}, v{T+1}, v{T+3}")
            a(f"v_add_f32 v{T+2}, v{T+2}, v{T+4}")
            a(f"v_cvt_pk_bf16_f32 v{64+2*qq+hh}, v{T+1}, v{T+2}")
        a(f"buffer_store_dwordx2 v[{64+2*qq}:{64+2*qq+1}], v8, s[56:59], s4 offen offset:{512*qq} {SC}")
    a("s_waitcnt vmcnt(0)")
    a("s_barrier")
    lab = a.newlabel("cvpub")
    a("s_cmp_eq_u32 s7, 0")
    a(f"s_cbranch_scc0 {lab}")
    a("s_lshl_b32 s6, s3, 2")
    a(f"s_add_u32 s6, s6, {R_C}")
    publish_rep(a, "s6", 3, 4)
    a.label(lab)

def build_kernel():
    a = Asm()
    load_ptrs(a)
    a("s_cmp_ge_u32 s2, 480")
    a("s_cbranch_scc1 L_end")
    a("s_waitcnt lgkmcnt(0)")
    srd(a, 80, 44, 36864, WS_FL)
    a("s_load_dword s46, s[80:81], 0")
    a("s_waitcnt lgkmcnt(0)")
    a("s_add_u32 s46, s46, 1")
    a("s_cmp_ge_u32 s2, 256")
    a("s_cbranch_scc1 L_A")
    a("s_cmp_lt_u32 s2, 224")
    a("s_cbranch_scc1 L_B")
    a("s_sub_u32 s3, s2, 224")
    kern.PROF_V = 123; stamp(a, 0)
    body_ln(a)
    stamp(a, 3); prof_flush(a, 0, 4)
    a("s_endpgm")
    a.label("L_B")
    a("s_mov_b32 s3, s2")
    kern.PROF_V = 123; stamp(a, 0)
    body_kg(a)
    kern.PROF_V = 1
    if kern.PROF: a("v_mov_b32 v1, v123")
    if not NOP2: body_cv(a)
    stamp(a, 7); prof_flush(a, 0, 4)
    a("s_endpgm")
    a.label("L_A")
    a("s_sub_u32 s3, s2, 256")
    kern.PROF_V = 1; stamp(a, 0)
    body_g1(a)
    if not NOP2: body_g2(a)
    if kern.PROF: a("s_waitcnt vmcnt(0)")
    stamp(a, 9); prof_flush(a, 0, 4)
    a.label("L_end")
    a("s_endpgm")
    return a

NAME = "parallel_sum__ssm_conv_s4__dense_activation_relu__prompt_kernel"
def build(path):
    a = build_kernel()
    t, d, n = kernel_text(NAME, a, 128)
    hdr = "; generated by dev/kern4.py (own generator)\n; @launch grid=(480,1,1) block=(512,1,1) lds=81920\n.amdgcn_target \"amdgcn-amd-amdhsa--gfx950\"\n"
    open(path, "w").write(hdr + t + d)
    print(f"{path}: {len(t.splitlines())} lines, {n} hazard pads")

if __name__ == "__main__":
    EPRIO = 3
    kern.PROF = True
    build("sp.s")
    kern.PROF = False
    build("s.s")
```

```python
from asmgen import Asm, kernel_text
import kern
from kern import (srd, load_ptrs, f32bits, bf_round, unpack, interleave, kg_row, KG_H, KG_RS,
                  WS_H, WS_W2F, WS_XNT, WS_AOUT, SZ_H, SZ_WF, SZ_X, stamp, prof_flush)
from kern2 import VM
SC = "sc1"
NAME = "parallel_sum__ssm_conv_s4__dense_activation_relu__prompt_kernel"
WS_ST = 0x1300000
WS_FL = 0x1400000
F_E = 0; F_S = 0x1000; F_H = 0x2000; F_W = 0x9000; F_X = 0x10000; F_C = 0x18000; FL_SZ = 0x20000
SPIN = 0x20000
LFINE = False
TOUCH1 = True
NOP2 = False
CODEPF = False
RFOLD = False
EARLYG2 = True
KGLOW = 0
NOW2ST = False
W2SC = 'sc1'
XSLEEP = 16
NEARLY = 5
G2RING = True
WAVEPROF = False
LDPRIO = 0
G2PRIO = 0
FSH = 7
XSH = 7
W2PUB = 'count'
WPOLL = 0
HPUB = 0
KGHI = 2
W2CUT = 40
DIAGDELAY = 0
W2TOUCH = False
W2T_C = 8
W2MODE = 2
NOKG = False
NOCV = False
G1MAP = 47
WAVEH = False
HSLEEP = 8
TLATE = 0
NINIT = 4
G1PK = False
LNPK = False
EPRIO = 0
SKIPW = ''
G1PRIO = 1
CV_BS = 320; CV_CS = 7376; CV_K = 4*CV_CS; CV_CH = CV_K + 4352
def cvbase(rho): return ((rho + 1) & 3) * CV_CS

def so(soff):
    return f"{soff} offen" if isinstance(soff, str) else f"0 offen offset:{soff}"

def fix_tag(a):
    a("s_waitcnt lgkmcnt(0)")
    a("s_add_u32 s46, s46, 1")

def publish(a, soff, t0, t1):
    a(f"v_mov_b32 v{t0}, 0")
    a(f"v_mov_b32 v{t1}, s46")
    a("s_mov_b64 s[86:87], exec")
    a("s_mov_b64 exec, 1")
    a(f"buffer_store_dword v{t1}, v{t0}, s[80:83], {so(soff)} {SC}")
    a("s_mov_b64 exec, s[86:87]")

def publish_rep(a, soff, t0, t1, stride):
    a(f"v_and_b32 v{t0}, 7, v0")
    a(f"v_mul_u32_u24 v{t0}, {stride}, v{t0}")
    a(f"v_mov_b32 v{t1}, s46")
    a("s_mov_b64 s[86:87], exec")
    a("s_mov_b64 exec, 0xff")
    a(f"buffer_store_dword v{t1}, v{t0}, s[80:83], {soff} offen {SC}")
    a("s_mov_b64 exec, s[86:87]")

SLEEP = 8
def wg_wait(a, fn, wave=0):
    lab = a.newlabel("wgw")
    a(f"s_cmp_eq_u32 s7, {wave}")
    a(f"s_cbranch_scc0 {lab}")
    fn()
    a.label(lab)
    a("s_barrier")

def wait_flags(a, n, soff, t0, t1, wide=False, compact=False):
    lab = a.newlabel("wf"); ok = a.newlabel("wfok")
    a(f"v_and_b32 v{t0}, 63, v0")
    sh = (4 if wide else 2) if compact else (9 if wide else 7)
    a(f"v_lshlrev_b32 v{t0}, {sh}, v{t0}")
    a("s_mov_b64 s[86:87], exec")
    m = (1 << n) - 1
    a(f"s_mov_b32 exec_lo, {m & 0xffffffff:#x}")
    a(f"s_mov_b32 exec_hi, {m >> 32:#x}")
    a("s_mov_b32 s77, 0")
    a.label(lab)
    if compact and wide:
        a(f"buffer_load_dwordx4 v[{t1}:{t1+3}], v{t0}, s[80:83], {soff} offen {SC}")
    else:
        for k in range(4 if wide else 1):
            a(f"buffer_load_dword v{t1+k}, v{t0}, s[80:83], {soff} offen offset:{128*k} {SC}")
    a("s_waitcnt vmcnt(0)")
    a(f"v_cmp_ne_u32 vcc, s46, v{t1}")
    if wide:
        for i in range(1, 4):
            a(f"v_cmp_ne_u32 s[88:89], s46, v{t1+i}")
            a("s_or_b64 vcc, vcc, s[88:89]")
    a(f"s_cbranch_vccz {ok}")
    a("s_add_u32 s77, s77, 1")
    a(f"s_cmp_ge_u32 s77, {SPIN:#x}")
    a(f"s_cbranch_scc1 {ok}")
    a(f"s_sleep {SLEEP}")
    a(f"s_branch {lab}")
    a.label(ok)
    a("s_mov_b64 exec, s[86:87]")

G2_NPRE = 5; G2_GREG = 10240
def g2_setup(a):
    srd(a, 48, 44, SZ_WF, WS_W2F)
    srd(a, 52, 44, SZ_H, WS_H)
    a("s_lshr_b32 s14, s3, 3")
    a("s_mul_hi_u32 s5, s14, 0x24924925")
    a("s_mul_i32 s13, s5, 7")
    a("s_sub_u32 s13, s14, s13")
    a("s_and_b32 s12, s3, 7")
    a("s_lshl_b32 s12, s12, 2")
    a("s_add_u32 s12, s12, s5")
    a("v_and_b32 v2, 63, v0")
    a("v_lshlrev_b32 v3, 4, v2")
    a("s_mul_i32 s4, s7, 14")
    a("s_lshl_b32 s5, s13, 1")
    a("s_mul_i32 s5, s5, 112")
    a("s_add_u32 s5, s5, s4")
    a("s_lshl_b32 s68, s5, 10")
    a(f"s_add_u32 s69, s68, {112*1024}")
    a("s_lshl_b32 s5, s12, 1")
    a("s_mul_i32 s5, s5, 112")
    a("s_add_u32 s5, s5, s4")
    a("s_lshl_b32 s70, s5, 10")
    a(f"s_add_u32 s71, s70, {112*1024}")
    ACC = 64
    for i in range(64): a(f"v_mov_b32 v{ACC+i}, 0")
    a(f"s_mul_i32 s90, s7, {G2_GREG}")

def g2_dmaA(ks):
    return [[f"s_add_u32 m0, s90, {(ks % G2_NPRE)*2048 + t*1024}", f"buffer_load_dwordx4 v3, s[48:51], s{68+t} offen {SC} lds", f"s_add_u32 s{68+t}, s{68+t}, 1024"] for t in range(2)]

def body_g1(a):
    NB = 5; NCH = 14; WB = NB*8192
    WL = 4*8192
    a("s_lshr_b32 s14, s3, 3")
    if G1MAP == 47:
        a("s_mul_hi_u32 s5, s14, 0x24924925")
        a("s_mul_i32 s13, s5, 7")
        a("s_sub_u32 s13, s14, s13")
        a("s_and_b32 s6, s3, 1")
        a("s_mul_i32 s6, s6, 7")
        a("s_add_u32 s13, s13, s6")
        a("s_bfe_u32 s12, s3, 0x20001")
        a("s_lshl_b32 s12, s12, 2")
        a("s_add_u32 s12, s12, s5")
    else:
        a("s_mul_hi_u32 s5, s14, 0x12492493")
        a("s_mul_i32 s13, s5, 14")
        a("s_sub_u32 s13, s14, s13")
        a("s_and_b32 s12, s3, 7")
        a("s_lshl_b32 s12, s12, 1")
        a("s_add_u32 s12, s12, s5")
    a(f"s_mul_i32 s92, s12, {14 if FSH == 7 else 16}")
    a("s_add_u32 s92, s92, s13")
    a(f"s_lshl_b32 s92, s92, {FSH}")
    a(f"s_add_u32 s92, s92, {F_H}")
    a("s_mov_b32 s91, 0")
    a("v_lshrrev_b32 v2, 6, v0")
    a("v_and_b32 v3, 63, v0")
    a("v_readfirstlane_b32 s7, v2")
    a("s_cmp_lt_u32 s7, 4")
    a("s_cbranch_scc1 L_g1_compute")
    vm = VM()
    if LDPRIO: a(f"s_setprio {LDPRIO}")
    srd(a, 48, 16, SZ_X)
    srd(a, 52, 36, SZ_WF)
    a("s_sub_u32 s15, s7, 4")
    a("v_lshrrev_b32 v8, 2, v3")
    a("v_and_b32 v4, 3, v3")
    a("v_bfe_u32 v5, v3, 4, 2")
    a("v_xor_b32 v4, v4, v5")
    a("v_mul_u32_u24 v8, 896, v8")
    a("v_lshl_add_u32 v8, v4, 4, v8")
    a("v_lshrrev_b32 v9, 4, v3")
    a("v_and_b32 v5, 15, v3")
    a("v_lshlrev_b32 v6, 2, v9")
    a("v_xor_b32 v5, v5, v6")
    a("v_mul_u32_u24 v9, 3584, v9")
    a("v_lshl_add_u32 v9, v5, 4, v9")
    a("s_lshl_b32 s8, s12, 2")
    a("s_add_u32 s8, s8, s15")
    a("s_mul_i32 s8, s8, 28672")
    a("s_mul_i32 s9, s15, 28672")
    a("s_lshl_b32 s5, s13, 8")
    a("s_add_u32 s9, s9, s5")
    a("s_lshl_b32 s10, s15, 11")
    def dma(c):
        buf = (c % NB) * 8192
        a(f"s_add_u32 m0, s10, {buf}")
        a("s_add_u32 s5, s8, 14336")
        a(f"buffer_load_dwordx4 v8, s[48:51], s8 offen lds")
        a(f"s_add_u32 m0, s10, {buf+WB}")
        a("s_add_u32 s6, s9, 14336")
        a(f"buffer_load_dwordx4 v9, s[52:55], s9 offen lds")
        a(f"s_add_u32 m0, s10, {buf+1024}")
        a("s_add_u32 s8, s8, 64")
        a(f"buffer_load_dwordx4 v8, s[48:51], s5 offen lds")
        a(f"s_add_u32 m0, s10, {buf+WB+1024}")
        a("s_add_u32 s9, s9, 114688")
        a(f"buffer_load_dwordx4 v9, s[52:55], s6 offen lds")
        vm.issue(("c", c), 4)
    for c in range(NINIT): dma(c)
    def touches():
        a("v_add_u32 v10, -256, v0")
        a("s_mul_i32 s5, s14, 224")
        a("v_add_u32 v5, s5, v10")
        a("s_mov_b32 s6, 0x12492493")
        a("v_mul_hi_u32 v6, v5, s6")
        a("v_mul_u32_u24 v7, 14, v6")
        a("v_sub_u32 v7, v5, v7")
        a("v_mul_u32_u24 v6, 3584, v6")
        a("v_lshl_add_u32 v6, v7, 7, v6")
        a("s_and_b32 s6, s3, 1")
        a("s_mul_i32 s6, s6, 1792")
        a("v_cmp_gt_u32 vcc, 224, v10")
        a("v_mov_b32 v7, 0x7ffffff0")
        a("v_cndmask_b32 v6, v7, v6, vcc")
        a("buffer_load_dword v11, v6, s[52:55], s6 offen")
        a("s_bfe_u32 s5, s3, 0x20001")
        a("s_mul_i32 s5, s5, 458752")
        a("s_lshl_b32 s6, s14, 14")
        a("s_add_u32 s5, s5, s6")
        a("v_lshlrev_b32 v5, 7, v10")
        a("v_cmp_gt_u32 vcc, 128, v10")
        a("v_mov_b32 v7, 0x7ffffff0")
        a("v_cndmask_b32 v6, v7, v5, vcc")
        a("buffer_load_dword v12, v6, s[48:51], s5 offen")
        vm.issue("touch", 2)
    def touches214():
        a("v_add_u32 v10, -256, v0")
        a("s_mul_i32 s5, s14, 57344")
        a("v_lshlrev_b32 v5, 7, v10")
        a("buffer_load_dword v11, v5, s[52:55], s5 offen")
        a("s_add_u32 s5, s5, 32768")
        a("v_cmp_gt_u32 vcc, 192, v10")
        a("v_mov_b32 v7, 0x7ffffff0")
        a("v_cndmask_b32 v6, v7, v5, vcc")
        a("buffer_load_dword v12, v6, s[52:55], s5 offen")
        a("s_and_b32 s5, s3, 7")
        a("s_mul_i32 s5, s5, 229376")
        a("s_lshl_b32 s6, s14, 13")
        a("s_add_u32 s5, s5, s6")
        a("v_cmp_gt_u32 vcc, 64, v10")
        a("v_cndmask_b32 v6, v7, v5, vcc")
        a("buffer_load_dword v16, v6, s[48:51], s5 offen")
        vm.issue("touch", 3)
    if G1MAP != 47: touches = touches214
    if TOUCH1 and TLATE == 0: touches()
    srd(a, 60, 44, 16384, WS_ST)
    a("s_cmp_eq_u32 s15, 0")
    a("s_cselect_b32 s5, 0, 0x7ffffff0")
    a("v_and_b32 v13, 1, v3")
    a(f"v_lshlrev_b32 v13, {FSH}, v13")
    a("v_add_u32 v13, s5, v13")
    a("v_mov_b32 v15, s5")
    a(f"s_lshl_b32 s72, s12, {FSH+1}")
    a(f"s_add_u32 s72, s72, {F_S}")
    fix_tag(a)
    a(f"s_waitcnt vmcnt({vm.wait_for(('c', 0))})")
    a("s_barrier")
    for c in range(NINIT, 4): dma(c)
    if TOUCH1 and TLATE == 1: touches()
    for c in range(NCH - 1):
        a(f"s_waitcnt vmcnt({vm.wait_for(('c', c + 1))})")
        a("s_barrier")
        if LFINE:
            kern.PROF_V = 20; stamp(a, 8 + c); kern.PROF_V = 1
        if c + 4 < NCH: dma(c + 4)
        if c == 8:
            a(f"buffer_load_dword v14, v13, s[80:83], s72 offen {SC}")
            vm.issue("poll")
        if W2TOUCH and c == W2T_C:
            a("v_lshlrev_b32 v20, 4, v3")
            a("s_mov_b64 s[86:87], exec")
            a("s_mov_b32 exec_hi, 0xffffff")
            a(f"buffer_load_dwordx4 v[24:27], v20, s[80:83], 0 offen offset:{F_W} {SC}")
            a("s_mov_b64 exec, s[86:87]")
            vm.issue("pollw")
        if W2TOUCH and c == W2T_C + 2:
            a(f"s_waitcnt vmcnt({vm.wait_for('pollw')})")
            a("s_mov_b32 exec_hi, 0xffffff")
            a("v_cmp_ne_u32 vcc, s46, v24")
            for i in range(25, 28):
                a(f"v_cmp_ne_u32 s[88:89], s46, v{i}")
                a("s_or_b64 vcc, vcc, s[88:89]")
            a("s_mov_b64 exec, -1")
            a("s_cmp_eq_u64 vcc, 0")
            a("s_cselect_b32 s5, 0, 0x7ffffff0")
            srd(a, 56, 44, SZ_WF, WS_W2F)
            a("v_add_u32 v20, -256, v0")
            a("v_lshlrev_b32 v20, 7, v20")
            a("v_add_u32 v20, s5, v20")
            a("s_mul_i32 s5, s14, 57344")
            a(f"buffer_load_dword v21, v20, s[56:59], s5 offen {SC}")
            a("s_add_u32 s5, s5, 32768")
            a("v_cmp_gt_u32 vcc, 192, v10")
            a("v_mov_b32 v22, 0x7ffffff0")
            a("v_cndmask_b32 v20, v22, v20, vcc")
            a(f"buffer_load_dword v22, v20, s[56:59], s5 offen {SC}")
            vm.issue("w2t", 2)
        if c == 11:
            a(f"s_waitcnt vmcnt({vm.wait_for('poll')})")
            labs = a.newlabel("g1sk"); lab = a.newlabel("g1sp")
            a("s_cmp_eq_u32 s15, 0")
            a(f"s_cbranch_scc0 {labs}")
            a("s_mov_b32 s77, 0")
            a.label(lab)
            a("v_cmp_ne_u32 vcc, s46, v14")
            a(f"s_cbranch_vccz {labs}")
            a("s_add_u32 s77, s77, 1")
            a(f"s_cmp_ge_u32 s77, {SPIN:#x}")
            a(f"s_cbranch_scc1 {labs}")
            a("s_sleep 8")
            a(f"buffer_load_dword v14, v13, s[80:83], s72 offen {SC}")
            a("s_waitcnt vmcnt(0)")
            a(f"s_branch {lab}")
            a.label(labs)
            a("s_lshl_b32 s5, s12, 10")
            a("v_lshlrev_b32 v14, 4, v3")
            a("v_add_u32 v14, v15, v14")
            a(f"buffer_load_dwordx4 v[16:19], v14, s[60:63], s5 offen {SC}")
            vm.issue("stats")
    lab_end = a.newlabel("g1ldend")
    a("s_cmp_eq_u32 s15, 0")
    a(f"s_cbranch_scc0 {lab_end}")
    a("s_waitcnt vmcnt(0)")
    a(f"ds_write_b128 v14, v[16:19] offset:{WL+1024}")
    a("s_waitcnt lgkmcnt(0)")
    a.label(lab_end)
    a("s_waitcnt vmcnt(0)")
    if LDPRIO: a("s_setprio 0")
    a("s_barrier")
    if EARLYG2:
        g2_setup(a)
        a("s_mov_b32 s91, 1")
        le = a.newlabel("g2early")
        a("v_lshlrev_b32 v4, 4, v2")
        a(f"s_mov_b32 s9, {F_W}")
        a("s_mov_b32 exec_hi, 0xffffff")
        a(f"buffer_load_dwordx4 v[8:11], v4, s[80:83], s9 offen {SC}")
        a("s_waitcnt vmcnt(0)")
        a("v_cmp_ne_u32 vcc, s46, v8")
        for i in range(9, 12):
            a(f"v_cmp_ne_u32 s[88:89], s46, v{i}")
            a("s_or_b64 vcc, vcc, s[88:89]")
        a("s_mov_b64 exec, -1")
        a(f"s_cbranch_vccnz {le}")
        for ks in range(G2_NPRE):
            for g in g2_dmaA(ks):
                for ins in g: a(ins)
        a("s_waitcnt vmcnt(0)")
        a("s_mov_b32 s91, 2")
        a.label(le)
    a("s_branch L_g1_done")
    a.label("L_g1_compute")
    if G1PRIO: a(f"s_setprio {G1PRIO}")
    srd(a, 56, 44, SZ_H, WS_H)
    a("s_and_b32 s15, s7, 1")
    a("s_lshr_b32 s11, s7, 1")
    a("v_and_b32 v4, 31, v3")
    a("v_lshrrev_b32 v6, 5, v3")
    a("v_bfe_u32 v7, v3, 2, 2")
    a("v_xor_b32 v7, v7, v6")
    a("v_lshlrev_b32 v4, 6, v4")
    a("v_lshl_add_u32 v4, v7, 4, v4")
    a("s_lshl_b32 s5, s11, 12")
    a("v_add_u32 v4, s5, v4")
    a("v_xor_b32 v5, 32, v4")
    a("v_bfe_u32 v7, v3, 2, 2")
    a("v_lshl_add_u32 v8, v6, 3, v7")
    a("v_lshlrev_b32 v8, 8, v8")
    a("v_bfe_u32 v9, v3, 4, 1")
    a("v_lshl_add_u32 v8, v9, 5, v8")
    a("v_and_b32 v9, 3, v3")
    a("v_lshl_add_u32 v8, v9, 3, v8")
    a(f"v_add_u32 v8, {WB}, v8")
    a("s_lshl_b32 s5, s15, 1")
    a("s_add_u32 s68, s5, s11")
    a("s_xor_b32 s69, s68, 1")
    a("v_xor_b32 v9, s69, v7")
    a("v_xor_b32 v6, s68, v7")
    a("v_lshl_add_u32 v7, v9, 6, v8")
    a("v_lshl_add_u32 v6, v6, 6, v8")
    SEL = 8; WACC = 12; ACC = 64; SETS = [16, 32, 48]
    a("v_and_b32 v2, 31, v3")
    a("v_cmp_eq_u32 vcc, 0, v2")
    a("v_cmp_eq_u32 s[70:71], 17, v2")
    a("s_or_b64 vcc, vcc, s[70:71]")
    a("v_mov_b32 v2, 0x3f803f80")
    a(f"v_cndmask_b32 v{SEL}, 0, v2, vcc")
    for i in range(1, 4): a(f"v_mov_b32 v{SEL+i}, v{SEL}")
    for i in range(4): a(f"v_mov_b32 v{WACC+i}, 0")
    for i in range(64): a(f"v_mov_b32 v{ACC+i}, 0")
    def rlist(c, st, S):
        o = (c % NB) * 8192
        vb = 4 if st == 0 else 5
        return [f"ds_read_b64_tr_b16 v[{S}:{S+1}], v6 offset:{o+st*4096}",
                f"ds_read_b64_tr_b16 v[{S+2}:{S+3}], v6 offset:{o+st*4096+1024}",
                f"ds_read_b128 v[{S+8}:{S+11}], v{vb} offset:{o}",
                f"ds_read_b128 v[{S+12}:{S+15}], v{vb} offset:{o+2048}",
                f"ds_read_b64_tr_b16 v[{S+4}:{S+5}], v7 offset:{o+st*4096}",
                f"ds_read_b64_tr_b16 v[{S+6}:{S+7}], v7 offset:{o+st*4096+1024}"]
    def mlist(S):
        m = []
        for aa in range(2):
            for b in range(2):
                d = ACC + 16*(2*aa+b)
                m.append(f"v_mfma_f32_32x32x16_bf16 v[{d}:{d+15}], v[{S+4*aa}:{S+4*aa+3}], v[{S+8+4*b}:{S+8+4*b+3}], v[{d}:{d+15}]")
        m.append(f"v_mfma_f32_16x16x32_bf16 v[{WACC}:{WACC+3}], v[{SEL}:{SEL+3}], v[{S}:{S+3}], v[{WACC}:{WACC+3}]")
        return m
    fix_tag(a)
    a("s_barrier")
    stamp(a, 1)
    for ins in rlist(0, 0, SETS[0]) + rlist(0, 1, SETS[1]): a(ins)
    for c in range(NCH):
        if c < NCH - 1: a("s_barrier")
        nxt = c + 1 < NCH
        for st in range(2):
            s_ = 2*c + st
            a(f"s_waitcnt lgkmcnt({0 if s_ == 2*NCH - 1 else 6})")
            R = rlist(c + 1, st, SETS[(s_ + 2) % 3]) if nxt else []
            M = mlist(SETS[s_ % 3])
            pat = [1, 2, 1, 2, 0]; ri = 0
            for i, m in enumerate(M):
                a(m)
                for _ in range(pat[i]):
                    if ri < len(R): a(R[ri]); ri += 1
    stamp(a, 2)
    if EPRIO: a(f"s_setprio {EPRIO}")
    a("v_and_b32 v3, 63, v0")
    a("s_lshl_b32 s5, s68, 7")
    a("v_and_b32 v2, 15, v3")
    a("v_lshlrev_b32 v2, 2, v2")
    a("v_add_u32 v2, s5, v2")
    a("s_mov_b64 s[70:71], exec")
    a("s_mov_b64 exec, 0xffff")
    a(f"ds_write_b32 v2, v{WACC} offset:{WL}")
    a(f"ds_write_b32 v2, v{WACC+1} offset:{WL+64}")
    a("s_mov_b64 exec, s[70:71]")
    a("s_waitcnt lgkmcnt(0)")
    a("s_barrier")
    WR = 16; ST = 48
    a("v_lshrrev_b32 v2, 5, v3")
    a("v_lshlrev_b32 v2, 4, v2")
    a("s_lshl_b32 s5, s68, 7")
    a("v_add_u32 v4, s5, v2")
    a("s_lshl_b32 s5, s69, 7")
    a("v_add_u32 v5, s5, v2")
    a("v_and_b32 v2, 31, v3")
    a("v_lshlrev_b32 v2, 3, v2")
    a("s_lshl_b32 s5, s11, 9")
    a("v_add_u32 v2, s5, v2")
    a(f"ds_read_b64 v[{ST}:{ST+1}], v2 offset:{WL+1024}")
    a(f"ds_read_b64 v[{ST+2}:{ST+3}], v2 offset:{WL+1024+256}")
    for aa in range(2):
        for q in range(4):
            a(f"ds_read_b128 v[{WR+16*aa+4*q}:{WR+16*aa+4*q+3}], v{4+aa} offset:{WL+32*q}")
    a("s_lshl_b32 s4, s12, 2")
    a("s_lshl_b32 s5, s11, 1")
    a("s_add_u32 s4, s4, s5")
    a("s_mul_i32 s4, s4, 112")
    a("s_lshl_b32 s5, s13, 3")
    a("s_add_u32 s4, s4, s5")
    a("s_lshl_b32 s5, s68, 1")
    a("s_add_u32 s74, s4, s5")
    a("s_lshl_b32 s74, s74, 10")
    a("s_lshl_b32 s5, s69, 1")
    a("s_add_u32 s75, s4, s5")
    a("s_lshl_b32 s75, s75, 10")
    a("v_lshlrev_b32 v3, 4, v3")
    a("s_waitcnt lgkmcnt(8)")
    if not RFOLD:
        a(f"v_mul_f32 v{ST}, v{ST}, v{ST+1}")
        a(f"v_mul_f32 v{ST+2}, v{ST+2}, v{ST+3}")
    a("s_waitcnt lgkmcnt(0)")
    TT = 52
    for aa in range(2):
        for b in range(2):
            d = ACC + 16*(2*aa+b); w = WR + 16*aa
            if G1PK:
                for k in range(8):
                    t = TT + 2*(k % 4)
                    a(f"v_pk_mul_f32 v[{t}:{t+1}], v[{w+2*k}:{w+2*k+1}], v[{ST+2*b}:{ST+2*b+1}] op_sel_hi:[1,0]")
                    a(f"v_pk_fma_f32 v[{d+2*k}:{d+2*k+1}], v[{d+2*k}:{d+2*k+1}], v[{ST+2*b}:{ST+2*b+1}], v[{t}:{t+1}] op_sel:[0,1,0] op_sel_hi:[1,1,1] neg_lo:[0,0,1] neg_hi:[0,0,1]")
            elif RFOLD:
                for k in range(16):
                    a(f"v_fma_f32 v{d+k}, -v{ST+2*b}, v{w+k}, v{d+k}")
            else:
                for k in range(16):
                    t = TT + (k % 8)
                    a(f"v_mul_f32 v{t}, v{w+k}, v{ST+2*b}")
                    a(f"v_fma_f32 v{d+k}, v{d+k}, v{ST+2*b+1}, -v{t}")
            for k in range(8):
                if G1PK:
                    a(f"v_cvt_pk_bf16_f32 v{d+k}, v{d+2*k}, v{d+2*k+1}")
                    a(f"v_pk_max_i16 v{d+k}, v{d+k}, 0")
                else:
                    a(f"v_max_f32 v{d+2*k}, 0, v{d+2*k}")
                    a(f"v_max_f32 v{d+2*k+1}, 0, v{d+2*k+1}")
                    a(f"v_cvt_pk_bf16_f32 v{d+k}, v{d+2*k}, v{d+2*k+1}")
            a(f"s_add_u32 s5, s{74+aa}, {b*112*1024}")
            a(f"buffer_store_dwordx4 v[{d}:{d+3}], v3, s[56:59], s5 offen {SC}")
            a(f"buffer_store_dwordx4 v[{d+4}:{d+7}], v3, s[56:59], s5 offen offset:1024 {SC}")
    stamp(a, 5)
    a("s_setprio 0")
    a("s_waitcnt vmcnt(0)")
    a.label("L_g1_done")
    a("s_barrier")
    lab = a.newlabel("g1pub")
    a(f"s_cmp_eq_u32 s7, {HPUB}")
    a(f"s_cbranch_scc0 {lab}")
    publish(a, "s92", 4, 5)
    a.label(lab)
    stamp(a, 3)

def body_g2(a):
    PF = 3; NK = 14; NPRE = 5; GREG = 10240
    vm = VM()
    if G2PRIO: a(f"s_setprio {G2PRIO}")
    lab_su = a.newlabel("g2su")
    a("s_cmp_eq_u32 s91, 0")
    a(f"s_cbranch_scc0 {lab_su}")
    g2_setup(a)
    a.label(lab_su)
    ACC = 64; FR = 16
    def off(ks): return (ks % 4) * 1024
    def inc(ks, regs):
        return [f"s_add_u32 s{r}, s{r}, 4096" for r in regs] if ks % 4 == 3 else []
    def lA(ks):
        S = FR + 16*(ks % PF)
        return [[f"buffer_load_dwordx4 v[{S}:{S+3}], v3, s[48:51], s68 offen offset:{off(ks)} {SC}"],
                [f"buffer_load_dwordx4 v[{S+4}:{S+7}], v3, s[48:51], s69 offen offset:{off(ks)} {SC}"] + inc(ks, (68, 69))]
    def lB(ks):
        S = FR + 16*(ks % PF)
        return [[f"buffer_load_dwordx4 v[{S+8}:{S+11}], v3, s[52:55], s70 offen offset:{off(ks)} {SC}"],
                [f"buffer_load_dwordx4 v[{S+12}:{S+15}], v3, s[52:55], s71 offen offset:{off(ks)} {SC}"] + inc(ks, (70, 71))]
    for _ in range(DIAGDELAY): a("s_sleep 32")
    stamp(a, 20)
    a(f"s_mov_b32 s9, {F_W}")
    def fw_poll():
        lk = a.newlabel("fwk")
        a("s_cmp_eq_u32 s91, 2")
        a(f"s_cbranch_scc1 {lk}")
        wait_flags(a, 56, "s9", 4, 8, wide=True, compact=True)
        a.label(lk)
    wg_wait(a, fw_poll, wave=WPOLL)
    stamp(a, 17)
    if kern.PROF: a(f"v_writelane_b32 v{kern.PROF_V}, s77, 19")
    a("s_lshr_b32 s9, s12, 1")
    a(f"s_mul_i32 s9, s9, {14*128 if FSH == 7 else 64}")
    a(f"s_add_u32 s9, s9, {F_H}")
    a("s_mul_i32 s4, s7, 7")
    a("s_lshr_b32 s4, s4, 2")
    a("s_mul_i32 s6, s7, 224")
    a("s_add_u32 s6, s6, 223")
    a("s_lshr_b32 s6, s6, 7")
    a("v_add_u32 v4, s4, v2")
    a("v_min_u32 v4, s6, v4")
    a(f"v_lshlrev_b32 v4, {FSH}, v4")
    a("s_mov_b64 s[86:87], exec")
    a("s_mov_b64 exec, 7")
    a(f"buffer_load_dword v8, v4, s[80:83], s9 offen {SC}")
    a("s_mov_b64 exec, s[86:87]")
    dmaA = g2_dmaA
    assert G2RING and NEARLY == 5
    lp1 = a.newlabel("g2p1"); lp2 = a.newlabel("g2p2")
    a("s_cmp_eq_u32 s91, 2")
    a(f"s_cbranch_scc1 {lp1}")
    for ks in range(NPRE):
        for g in dmaA(ks):
            for ins in g: a(ins)
        vm.issue(("a", ks), 2)
    a(f"s_waitcnt vmcnt({2*NPRE})")
    a(f"s_branch {lp2}")
    a.label(lp1)
    a("s_waitcnt vmcnt(0)")
    a.label(lp2)
    a("v_add_u32 v14, s90, v3")
    stamp(a, 18)
    lab = a.newlabel("wh"); ok = a.newlabel("whok")
    a("s_mov_b64 exec, 7")
    a("s_mov_b32 s77, 0")
    a.label(lab)
    a("v_cmp_ne_u32 vcc, s46, v8")
    a(f"s_cbranch_vccz {ok}")
    a("s_add_u32 s77, s77, 1")
    a(f"s_cmp_ge_u32 s77, {SPIN:#x}")
    a(f"s_cbranch_scc1 {ok}")
    a(f"s_sleep {HSLEEP}")
    a(f"buffer_load_dword v8, v4, s[80:83], s9 offen {SC}")
    a(f"s_waitcnt vmcnt(0)")
    a(f"s_branch {lab}")
    a.label(ok)
    a("s_mov_b64 exec, s[86:87]")
    stamp(a, 6)
    def lAl(ks):
        S = FR + 16*(ks % PF)
        return [[f"ds_read_b128 v[{S}:{S+3}], v14 offset:{ks*2048}"], [f"ds_read_b128 v[{S+4}:{S+7}], v14 offset:{ks*2048+1024}"]]
    AS = [16, 24]; BS = [32, 40, 48, 56]; PB = 4
    def rA(ks):
        S = AS[ks % 2]; o = (ks % NPRE)*2048
        return [f"ds_read_b128 v[{S}:{S+3}], v14 offset:{o}", f"ds_read_b128 v[{S+4}:{S+7}], v14 offset:{o+1024}"]
    def rB(ks):
        S = BS[ks % PB]
        return [[f"buffer_load_dwordx4 v[{S}:{S+3}], v3, s[52:55], s70 offen offset:{off(ks)} {SC}"],
                [f"buffer_load_dwordx4 v[{S+4}:{S+7}], v3, s[52:55], s71 offen offset:{off(ks)} {SC}"] + inc(ks, (70, 71))]
    if G2RING:
        for ks in range(PB):
            for g in rB(ks):
                for ins in g: a(ins)
            vm.issue(("k", ks), 2)
        for ks in range(NEARLY, NPRE):
            for g in dmaA(ks):
                for ins in g: a(ins)
            vm.issue(("a", ks), 2)
        a(f"s_waitcnt vmcnt({vm.wait_for(('a', 0))})")
        for ins in rA(0): a(ins)
    else:
        for ks in range(PF):
            for g in lB(ks):
                for ins in g: a(ins)
            vm.issue(("k", ks), 2)
        a(f"s_waitcnt vmcnt({vm.wait_for('pre')})")
        for ks in range(PF):
            for g in lAl(ks):
                for ins in g: a(ins)
    srd(a, 56, 44, SZ_X, WS_AOUT)
    srd(a, 60, 16, SZ_X)
    srd(a, 64, 40, SZ_X)
    a("s_lshr_b32 s8, s7, 2")
    a("s_bfe_u32 s9, s7, 0x10001")
    a("s_and_b32 s15, s7, 1")
    a("s_lshl_b32 s4, s12, 6")
    a("s_lshl_b32 s5, s9, 5")
    a("s_add_u32 s4, s4, s5")
    a("s_lshl_b32 s5, s13, 6")
    a("s_lshl_b32 s6, s8, 5")
    a("s_add_u32 s5, s5, s6")
    a("s_lshl_b32 s6, s15, 4")
    a("s_add_u32 s5, s5, s6")
    a("s_mul_i32 s10, s4, 896")
    a("s_lshl_b32 s6, s5, 1")
    a("s_add_u32 s10, s10, s6")
    a("s_lshl_b32 s11, s5, 12")
    a("s_lshl_b32 s6, s4, 1")
    a("s_add_u32 s11, s11, s6")
    a("v_and_b32 v4, 31, v2")
    a("v_lshrrev_b32 v5, 5, v2")
    a("v_mul_u32_u24 v6, 896, v4")
    a("v_lshl_add_u32 v6, v5, 3, v6")
    a("v_lshlrev_b32 v7, 14, v5")
    a("v_lshl_add_u32 v7, v4, 1, v7")
    XR = 8
    for q in range(2):
        a(f"buffer_load_dwordx2 v[{XR+2*q}:{XR+2*q+1}], v6, s[60:63], s10 offen offset:{16*q}")
    vm.issue("x", 2)
    if RFOLD:
        srd(a, 72, 44, 16384, WS_ST)
        a("s_lshl_b32 s6, s4, 3")
        a("v_lshlrev_b32 v5, 3, v4")
        a(f"buffer_load_dword v5, v5, s[72:75], s6 offen offset:4 {SC}")
        vm.issue("r")
    for ks in range(NK if G2RING else 0):
        n = vm.wait_for(("k", ks))
        if ks + 1 < NK: n = min(n, vm.wait_for(("a", ks + 1)))
        a(f"s_waitcnt vmcnt({n}) lgkmcnt(0)")
        if ks == 0: stamp(a, 7)
        SA = AS[ks % 2]; SB = BS[ks % PB]
        ms = []
        for aa in range(2):
            for b in range(2):
                d = ACC + 16*(2*aa+b)
                ms.append(f"v_mfma_f32_32x32x16_bf16 v[{d}:{d+15}], v[{SA+4*aa}:{SA+4*aa+3}], v[{SB+4*b}:{SB+4*b+3}], v[{d}:{d+15}]")
        RA = rA(ks + 1) if ks + 1 < NK else []
        RB = rB(ks + PB) if ks + PB < NK else None
        DA = dmaA(ks + NPRE) if ks + NPRE < NK else None
        a(ms[0])
        if RA: a(RA[0])
        a(ms[1])
        if RA: a(RA[1])
        a(ms[2])
        if RB:
            for ins in RB[0]: a(ins)
            vm.issue(("k", ks + PB))
        if DA:
            for ins in DA[0]: a(ins)
            vm.issue(("a", ks + NPRE))
        a(ms[3])
        if RB:
            for ins in RB[1]: a(ins)
            vm.issue(("k", ks + PB))
        if DA:
            for ins in DA[1]: a(ins)
            vm.issue(("a", ks + NPRE))
    for ks in range(0 if G2RING else NK):
        w = f"s_waitcnt vmcnt({vm.wait_for(('k', ks))})"
        if ks < NPRE: w += f" lgkmcnt({2*max(0, min(ks + PF - 1, NPRE - 1) - ks)})"
        a(w)
        if ks == 0: stamp(a, 7)
        S = FR + 16*(ks % PF)
        nx = ks + PF < NK
        loc = ks + PF < NPRE
        LA = (lAl(ks + PF) if loc else lA(ks + PF)) if nx else None; LB = lB(ks + PF) if nx else None
        ms = []
        for aa in range(2):
            for b in range(2):
                d = ACC + 16*(2*aa+b)
                ms.append(f"v_mfma_f32_32x32x16_bf16 v[{d}:{d+15}], v[{S+4*aa}:{S+4*aa+3}], v[{S+8+4*b}:{S+8+4*b+3}], v[{d}:{d+15}]")
        a(ms[0]); a(ms[1])
        if nx:
            for ins in LA[0]: a(ins)
        a(ms[2])
        if nx:
            for ins in LB[0]: a(ins)
        a(ms[3])
        if nx:
            for ins in LA[1] + LB[1]: a(ins)
            vm.issue(("k", ks + PF), 2 if loc else 4)
    stamp(a, 8)
    a("s_lshl_b32 s5, s13, 7")
    a("s_and_b32 s6, s2, 7")
    a("s_lshl_b32 s6, s6, 10")
    a("s_add_u32 s5, s5, s6")
    a(f"s_add_u32 s5, s5, {F_C}")
    labc = a.newlabel("g2c")
    a("s_cmp_eq_u32 s7, 0")
    a(f"s_cbranch_scc0 {labc}")
    wait_flags(a, 32, "s5", 12, 13, compact=True)
    a.label(labc)
    AR = 16
    a(f"s_mul_i32 s4, s7, {GREG}")
    a("v_add_u32 v12, s4, v3")
    l1 = a.newlabel("g2r"); l2 = a.newlabel("g2re")
    a("s_cmp_eq_u32 s8, 0")
    a(f"s_cbranch_scc0 {l1}")
    for i in range(8): a(f"ds_write_b128 v12, v[{ACC+32+4*i}:{ACC+32+4*i+3}] offset:{1024*i}")
    a(f"s_branch {l2}")
    a.label(l1)
    for i in range(8): a(f"ds_write_b128 v12, v[{ACC+4*i}:{ACC+4*i+3}] offset:{1024*i}")
    for i in range(32): a(f"v_mov_b32 v{ACC+i}, v{ACC+32+i}")
    a.label(l2)
    a("s_xor_b32 s4, s7, 4")
    a(f"s_mul_i32 s4, s4, {GREG}")
    a("v_add_u32 v12, s4, v3")
    a("s_waitcnt lgkmcnt(0)")
    stamp(a, 10)
    a("s_barrier")
    stamp(a, 11)
    for q in range(2):
        for r in range(4):
            a(f"s_add_u32 s6, s11, {(8*q+r)*4096}")
            a(f"buffer_load_ushort v{AR+4*q+r}, v7, s[56:59], s6 offen {SC}")
    R = ACC + 32
    for i in range(8): a(f"ds_read_b128 v[{R+4*i}:{R+4*i+3}], v12 offset:{1024*i}")
    for i in range(8):
        a(f"s_waitcnt lgkmcnt({7-i})")
        for k in range(4): a(f"v_add_f32 v{ACC+4*i+k}, v{ACC+4*i+k}, v{R+4*i+k}")
    a("s_barrier")
    stamp(a, 12)
    a("s_and_b32 s4, s7, 3")
    a("s_lshl_b32 s5, s8, 15")
    a("s_lshl_b32 s6, s4, 11")
    a("s_add_u32 s6, s6, s5")
    a("v_add_u32 v12, s6, v3")
    OWN = 40
    for p in range(4):
        lo = a.newlabel("g2o"); le = a.newlabel("g2e")
        a(f"s_cmp_eq_u32 s4, {p}")
        a(f"s_cbranch_scc1 {lo}")
        for j in range(2):
            a(f"ds_write_b128 v12, v[{ACC+8*p+4*j}:{ACC+8*p+4*j+3}] offset:{p*8192+j*1024}")
        a(f"s_branch {le}")
        a.label(lo)
        for k in range(8): a(f"v_mov_b32 v{OWN+k}, v{ACC+8*p+k}")
        a.label(le)
    a("s_lshl_b32 s6, s4, 13")
    a("s_add_u32 s6, s6, s5")
    a("v_add_u32 v12, s6, v3")
    a("s_waitcnt lgkmcnt(0)")
    a("s_barrier")
    stamp(a, 13)
    for j in range(3):
        a(f"s_add_u32 s6, s4, {1+j}")
        a("s_and_b32 s6, s6, 3")
        a("s_lshl_b32 s6, s6, 11")
        a(f"v_add_u32 v{13+j}, s6, v12")
        for jj in range(2):
            a(f"ds_read_b128 v[{R+8*j+4*jj}:{R+8*j+4*jj+3}], v{13+j} offset:{jj*1024}")
    a("s_waitcnt lgkmcnt(2)")
    for k in range(8): a(f"v_add_f32 v{R+k}, v{R+k}, v{R+8+k}")
    a("s_waitcnt lgkmcnt(0)")
    for k in range(8): a(f"v_add_f32 v{R+16+k}, v{R+16+k}, v{OWN+k}")
    for k in range(8): a(f"v_add_f32 v{R+k}, v{R+k}, v{R+16+k}")
    stamp(a, 14)
    a("s_waitcnt vmcnt(0)")
    stamp(a, 15)
    T = 24
    for q in range(2):
        for hh in range(2):
            f0 = R + 4*q + 2*hh; x = XR + 2*q + hh; ao = AR + 4*q + 2*hh
            if RFOLD:
                a(f"v_mul_f32 v{f0}, v{f0}, v5")
                a(f"v_mul_f32 v{f0+1}, v{f0+1}, v5")
            a(f"v_cvt_pk_bf16_f32 v{T}, v{f0}, v{f0+1}")
            unpack(a, T+1, T+2, T)
            unpack(a, T+3, T+4, x)
            a(f"v_lshlrev_b32 v{ao}, 16, v{ao}")
            a(f"v_lshlrev_b32 v{ao+1}, 16, v{ao+1}")
            a(f"v_add_f32 v{T+3}, v{T+3}, v{ao}")
            a(f"v_add_f32 v{T+4}, v{T+4}, v{ao+1}")
            a(f"v_cvt_pk_bf16_f32 v{T}, v{T+3}, v{T+4}")
            unpack(a, T+3, T+4, T)
            a(f"v_add_f32 v{T+1}, v{T+1}, v{T+3}")
            a(f"v_add_f32 v{T+2}, v{T+2}, v{T+4}")
            a(f"v_cvt_pk_bf16_f32 v{32+2*q+hh}, v{T+1}, v{T+2}")
        a(f"buffer_store_dwordx2 v[{32+2*q}:{32+2*q+1}], v6, s[64:67], s10 offen offset:{16*q}")
    stamp(a, 16)
    lab = a.newlabel("g2ep")
    a("s_or_b32 s4, s3, s7")
    a("s_cmp_eq_u32 s4, 0")
    a(f"s_cbranch_scc0 {lab}")
    if FSH == 7:
        a(f"s_mov_b32 s9, {F_H}")
        wait_flags(a, 56, "s9", 4, 8, wide=True)
    else:
        for rb in range(16):
            a(f"s_mov_b32 s9, {F_H + 64*rb}")
            wait_flags(a, 14, "s9", 4, 8, compact=True)
    publish(a, F_E, 4, 5)
    a.label(lab)

def body_ln(a):
    X = 8; F = 40
    srd(a, 48, 16, SZ_X)
    srd(a, 56, 44, SZ_X, WS_XNT)
    srd(a, 60, 44, 16384, WS_ST)
    a("v_lshrrev_b32 v1 , 3, v0".replace("v1 ", "v104"))
    a("v_and_b32 v2, 7, v0")
    a("s_mul_i32 s4, s3, 57344")
    a("v_mul_u32_u24 v3, 896, v104")
    a("v_lshl_add_u32 v3, v2, 4, v3")
    for j in range(7):
        a(f"buffer_load_dwordx4 v[{X+4*j}:{X+4*j+3}], v3, s[48:51], s4 offen offset:{128*j}")
    if CODEPF:
        a("s_getpc_b64 s[4:5]")
        a.label("L_pc")
        a(f"s_sub_u32 s4, s4, L_pc-{NAME}")
        a("s_subb_u32 s5, s5, 0")
        a("v_lshlrev_b32 v110, 7, v0")
        a(f"v_cmp_gt_u32 vcc, L_code_end-{NAME}, v110")
        a("s_and_saveexec_b64 s[10:11], vcc")
        lskip = a.newlabel("cpf")
        a(f"s_cbranch_execz {lskip}")
        a("v_mov_b32 v113, s5")
        a("v_add_co_u32 v112, vcc, s4, v110")
        a("v_addc_co_u32 v113, vcc, 0, v113, vcc")
        a("global_load_dword v111, v[112:113], off")
        a.label(lskip)
        a("s_mov_b64 exec, s[10:11]")
        a("s_mul_i32 s4, s3, 57344")
    a("v_mul_u32_u24 v5, 912, v104")
    a("v_lshl_add_u32 v5, v2, 4, v5")
    fix_tag(a)
    for j in range(7):
        a(f"s_waitcnt vmcnt({6-j})")
        if j == 6: stamp(a, 1)
        for k in range(4):
            unpack(a, F+8*j+2*k, F+8*j+2*k+1, X+4*j+k)
    def pkadd(d, x, y, neg=False, bc=None):
        if LNPK:
            m = ""
            if bc == 0: m += " op_sel_hi:[1,0]"
            if neg: m += " neg_lo:[0,1] neg_hi:[0,1]"
            a(f"v_pk_add_f32 v[{d}:{d+1}], v[{x}:{x+1}], v[{y}:{y+1}]{m}")
        else:
            op = "v_sub_f32" if neg else "v_add_f32"
            a(f"{op} v{d}, v{x}, v{y}"); a(f"{op} v{d+1}, v{x+1}, v{y if bc == 0 else y+1}")
    pkadd(6, F, F+2); pkadd(96, F+4, F+6)
    for i in range(4, 28):
        r = 6 if i % 2 == 0 else 96
        pkadd(r, r, F+2*i)
    a("v_add_f32 v6, v6, v7")
    a("v_add_f32 v96, v96, v97")
    a("v_add_f32 v6, v6, v96")
    def red8(r):
        a(f"v_add_f32_dpp v{r}, v{r}, v{r} quad_perm:[1,0,3,2] row_mask:0xf bank_mask:0xf")
        a(f"v_add_f32_dpp v{r}, v{r}, v{r} quad_perm:[2,3,0,1] row_mask:0xf bank_mask:0xf")
        a(f"v_add_f32_dpp v{r}, v{r}, v{r} row_half_mirror row_mask:0xf bank_mask:0xf")
    red8(6)
    a(f"s_mov_b32 s5, {f32bits(1.0/448):#x}")
    a("v_mul_f32 v6, s5, v6")
    bf_round(a, 98, 6)
    a("v_mov_b32 v7, v6")
    for i in range(4): a(f"v_mov_b32 v{106+i}, 0")
    for i in range(28):
        t = 100 + 2*(i % 2)
        acc = 106 + 2*(i % 2)
        pkadd(t, F+2*i, 6, neg=True)
        if LNPK: a(f"v_pk_fma_f32 v[{acc}:{acc+1}], v[{t}:{t+1}], v[{t}:{t+1}], v[{acc}:{acc+1}]")
        else:
            a(f"v_fmac_f32 v{acc}, v{t}, v{t}"); a(f"v_fmac_f32 v{acc+1}, v{t+1}, v{t+1}")
    a("v_add_f32 v106, v106, v107")
    a("v_add_f32 v108, v108, v109")
    a("v_add_f32 v7, v106, v108")
    red8(7)
    a("v_mul_f32 v7, s5, v7")
    bf_round(a, 7, 7)
    a(f"v_add_f32 v7, {f32bits(1e-5):#x}, v7")
    bf_round(a, 7, 7)
    a("v_sqrt_f32 v7, v7")
    bf_round(a, 99, 7)
    a("v_rcp_f32 v99, v99")
    a("s_lshl_b32 s6, s3, 9")
    a("v_lshlrev_b32 v100, 3, v104")
    a(f"buffer_store_dwordx2 v[98:99], v100, s[60:63], s6 offen {SC}")
    a("v_readfirstlane_b32 s7, v0")
    for j in range(7):
        for k in range(4):
            lo = F+8*j+2*k; d = X+4*j+k
            pkadd(lo, lo, 98, neg=True, bc=0)
            a(f"v_cvt_pk_bf16_f32 v{d}, v{lo}, v{lo+1}")
        for k in range(4):
            lo = F+8*j+2*k; d = X+4*j+k
            unpack(a, lo, lo+1, d)
            if LNPK: a(f"v_pk_mul_f32 v[{lo}:{lo+1}], v[{lo}:{lo+1}], v[98:99] op_sel:[0,1] op_sel_hi:[1,1]")
            else:
                a(f"v_mul_f32 v{lo}, v{lo}, v99"); a(f"v_mul_f32 v{lo+1}, v{lo+1}, v99")
            a(f"v_cvt_pk_bf16_f32 v{d}, v{lo}, v{lo+1}")
        a(f"ds_write_b128 v5, v[{X+4*j}:{X+4*j+3}] offset:{128*j}")
    a("v_and_b32 v104, 63, v0")
    a("v_lshrrev_b32 v2, 4, v104")
    a("v_bfe_u32 v3, v104, 2, 2")
    a("v_and_b32 v6, 3, v104")
    a("v_bfe_u32 v8, v0, 6, 1")
    a("v_lshl_add_u32 v7, v2, 3, v3")
    a("v_lshl_add_u32 v7, v8, 5, v7")
    a("v_mul_u32_u24 v7, 912, v7")
    a("v_lshl_add_u32 v7, v6, 3, v7")
    a("v_lshrrev_b32 v6, 7, v0")
    a("v_lshl_add_u32 v7, v6, 5, v7")
    a("v_and_b32 v3, 15, v104")
    a("v_lshl_add_u32 v3, v6, 4, v3")
    a("v_lshlrev_b32 v3, 6, v3")
    a("v_lshl_add_u32 v3, v2, 4, v3")
    a("v_mul_u32_u24 v8, 28672, v8")
    a("v_add_u32 v3, v3, v8")
    a("s_mul_i32 s6, s3, 57344")
    a("s_waitcnt vmcnt(0) lgkmcnt(0)")
    a("s_barrier")
    lab = a.newlabel("lnpub")
    a("s_cmp_lt_u32 s7, 64")
    a(f"s_cbranch_scc0 {lab}")
    a(f"s_lshl_b32 s5, s3, {FSH}")
    a(f"s_add_u32 s5, s5, {F_S}")
    publish(a, "s5", 100, 101)
    a.label(lab)
    stamp(a, 2)
    R = 40
    for t in range(7):
        r = R + 4*t
        a(f"ds_read_b64_tr_b16 v[{r}:{r+1}], v7 offset:{128*t}")
        a(f"ds_read_b64_tr_b16 v[{r+2}:{r+3}], v7 offset:{128*t+4*912}")
    for t in range(7):
        r = R + 4*t
        a(f"s_waitcnt lgkmcnt({2*(6-t)})")
        a(f"buffer_store_dwordx4 v[{r}:{r+3}], v3, s[56:59], s6 offen {SC}")
        if t < 6: a(f"v_add_u32 v3, {64*64}, v3")
    a("s_waitcnt vmcnt(0)")
    a("s_barrier")
    lab = a.newlabel("lnpub2")
    a("s_cmp_lt_u32 s7, 64")
    a(f"s_cbranch_scc0 {lab}")
    a(f"s_lshl_b32 s6, s3, {XSH}")
    a(f"s_add_u32 s6, s6, {F_X}")
    publish_rep(a, "s6", 100, 101, 4096)
    a.label(lab)

KG8_W = 32 * KG_RS
CNT = 81904
def body_kg(a):
    LOG2E = 1.4426950408889634
    SZP = 448*256*2
    P = 8
    if KGHI: a(f"s_setprio {KGHI}")
    for i, ptr in enumerate([18, 20, 22, 24, 26, 28]):
        srd(a, 48 + 4*i, ptr, SZP)
    a("s_lshl_b32 s4, s3, 10")
    a("v_lshlrev_b32 v3, 1, v0")
    for i in range(6):
        a(f"buffer_load_ushort v{P+i}, v3, s[{48+4*i}:{51+4*i}], s4 offen")
    a("s_lshl_b32 s5, s3, 2")
    a("s_load_dword s8, s[30:31], s5")
    a("s_load_dword s9, s[32:33], s5")
    W = 124
    def w2_load():
        srd(a, 72, 38, SZ_WF)
        a("v_lshrrev_b32 v116, 5, v0")
        a("v_and_b32 v117, 31, v0")
        a("s_lshr_b32 s4, s3, 1")
        a("s_mul_i32 s4, s4, 14336")
        a("s_and_b32 s5, s3, 1")
        a("s_mul_i32 s5, s5, 448")
        a("s_add_u32 s4, s4, s5")
        a("v_mul_u32_u24 v116, 896, v116")
        a("v_lshl_add_u32 v116, v117, 4, v116")
        a(f"buffer_load_dwordx4 v[{W}:{W+3}], v116, s[72:75], s4 offen")
    if W2MODE == 0: w2_load()
    a("v_lshrrev_b32 v4, 6, v0")
    a("v_and_b32 v2, 63, v0")
    a(f"v_mul_u32_u24 v6, {KG8_W}, v4")
    a("v_lshl_add_u32 v7, v2, 2, v6")
    a("v_and_b32 v3, 31, v2")
    a(f"v_mul_u32_u24 v3, {KG_RS}, v3")
    a("v_add_u32 v6, v6, v3")
    a("v_lshrrev_b32 v3, 5, v2")
    a("v_lshl_add_u32 v6, v3, 4, v6")
    a("v_readfirstlane_b32 s7, v4")
    BF = 16; ACC = 48; CH = 64; T = 108
    for i in range(16): a(f"v_mov_b32 v{ACC+i}, 0")
    fix_tag(a)
    a("s_mov_b32 s47, s9")
    a("v_lshrrev_b32 v4, 8, v0")
    a("v_mov_b32 v5, s8")
    a("v_lshlrev_b32 v3, 16, v5")
    a("v_and_b32 v5, 0xffff0000, v5")
    a("v_cmp_eq_u32 vcc, 0, v4")
    a("v_cndmask_b32 v5, v5, v3, vcc")
    a(f"v_mul_f32 v5, {f32bits(LOG2E):#x}, v5")
    a("v_exp_f32 v5, v5")
    bf_round(a, 5, 5)
    W2S = 8*KG8_W
    def w2_lds_write():
        a("v_lshrrev_b32 v3, 5, v0")
        a("v_and_b32 v4, 31, v0")
        a("v_mul_u32_u24 v3, 528, v3")
        a("v_lshl_add_u32 v3, v4, 4, v3")
        a(f"v_add_u32 v3, {W2S}, v3")
        a(f"ds_write_b128 v3, v[{W}:{W+3}]")
    def w2_frag_store():
        srd(a, 72, 44, SZ_WF, WS_W2F)
        a("v_lshrrev_b32 v4, 5, v2")
        a("v_bfe_u32 v3, v2, 2, 2")
        a("v_lshl_add_u32 v4, v4, 2, v3")
        a("v_mul_u32_u24 v4, 528, v4")
        a("v_bfe_u32 v3, v2, 4, 1")
        a("v_lshl_add_u32 v4, v3, 5, v4")
        a("v_and_b32 v3, 3, v2")
        a("v_lshl_add_u32 v4, v3, 3, v4")
        a("s_lshl_b32 s5, s7, 6")
        a(f"s_add_u32 s5, s5, {W2S}")
        a("v_add_u32 v4, s5, v4")
        labw = a.newlabel("kgw2")
        a("s_cmp_eq_u32 s7, 7")
        a(f"s_cbranch_scc1 {labw}")
        a(f"ds_read_b64_tr_b16 v[{W}:{W+1}], v4")
        a(f"ds_read_b64_tr_b16 v[{W+2}:{W+3}], v4 offset:{8*528}")
        a("s_and_b32 s5, s3, 1")
        a("s_mul_i32 s5, s5, 7")
        a("s_add_u32 s5, s5, s7")
        a("s_mul_i32 s5, s5, 112")
        a("s_lshr_b32 s6, s3, 1")
        a("s_add_u32 s5, s5, s6")
        a("s_lshl_b32 s5, s5, 10")
        a("v_lshlrev_b32 v3, 4, v2")
        a("s_waitcnt lgkmcnt(0)")
        if not NOW2ST: a(f"buffer_store_dwordx4 v[{W}:{W+3}], v3, s[72:75], s5 offen {W2SC}")
        a.label(labw)
    a("s_waitcnt vmcnt(0)")
    stamp(a, 1)
    if W2MODE == 0:
        w2_lds_write()
        for i in range(6): a(f"v_lshlrev_b32 v{P+i}, 16, v{P+i}")
        a("s_waitcnt lgkmcnt(0)")
        a("s_barrier")
        w2_frag_store()
    elif W2MODE == 3:
        w2_load()
        for i in range(6): a(f"v_lshlrev_b32 v{P+i}, 16, v{P+i}")
        a("s_waitcnt vmcnt(0)")
        w2_lds_write()
        a("s_waitcnt lgkmcnt(0)")
        a("s_barrier")
        w2_frag_store()
        a("s_waitcnt vmcnt(0)")
        a("s_barrier")
        labp3 = a.newlabel("kgpub3")
        a("s_cmp_eq_u32 s7, 0")
        a(f"s_cbranch_scc0 {labp3}")
        a("s_lshl_b32 s6, s3, 2")
        a(f"s_add_u32 s6, s6, {F_W}")
        publish(a, "s6", 116, 117)
        a.label(labp3)
        a("s_and_b32 s5, s2, 7")
        a("s_lshl_b32 s5, s5, 12")
        a(f"s_add_u32 s5, s5, {F_X}")
        global SLEEP
        sl = SLEEP; SLEEP = XSLEEP
        wg_wait(a, lambda: wait_flags(a, 32, "s5", 116, 117, compact=(XSH == 2)), wave=1)
        SLEEP = sl
    else:
        w2_load()
        for i in range(6): a(f"v_lshlrev_b32 v{P+i}, 16, v{P+i}")
    if NOKG: a("s_branch L_kg_skip")
    a(f"v_mul_f32 v14, v5, v{P}")
    a(f"v_mul_f32 v15, v5, v{P+1}")
    a(f"v_mul_f32 v14, {f32bits(LOG2E):#x}, v14")
    a("v_mul_f32 v15, 0.15915494, v15")
    a(f"v_mul_f32 v{P+2}, v5, v{P+2}")
    a(f"v_mul_f32 v{P+3}, v5, v{P+3}")
    regs = {}; nxt = [CH]
    def alloc(name):
        r = nxt[0]; nxt[0] += 2
        assert nxt[0] <= T, name
        regs[name] = (r, r + 1); return regs[name]
    def cmul(dst, x, w):
        (dr, di), (xr, xi), (wr, wi) = dst, x, w
        return [f"v_mul_f32 v{dr}, v{xi}, v{wi}", f"v_mul_f32 v{di}, v{xi}, v{wr}",
                f"v_fma_f32 v{dr}, v{xr}, v{wr}, -v{dr}", f"v_fma_f32 v{di}, v{xr}, v{wi}, v{di}"]
    tcount = [0, 0, 0, 0]; cur = [0]
    def emitrow(row, z, neg):
        t = T + 2*cur[0] + (tcount[cur[0]] % 2); tcount[cur[0]] += 1
        n = "-" if neg else ""
        return [f"v_cvt_pk_bf16_f32 v{t}, v{z[0]}, {n}v{z[1]}", f"ds_write_b32 v7, v{t} offset:{row*KG_RS}"]
    def direct(dst, tmul, tmp):
        (dr, di) = dst
        return [f"v_mul_f32 v{tmp}, {f32bits(float(tmul)):#x}, v14", f"v_mul_f32 v{tmp+1}, {f32bits(float(tmul)):#x}, v15",
                f"v_exp_f32 v{tmp}, v{tmp}", f"v_fract_f32 v{tmp+1}, v{tmp+1}",
                f"v_cos_f32 v{dr}, v{tmp+1}", f"v_sin_f32 v{di}, v{tmp+1}",
                f"v_mul_f32 v{dr}, v{dr}, v{tmp}", f"v_mul_f32 v{di}, v{di}, v{tmp}"]
    X0 = alloc("X0"); w1 = alloc("w1"); w8 = alloc("w8"); w256 = alloc("w256"); w512 = alloc("w512"); w1024 = alloc("w1024")
    w16 = alloc("w16"); ya = [alloc("ya0"), alloc("ya1")]; yb = [alloc("yb0"), alloc("yb1")]
    c0 = cmul(X0, (P+4, P+5), (P+2, P+3))
    for ins in interleave([direct(w8, 8, 86), direct(w16, 16, 88), direct(w1, 1, 90), direct(w256, 256, 92), c0]): a(ins)
    cur[0] = 2
    chY0 = [f"v_mov_b32 v{T+8}, 0x3f80", f"ds_write_b32 v7, v{T+8} offset:0"] + emitrow(2, w16, False)
    prev = w16
    for k, j in enumerate(range(4, 32, 2)):
        d = ya[k % 2]; chY0 += cmul(d, prev, w16) + emitrow(j, d, False); prev = d
    cur[0] = 3
    chY1 = emitrow(1, w8, False); prev = w8
    for k, j in enumerate(range(3, 32, 2)):
        d = yb[k % 2]; chY1 += cmul(d, prev, w16) + emitrow(j, d, False); prev = d
    X = {0: X0}
    for h in [8, 256, 264, 512, 520, 2, 4]: X[h] = alloc(f"X{h}")
    chP = cmul(w512, w256, w256) + cmul(X[8], X0, w8) + cmul(w1024, w512, w512) + cmul(X[256], X0, w256) + cmul(X[264], X[8], w256) + cmul(X[512], X0, w512) + cmul(X[520], X[8], w512)
    for ins in interleave([chY0, chY1, chP]): a(ins)
    if W2MODE == 2:
        a("s_waitcnt vmcnt(0)")
        w2_lds_write()
        a(f"v_mov_b32 v3, {CNT}")
        a("v_mov_b32 v4, 0")
        a("ds_write_b32 v3, v4")
        a("s_waitcnt lgkmcnt(0)")
        a("s_barrier")
        w2_frag_store()
    a("s_waitcnt lgkmcnt(0)")
    for ks in range(8):
        a(f"ds_read_b128 v[{BF+4*ks}:{BF+4*ks+3}], v6 offset:{ks*32}")
    t1, t2, t3, t4, t5 = w16, ya[0], ya[1], yb[0], yb[1]
    for h in [768, 776, 6]: X[h] = alloc(f"X{h}")
    cur[0] = 0
    chA = emitrow(KG_H[0], X0, True)
    chA += cmul(t1, X0, w1) + emitrow(KG_H[1], t1, True)
    chA += cmul(X[2], t1, w1) + emitrow(KG_H[2], X[2], True)
    chA += cmul(t1, X[2], w1) + emitrow(KG_H[3], t1, True)
    chA += cmul(X[4], t1, w1) + emitrow(KG_H[4], X[4], True)
    chA += cmul(t1, X[4], w1) + emitrow(KG_H[5], t1, True)
    chA += cmul(X[6], t1, w1) + emitrow(KG_H[6], X[6], True)
    chA += cmul(t1, X[6], w1) + emitrow(KG_H[7], t1, True)
    chA += cmul(t1, X[2], w256) + emitrow(KG_H[258], t1, True)
    chA += cmul(t1, X[6], w256) + emitrow(KG_H[262], t1, True)
    cur[0] = 1
    chB = emitrow(KG_H[256], X[256], True) + emitrow(KG_H[264], X[264], True) + emitrow(KG_H[512], X[512], True) + emitrow(KG_H[520], X[520], True)
    chB += cmul(X[768], X[256], w512) + emitrow(KG_H[768], X[768], True)
    chB += cmul(X[776], X[264], w512) + emitrow(KG_H[776], X[776], True)
    for i, (h, src) in enumerate([(1024, 0), (1032, 8), (1280, 256), (1288, 264)]):
        t = t2 if i % 2 == 0 else t3
        chB += cmul(t, X[src], w1024) + emitrow(KG_H[h], t, True)
    a("s_waitcnt lgkmcnt(0)")
    il = interleave([chA, chB])
    for ins in il[:W2CUT]: a(ins)
    if W2MODE == 2 and W2PUB == "count":
        a("s_waitcnt vmcnt(0) lgkmcnt(0)")
        a(f"v_mov_b32 v3, {CNT}")
        a("v_mov_b32 v4, 1")
        a("s_mov_b64 s[86:87], exec")
        a("s_mov_b64 exec, 1")
        a("ds_add_rtn_u32 v4, v3, v4")
        a("s_waitcnt lgkmcnt(0)")
        a("v_readfirstlane_b32 s5, v4")
        a("s_mov_b64 exec, s[86:87]")
        labq = a.newlabel("kgq")
        a("s_cmp_eq_u32 s5, 7")
        a(f"s_cbranch_scc0 {labq}")
        a("s_lshl_b32 s6, s3, 2")
        a(f"s_add_u32 s6, s6, {F_W}")
        publish(a, "s6", 3, 4)
        a.label(labq)
    if KGHI and W2MODE == 2: a("s_setprio 0")
    for ins in il[W2CUT:]: a(ins)
    cur[0] = 2
    chC2 = []
    for i, (h, src) in enumerate([(1536, 512), (1544, 520), (1792, 768), (1800, 776)]):
        t = t4 if i % 2 == 0 else t5
        chC2 += cmul(t, X[src], w1024) + emitrow(KG_H[h], t, True)
    cur[0] = 3
    chD = cmul(t2, X[4], w256) + emitrow(KG_H[260], t2, True) + cmul(t3, t2, w512) + emitrow(KG_H[772], t3, True)
    cur[0] = 0
    chE = cmul(t1, X[4], w512) + emitrow(KG_H[516], t1, True)
    for ins in interleave([chC2, chD, chE]): a(ins)
    AF = CH
    a("s_waitcnt lgkmcnt(0)")
    for ks in range(8):
        a(f"ds_read_b128 v[{AF+4*ks}:{AF+4*ks+3}], v6 offset:{ks*32}")
    for ks in range(8):
        a(f"s_waitcnt lgkmcnt({7-ks})")
        a(f"v_mfma_f32_32x32x16_bf16 v[{ACC}:{ACC+15}], v[{AF+4*ks}:{AF+4*ks+3}], v[{BF+4*ks}:{BF+4*ks+3}], v[{ACC}:{ACC+15}]")
    if NOKG: a.label("L_kg_skip")
    if KGHI and W2MODE != 2 and KGLOW == 0: a("s_setprio 0")
    stamp(a, 2)
    def pubW():
        labp = a.newlabel("kgpub")
        a("s_cmp_eq_u32 s7, 0")
        a(f"s_cbranch_scc0 {labp}")
        a("s_lshl_b32 s6, s3, 2")
        a(f"s_add_u32 s6, s6, {F_W}")
        publish(a, "s6", 116, 117)
        a.label(labp)
    a("s_waitcnt vmcnt(0)")
    if W2MODE == 1:
        w2_lds_write()
        a("s_waitcnt lgkmcnt(0)")
    a("s_barrier")
    if W2MODE == 0 or (W2MODE == 2 and W2PUB == "barrier"): pubW()
    elif W2MODE == 1: w2_frag_store()
    a("s_and_b32 s9, s7, 3")
    a("s_lshr_b32 s10, s7, 2")
    a(f"s_mul_i32 s11, s10, {CV_CH}")
    a("v_lshlrev_b32 v4, 4, v2")
    a("v_add_u32 v4, s11, v4")
    lab1 = a.newlabel("kg_nw"); lab2 = a.newlabel("kg_w2"); lab3 = a.newlabel("kg_end")
    a("s_cmp_eq_u32 s9, 0")
    a(f"s_cbranch_scc1 {lab1}")
    a("s_sub_u32 s5, s9, 1")
    a("s_lshl_b32 s5, s5, 12")
    a("v_add_u32 v5, s5, v4")
    for q in range(4):
        a(f"ds_write_b128 v5, v[{ACC+4*q}:{ACC+4*q+3}] offset:{1024*q}")
    a.label(lab1)
    a("s_waitcnt lgkmcnt(0)" if W2MODE != 1 else "s_waitcnt vmcnt(0) lgkmcnt(0)")
    a("s_barrier")
    if W2MODE == 1: pubW()
    if KGHI and W2MODE != 2 and KGLOW == 1: a("s_setprio 0")
    a("s_cmp_eq_u32 s9, 0")
    a(f"s_cbranch_scc0 {lab3}")
    R = 64
    for j in range(3):
        for q in range(4):
            a(f"ds_read_b128 v[{R+16*j+4*q}:{R+16*j+4*q+3}], v4 offset:{4096*j+1024*q}")
    for j in range(3):
        a(f"s_waitcnt lgkmcnt({4*(2-j)})")
        for i in range(16): a(f"v_add_f32 v{ACC+i}, v{ACC+i}, v{R+16*j+i}")
    a("v_and_b32 v5, 31, v2")
    a("v_lshlrev_b32 v5, 4, v5")
    a(f"v_sub_u32 v6, {CV_K + 4080 - 3584}, v5")
    a("v_add_u32 v6, s11, v6")
    def pk(d, lo, hi): a(f"v_cvt_pk_bf16_f32 v{d}, v{ACC+lo}, v{ACC+hi}")
    def store(base, d): a(f"ds_write_b128 v6, v[{d}:{d+3}] offset:{3584 - 2*base}")
    O = 64
    a("s_mov_b64 s[10:11], exec")
    a("s_mov_b32 exec_lo, -1")
    a("s_mov_b32 exec_hi, 0")
    pk(O, 7, 6); pk(O+1, 5, 4); pk(O+2, 3, 2); pk(O+3, 1, 0); store(0, O)
    pk(O+4, 12, 11); pk(O+5, 10, 10); pk(O+6, 10, 9); pk(O+7, 8, 8); store(256, O+4)
    a("s_mov_b32 exec_lo, 0")
    a("s_mov_b32 exec_hi, -1")
    for b in range(2):
        o = O + 8 + 4*b; r0 = 3*b
        pk(o, r0+2, r0+2); pk(o+1, r0+1, r0+1); pk(o+2, r0+1, r0); pk(o+3, r0, r0); store(512 + 256*b, o)
    a("v_and_b32 v5, 1, v2")
    a("v_cmp_eq_u32 vcc, 0, v5")
    for b in range(4):
        o = O + 16 + 4*b; r0 = 6 + 2*b
        a(f"v_cndmask_b32 v{O+40}, v{ACC+r0+1}, v{ACC+r0}, vcc")
        pk(o, r0+1, r0+1)
        a(f"v_cvt_pk_bf16_f32 v{o+1}, v{ACC+r0+1}, v{O+40}")
        pk(o+2, r0, r0); pk(o+3, r0, r0); store(1024 + 256*b, o)
    a("s_mov_b64 exec, s[10:11]")
    a.label(lab3)
    a("s_waitcnt lgkmcnt(0)")
    a("s_barrier")
    stamp(a, 3)

def body_cv(a):
    srd(a, 48, 44, SZ_X, WS_XNT)
    srd(a, 56, 44, SZ_X, WS_AOUT)
    a("v_lshrrev_b32 v12, 8, v0")
    a("v_and_b32 v2, 255, v0")
    a(f"v_mul_u32_u24 v5, {CV_CH}, v12")
    for i in range(4): a(f"v_mov_b32 v{48+i}, 0")
    a("v_lshl_add_u32 v6, v2, 4, v5")
    a("v_cmp_gt_u32 vcc, 140, v2")
    a("s_and_saveexec_b64 s[10:11], vcc")
    for rho in range(4):
        a(f"ds_write_b128 v6, v[48:51] offset:{cvbase(rho)}")
    a("s_mov_b64 exec, s[10:11]")
    a("v_cmp_gt_u32 vcc, 16, v2")
    a("s_and_saveexec_b64 s[10:11], vcc")
    a(f"ds_write_b128 v6, v[48:51] offset:{CV_K+4096}")
    a("s_mov_b64 exec, s[10:11]")
    a("s_and_b32 s5, s2, 7")
    a("s_lshl_b32 s5, s5, 12")
    a(f"s_add_u32 s5, s5, {F_X}")
    if W2MODE != 3: wg_wait(a, lambda: wait_flags(a, 32, "s5", 3, 4, compact=(XSH == 2)) if "X" not in SKIPW else None)
    stamp(a, 4)
    a("s_lshl_b32 s4, s3, 7")
    a("v_lshrrev_b32 v3, 2, v2")
    a("v_mul_u32_u24 v3, 28672, v3")
    a("v_lshl_add_u32 v3, v12, 6, v3")
    a("v_and_b32 v4, 3, v2")
    a("v_lshl_add_u32 v3, v4, 4, v3")
    D = 16
    a(f"buffer_load_dwordx4 v[{D}:{D+3}], v3, s[48:51], s4 offen {SC}")
    a("v_cmp_eq_u32 vcc, 0, v4")
    a(f"v_mov_b32 v4, {-8 & 0xffffffff:#x}")
    a(f"v_mov_b32 v6, {(56 - 28672) & 0xffffffff:#x}")
    a("v_cndmask_b32 v4, v4, v6, vcc")
    a("v_add_u32 v4, v4, v3")
    a("v_max_i32 v4, 0, v4")
    a(f"buffer_load_dwordx2 v[{D+4}:{D+5}], v4, s[48:51], s4 offen {SC}")
    a("s_lshl_b32 s4, s3, 13")
    a("v_lshrrev_b32 v7, 4, v2")
    a(f"v_mul_u32_u24 v7, {CV_BS}, v7")
    a("v_and_b32 v8, 15, v2")
    a("v_lshl_add_u32 v7, v8, 4, v7")
    a("v_add_u32 v7, v7, v5")
    a("v_cmp_eq_u32 vcc, 0, v2")
    a("v_and_b32 v13, 63, v0")
    a("v_bfe_u32 v14, v0, 6, 2")
    a("v_lshrrev_b32 v3, 5, v13")
    a("v_and_b32 v4, 3, v13")
    a("v_add_u32 v4, 1, v4")
    a("v_and_b32 v4, 3, v4")
    a("v_bfe_u32 v6, v13, 2, 3")
    a(f"v_mul_u32_u24 v8, {CV_CS}, v4")
    a(f"v_mul_u32_u24 v9, {CV_BS}, v6")
    a("v_add3_u32 v8, v8, v9, v5")
    a("v_lshl_add_u32 v8, v3, 4, v8")
    a(f"v_mul_u32_u24 v9, {2*CV_BS}, v14")
    a("v_sub_u32 v8, v8, v9")
    a("v_and_b32 v4, 31, v13")
    a("v_lshlrev_b32 v9, 3, v4")
    a("v_sub_u32 v9, v5, v9")
    a("v_lshl_add_u32 v9, v3, 4, v9")
    a("v_lshlrev_b32 v10, 9, v14")
    a("v_sub_u32 v9, v9, v10")
    a(f"v_add_u32 v9, {CV_K + 2*(2156-240)}, v9")
    a("v_add_u32 v10, -2048, v9")
    A0 = 64; A1 = 80
    for i in range(32): a(f"v_mov_b32 v{A0+i}, 0")
    a("s_waitcnt vmcnt(0)")
    a(f"v_cndmask_b32_e64 v{D+4}, v{D+4}, 0, vcc")
    a(f"v_cndmask_b32_e64 v{D+5}, v{D+5}, 0, vcc")
    d = D; p = d + 4; ob = 7*CV_BS; E = 52
    a(f"ds_write_b128 v7, v[{d}:{d+3}] offset:{cvbase(3)+ob}")
    a(f"v_mov_b32 v{E}, v{p+1}"); a(f"v_mov_b32 v{E+1}, v{d}"); a(f"v_mov_b32 v{E+2}, v{d+1}"); a(f"v_mov_b32 v{E+3}, v{d+2}")
    a(f"ds_write_b128 v7, v[{E}:{E+3}] offset:{cvbase(1)+ob}")
    a(f"v_alignbit_b32 v{E+4}, v{d}, v{p+1}, 16")
    a(f"v_alignbit_b32 v{E+5}, v{d+1}, v{d}, 16")
    a(f"v_alignbit_b32 v{E+6}, v{d+2}, v{d+1}, 16")
    a(f"v_alignbit_b32 v{E+7}, v{d+3}, v{d+2}, 16")
    a(f"ds_write_b128 v7, v[{E+4}:{E+7}] offset:{cvbase(2)+ob}")
    a(f"v_alignbit_b32 v{E+8}, v{p+1}, v{p}, 16")
    a(f"v_mov_b32 v{E+9}, v{E+4}"); a(f"v_mov_b32 v{E+10}, v{E+5}"); a(f"v_mov_b32 v{E+11}, v{E+6}")
    a(f"ds_write_b128 v7, v[{E+8}:{E+11}] offset:{cvbase(0)+ob}")
    a("s_waitcnt lgkmcnt(0)")
    a("s_barrier")
    stamp(a, 5)
    NS = 3; NSTEP = 16
    def rdl(sp):
        S = 16 + 16*(sp % NS)
        z = 1008 - 16*sp
        ou = (z >> 7)*CV_BS + (z & 127)*2
        ok = 32*(15 - sp)
        return [f"ds_read_b128 v[{S}:{S+3}], v8 offset:{ou}",
                f"ds_read_b64 v[{S+8}:{S+9}], v9 offset:{ok}",
                f"ds_read_b64 v[{S+10}:{S+11}], v9 offset:{ok+8}",
                f"ds_read_b128 v[{S+4}:{S+7}], v8 offset:{ou+8*CV_BS}",
                f"ds_read_b64 v[{S+12}:{S+13}], v10 offset:{ok}",
                f"ds_read_b64 v[{S+14}:{S+15}], v10 offset:{ok+8}"]
    for ins in rdl(0) + rdl(1): a(ins)
    for sp in range(NSTEP if not NOCV else 1):
        a(f"s_waitcnt lgkmcnt({6 if sp < NSTEP-1 else 0})")
        S = 16 + 16*(sp % NS)
        R = rdl(sp + 2) if sp + 2 < NSTEP else []
        M = [f"v_mfma_f32_32x32x16_bf16 v[{A0}:{A0+15}], v[{S}:{S+3}], v[{S+8}:{S+11}], v[{A0}:{A0+15}]",
             f"v_mfma_f32_32x32x16_bf16 v[{A1}:{A1+15}], v[{S+4}:{S+7}], v[{S+8}:{S+11}], v[{A1}:{A1+15}]",
             f"v_mfma_f32_32x32x16_bf16 v[{A1}:{A1+15}], v[{S}:{S+3}], v[{S+12}:{S+15}], v[{A1}:{A1+15}]"]
        for i in range(3):
            a(M[i])
            for ins in R[2*i:2*i+2]: a(ins)
    stamp(a, 6)
    a("v_lshlrev_b32 v3, 4, v13")
    a("v_add_u32 v3, v3, v5")
    a("s_and_b32 s9, s7, 3")
    a("s_barrier")
    OWN = 40
    for p_ in range(4):
        lo = a.newlabel("cvo"); le = a.newlabel("cve")
        a(f"s_cmp_eq_u32 s9, {p_}")
        a(f"s_cbranch_scc1 {lo}")
        a(f"s_cmp_gt_u32 s9, {p_}")
        a("s_cselect_b32 s5, 1, 0")
        a("s_sub_u32 s5, s9, s5")
        a("s_lshl_b32 s5, s5, 11")
        a("v_add_u32 v4, s5, v3")
        for j in range(2):
            a(f"ds_write_b128 v4, v[{A0+8*p_+4*j}:{A0+8*p_+4*j+3}] offset:{CV_CS+p_*3*2048+j*1024}")
        a(f"s_branch {le}")
        a.label(lo)
        for k in range(8): a(f"v_mov_b32 v{OWN+k}, v{A0+8*p_+k}")
        a.label(le)
    a("s_mul_i32 s5, s9, 6144")
    a("v_add_u32 v4, s5, v3")
    a("v_lshrrev_b32 v3, 5, v13")
    a("v_lshrrev_b32 v6, 1, v14")
    a("v_and_b32 v7, 1, v14")
    a("v_lshl_add_u32 v6, v6, 3, v3")
    a("v_lshl_add_u32 v6, v7, 2, v6")
    a(f"v_mul_u32_u24 v7, {CV_BS}, v6")
    a("v_and_b32 v9, 31, v13")
    a("v_lshl_add_u32 v7, v9, 3, v7")
    a("v_add_u32 v7, v7, v5")
    a("v_lshlrev_b32 v8, 12, v12")
    a("v_lshl_add_u32 v8, v6, 8, v8")
    a("v_lshl_add_u32 v8, v9, 3, v8")
    a("v_mov_b32 v10, s47")
    a("v_lshlrev_b32 v11, 16, v10")
    a("v_and_b32 v10, 0xffff0000, v10")
    a("v_cmp_eq_u32 vcc, 0, v12")
    a("v_cndmask_b32 v10, v10, v11, vcc")
    a("s_waitcnt lgkmcnt(0)")
    a("s_barrier")
    R = 16
    for src in range(3):
        for j in range(2):
            a(f"ds_read_b128 v[{R+8*src+4*j}:{R+8*src+4*j+3}], v4 offset:{CV_CS+src*2048+j*1024}")
    X = 48
    for qq in range(2): a(f"ds_read_b64 v[{X+2*qq}:{X+2*qq+1}], v7 offset:{cvbase(3) + (7+2*qq)*CV_BS}")
    a("s_waitcnt lgkmcnt(4)")
    for k in range(8): a(f"v_add_f32 v{R+k}, v{R+k}, v{R+8+k}")
    a("s_waitcnt lgkmcnt(2)")
    for k in range(8): a(f"v_add_f32 v{R+16+k}, v{R+16+k}, v{OWN+k}")
    for k in range(8): a(f"v_add_f32 v{R+k}, v{R+k}, v{R+16+k}")
    a("s_waitcnt lgkmcnt(0)")
    T = 56
    for qq in range(2):
        for hh in range(2):
            y0 = R + 4*qq + 2*hh; x = X + 2*qq + hh
            a(f"v_cvt_pk_bf16_f32 v{T}, v{y0}, v{y0+1}")
            unpack(a, T+1, T+2, T)
            unpack(a, T+3, T+4, x)
            a(f"v_mul_f32 v{T+3}, v{T+3}, v10")
            a(f"v_mul_f32 v{T+4}, v{T+4}, v10")
            a(f"v_cvt_pk_bf16_f32 v{T}, v{T+3}, v{T+4}")
            unpack(a, T+3, T+4, T)
            a(f"v_add_f32 v{T+1}, v{T+1}, v{T+3}")
            a(f"v_add_f32 v{T+2}, v{T+2}, v{T+4}")
            a(f"v_cvt_pk_bf16_f32 v{64+2*qq+hh}, v{T+1}, v{T+2}")
        a(f"buffer_store_dwordx2 v[{64+2*qq}:{64+2*qq+1}], v8, s[56:59], s4 offen offset:{512*qq} {SC}")
    a("s_waitcnt vmcnt(0)")
    a("s_barrier")
    lab = a.newlabel("cvpub")
    a("s_cmp_eq_u32 s7, 0")
    a(f"s_cbranch_scc0 {lab}")
    a("s_lshl_b32 s6, s3, 2")
    a(f"s_add_u32 s6, s6, {F_C}")
    publish_rep(a, "s6", 3, 4, 1024)
    a.label(lab)

def build_kernel():
    a = Asm()
    load_ptrs(a)
    def common():
        a("s_waitcnt lgkmcnt(0)")
        srd(a, 80, 44, FL_SZ, WS_FL)
        a("s_load_dword s46, s[80:81], 0")
    a("s_cmp_lt_u32 s2, 224")
    a("s_cbranch_scc1 L_B")
    a("s_cmp_lt_u32 s2, 256")
    a("s_cbranch_scc1 L_LN")
    a("s_cmp_ge_u32 s2, 480")
    a("s_cbranch_scc1 L_end")
    common()
    a("s_sub_u32 s3, s2, 256")
    kern.PROF_V = 1; stamp(a, 0)
    body_g1(a)
    if not NOP2: body_g2(a)
    if kern.PROF: a("s_waitcnt vmcnt(0)")
    stamp(a, 9); prof_flush(a, 0, 4)
    if kern.PROF and WAVEPROF:
        lab = a.newlabel("wp")
        a("s_cmp_lt_u32 s2, 384")
        a(f"s_cbranch_scc0 {lab}")
        srd(a, 76, 44, 0x100000, kern.WS_PROF)
        a("s_sub_u32 s4, s2, 256")
        a("s_lshl_b32 s4, s4, 3")
        a("s_add_u32 s4, s4, s7")
        a("s_add_u32 s4, s4, 1024")
        a("s_lshl_b32 s4, s4, 7")
        a("v_and_b32 v2, 31, v0")
        a("v_lshlrev_b32 v2, 2, v2")
        a("s_mov_b64 exec, 0xffffffff")
        a(f"buffer_store_dword v{kern.PROF_V}, v2, s[76:79], s4 offen")
        a.label(lab)
    a.label("L_end")
    a("s_endpgm")
    a.label("L_B")
    common()
    a("s_mov_b32 s3, s2")
    kern.PROF_V = 123; stamp(a, 0)
    body_kg(a)
    kern.PROF_V = 1
    if kern.PROF: a("v_mov_b32 v1, v123")
    if not NOP2: body_cv(a)
    stamp(a, 7); prof_flush(a, 0, 4)
    a("s_endpgm")
    a.label("L_LN")
    common()
    a("s_sub_u32 s3, s2, 224")
    kern.PROF_V = 123; stamp(a, 0)
    body_ln(a)
    stamp(a, 3); prof_flush(a, 0, 4)
    a("s_endpgm")
    a.label("L_code_end")
    a("s_endpgm")
    return a

def build(path):
    a = build_kernel()
    t, d, n = kernel_text(NAME, a, 128)
    hdr = "; generated by dev/kern4.py (own generator)\n; @launch grid=(480,1,1) block=(512,1,1) lds=81920\n.amdgcn_target \"amdgcn-amd-amdhsa--gfx950\"\n"
    open(path, "w").write(hdr + t + d)
    print(f"{path}: {len(t.splitlines())} lines, {n} hazard pads")

BASE = dict(FSH=7, XSH=2, W2PUB="count", KGHI=2, W2CUT=40, WPOLL=4, HPUB=7, LDPRIO=0, G1PRIO=1, G2PRIO=0, G2RING=True, NEARLY=5, W2MODE=1, XSLEEP=16, KGLOW=1, EARLYG2=True, TLATE=1, NINIT=4, TOUCH1=True, EPRIO=3, HSLEEP=4)
if __name__ == "__main__":
    globals().update(BASE)
    build("v_o.s")
    CODEPF = True; build("v_p.s")
```

```python
from asmgen import Asm, kernel_text
import kern
from kern import (srd, load_ptrs, f32bits, bf_round, unpack, interleave, kg_row, KG_H, KG_RS,
                  WS_H, WS_W2F, WS_XNT, WS_AOUT, SZ_H, SZ_WF, SZ_X, stamp, prof_flush)
from kern2 import VM
SC = "sc1"
NAME = "parallel_sum__ssm_conv_s4__dense_activation_relu__prompt_kernel"
WS_ST = 0x1300000
WS_FL = 0x1400000
F_E = 0; F_S = 0x1000; F_H = 0x2000; F_W = 0x9000; F_X = 0x10000; F_C = 0x18000; FL_SZ = 0x20000
SPIN = 0x20000
LFINE = False
TOUCH1 = True
NOP2 = False
TLBT = False
CODEPF = False
RFOLD = False
EARLYG2 = True
KGLOW = 0
NOW2ST = False
W2SC = 'sc1'
XSLEEP = 16
NEARLY = 5
G2RING = True
WAVEPROF = False
LDPRIO = 0
G2PRIO = 0
FSH = 7
XSH = 7
W2PUB = 'count'
WPOLL = 0
HPUB = 0
KGHI = 2
W2CUT = 40
DIAGDELAY = 0
W2TOUCH = False
W2T_C = 8
W2MODE = 2
NOKG = False
NOCV = False
G1MAP = 47
WAVEH = False
HSLEEP = 8
TLATE = 0
NINIT = 4
G1PK = False
LNPK = False
EPRIO = 0
SKIPW = ''
G1PRIO = 1
CV_BS = 320; CV_CS = 7376; CV_K = 4*CV_CS; CV_CH = CV_K + 4352
def cvbase(rho): return ((rho + 1) & 3) * CV_CS

def so(soff):
    return f"{soff} offen" if isinstance(soff, str) else f"0 offen offset:{soff}"

def fix_tag(a):
    a("s_waitcnt lgkmcnt(0)")
    a("s_add_u32 s46, s46, 1")

def tlb_touch(a, t0, t1):
    srd(a, 72, 44, 0x1600000)
    a(f"v_and_b32 v{t0}, 63, v0")
    a(f"v_lshlrev_b32 v{t0}, 21, v{t0}")
    a(f"v_add_u32 v{t0}, 0x1ff80, v{t0}") if False else None
    a("s_mov_b64 s[86:87], exec")
    a("s_mov_b64 exec, 0x7ff")
    a(f"buffer_load_dword v{t1}, v{t0}, s[72:75], 0 offen {SC}")
    a("s_mov_b64 exec, s[86:87]")

def publish(a, soff, t0, t1):
    a(f"v_mov_b32 v{t0}, 0")
    a(f"v_mov_b32 v{t1}, s46")
    a("s_mov_b64 s[86:87], exec")
    a("s_mov_b64 exec, 1")
    a(f"buffer_store_dword v{t1}, v{t0}, s[80:83], {so(soff)} {SC}")
    a("s_mov_b64 exec, s[86:87]")

def publish_rep(a, soff, t0, t1, stride):
    a(f"v_and_b32 v{t0}, 7, v0")
    a(f"v_mul_u32_u24 v{t0}, {stride}, v{t0}")
    a(f"v_mov_b32 v{t1}, s46")
    a("s_mov_b64 s[86:87], exec")
    a("s_mov_b64 exec, 0xff")
    a(f"buffer_store_dword v{t1}, v{t0}, s[80:83], {soff} offen {SC}")
    a("s_mov_b64 exec, s[86:87]")

SLEEP = 8
def wg_wait(a, fn, wave=0):
    lab = a.newlabel("wgw")
    a(f"s_cmp_eq_u32 s7, {wave}")
    a(f"s_cbranch_scc0 {lab}")
    fn()
    a.label(lab)
    a("s_barrier")

def wait_flags(a, n, soff, t0, t1, wide=False, compact=False):
    lab = a.newlabel("wf"); ok = a.newlabel("wfok")
    a(f"v_and_b32 v{t0}, 63, v0")
    sh = (4 if wide else 2) if compact else (9 if wide else 7)
    a(f"v_lshlrev_b32 v{t0}, {sh}, v{t0}")
    a("s_mov_b64 s[86:87], exec")
    m = (1 << n) - 1
    a(f"s_mov_b32 exec_lo, {m & 0xffffffff:#x}")
    a(f"s_mov_b32 exec_hi, {m >> 32:#x}")
    a("s_mov_b32 s77, 0")
    a.label(lab)
    if compact and wide:
        a(f"buffer_load_dwordx4 v[{t1}:{t1+3}], v{t0}, s[80:83], {soff} offen {SC}")
    else:
        for k in range(4 if wide else 1):
            a(f"buffer_load_dword v{t1+k}, v{t0}, s[80:83], {soff} offen offset:{128*k} {SC}")
    a("s_waitcnt vmcnt(0)")
    a(f"v_cmp_ne_u32 vcc, s46, v{t1}")
    if wide:
        for i in range(1, 4):
            a(f"v_cmp_ne_u32 s[88:89], s46, v{t1+i}")
            a("s_or_b64 vcc, vcc, s[88:89]")
    a(f"s_cbranch_vccz {ok}")
    a("s_add_u32 s77, s77, 1")
    a(f"s_cmp_ge_u32 s77, {SPIN:#x}")
    a(f"s_cbranch_scc1 {ok}")
    a(f"s_sleep {SLEEP}")
    a(f"s_branch {lab}")
    a.label(ok)
    a("s_mov_b64 exec, s[86:87]")

G2_NPRE = 5; G2_GREG = 10240
def g2_setup(a):
    srd(a, 48, 44, SZ_WF, WS_W2F)
    srd(a, 52, 44, SZ_H, WS_H)
    a("s_lshr_b32 s14, s3, 3")
    a("s_mul_hi_u32 s5, s14, 0x24924925")
    a("s_mul_i32 s13, s5, 7")
    a("s_sub_u32 s13, s14, s13")
    a("s_and_b32 s12, s3, 7")
    a("s_lshl_b32 s12, s12, 2")
    a("s_add_u32 s12, s12, s5")
    a("v_and_b32 v2, 63, v0")
    a("v_lshlrev_b32 v3, 4, v2")
    a("s_mul_i32 s4, s7, 14")
    a("s_lshl_b32 s5, s13, 1")
    a("s_mul_i32 s5, s5, 112")
    a("s_add_u32 s5, s5, s4")
    a("s_lshl_b32 s68, s5, 10")
    a(f"s_add_u32 s69, s68, {112*1024}")
    a("s_lshl_b32 s5, s12, 1")
    a("s_mul_i32 s5, s5, 112")
    a("s_add_u32 s5, s5, s4")
    a("s_lshl_b32 s70, s5, 10")
    a(f"s_add_u32 s71, s70, {112*1024}")
    ACC = 64
    for i in range(64): a(f"v_mov_b32 v{ACC+i}, 0")
    a(f"s_mul_i32 s90, s7, {G2_GREG}")

def g2_dmaA(ks):
    return [[f"s_add_u32 m0, s90, {(ks % G2_NPRE)*2048 + t*1024}", f"buffer_load_dwordx4 v3, s[48:51], s{68+t} offen {SC} lds", f"s_add_u32 s{68+t}, s{68+t}, 1024"] for t in range(2)]

def body_g1(a):
    NB = 5; NCH = 14; WB = NB*8192
    WL = 4*8192
    a("s_lshr_b32 s14, s3, 3")
    if G1MAP == 47:
        a("s_mul_hi_u32 s5, s14, 0x24924925")
        a("s_mul_i32 s13, s5, 7")
        a("s_sub_u32 s13, s14, s13")
        a("s_and_b32 s6, s3, 1")
        a("s_mul_i32 s6, s6, 7")
        a("s_add_u32 s13, s13, s6")
        a("s_bfe_u32 s12, s3, 0x20001")
        a("s_lshl_b32 s12, s12, 2")
        a("s_add_u32 s12, s12, s5")
    else:
        a("s_mul_hi_u32 s5, s14, 0x12492493")
        a("s_mul_i32 s13, s5, 14")
        a("s_sub_u32 s13, s14, s13")
        a("s_and_b32 s12, s3, 7")
        a("s_lshl_b32 s12, s12, 1")
        a("s_add_u32 s12, s12, s5")
    a(f"s_mul_i32 s92, s12, {14 if FSH == 7 else 16}")
    a("s_add_u32 s92, s92, s13")
    a(f"s_lshl_b32 s92, s92, {FSH}")
    a(f"s_add_u32 s92, s92, {F_H}")
    a("s_mov_b32 s91, 0")
    a("v_lshrrev_b32 v2, 6, v0")
    a("v_and_b32 v3, 63, v0")
    a("v_readfirstlane_b32 s7, v2")
    a("s_cmp_lt_u32 s7, 4")
    a("s_cbranch_scc1 L_g1_compute")
    vm = VM()
    if LDPRIO: a(f"s_setprio {LDPRIO}")
    srd(a, 48, 16, SZ_X)
    srd(a, 52, 36, SZ_WF)
    a("s_sub_u32 s15, s7, 4")
    a("v_lshrrev_b32 v8, 2, v3")
    a("v_and_b32 v4, 3, v3")
    a("v_bfe_u32 v5, v3, 4, 2")
    a("v_xor_b32 v4, v4, v5")
    a("v_mul_u32_u24 v8, 896, v8")
    a("v_lshl_add_u32 v8, v4, 4, v8")
    a("v_lshrrev_b32 v9, 4, v3")
    a("v_and_b32 v5, 15, v3")
    a("v_lshlrev_b32 v6, 2, v9")
    a("v_xor_b32 v5, v5, v6")
    a("v_mul_u32_u24 v9, 3584, v9")
    a("v_lshl_add_u32 v9, v5, 4, v9")
    a("s_lshl_b32 s8, s12, 2")
    a("s_add_u32 s8, s8, s15")
    a("s_mul_i32 s8, s8, 28672")
    a("s_mul_i32 s9, s15, 28672")
    a("s_lshl_b32 s5, s13, 8")
    a("s_add_u32 s9, s9, s5")
    a("s_lshl_b32 s10, s15, 11")
    def dma(c):
        buf = (c % NB) * 8192
        a(f"s_add_u32 m0, s10, {buf}")
        a("s_add_u32 s5, s8, 14336")
        a(f"buffer_load_dwordx4 v8, s[48:51], s8 offen lds")
        a(f"s_add_u32 m0, s10, {buf+WB}")
        a("s_add_u32 s6, s9, 14336")
        a(f"buffer_load_dwordx4 v9, s[52:55], s9 offen lds")
        a(f"s_add_u32 m0, s10, {buf+1024}")
        a("s_add_u32 s8, s8, 64")
        a(f"buffer_load_dwordx4 v8, s[48:51], s5 offen lds")
        a(f"s_add_u32 m0, s10, {buf+WB+1024}")
        a("s_add_u32 s9, s9, 114688")
        a(f"buffer_load_dwordx4 v9, s[52:55], s6 offen lds")
        vm.issue(("c", c), 4)
    for c in range(NINIT): dma(c)
    def touches():
        a("v_add_u32 v10, -256, v0")
        a("s_mul_i32 s5, s14, 224")
        a("v_add_u32 v5, s5, v10")
        a("s_mov_b32 s6, 0x12492493")
        a("v_mul_hi_u32 v6, v5, s6")
        a("v_mul_u32_u24 v7, 14, v6")
        a("v_sub_u32 v7, v5, v7")
        a("v_mul_u32_u24 v6, 3584, v6")
        a("v_lshl_add_u32 v6, v7, 7, v6")
        a("s_and_b32 s6, s3, 1")
        a("s_mul_i32 s6, s6, 1792")
        a("v_cmp_gt_u32 vcc, 224, v10")
        a("v_mov_b32 v7, 0x7ffffff0")
        a("v_cndmask_b32 v6, v7, v6, vcc")
        a("buffer_load_dword v11, v6, s[52:55], s6 offen")
        a("s_bfe_u32 s5, s3, 0x20001")
        a("s_mul_i32 s5, s5, 458752")
        a("s_lshl_b32 s6, s14, 14")
        a("s_add_u32 s5, s5, s6")
        a("v_lshlrev_b32 v5, 7, v10")
        a("v_cmp_gt_u32 vcc, 128, v10")
        a("v_mov_b32 v7, 0x7ffffff0")
        a("v_cndmask_b32 v6, v7, v5, vcc")
        a("buffer_load_dword v12, v6, s[48:51], s5 offen")
        vm.issue("touch", 2)
    def touches214():
        a("v_add_u32 v10, -256, v0")
        a("s_mul_i32 s5, s14, 57344")
        a("v_lshlrev_b32 v5, 7, v10")
        a("buffer_load_dword v11, v5, s[52:55], s5 offen")
        a("s_add_u32 s5, s5, 32768")
        a("v_cmp_gt_u32 vcc, 192, v10")
        a("v_mov_b32 v7, 0x7ffffff0")
        a("v_cndmask_b32 v6, v7, v5, vcc")
        a("buffer_load_dword v12, v6, s[52:55], s5 offen")
        a("s_and_b32 s5, s3, 7")
        a("s_mul_i32 s5, s5, 229376")
        a("s_lshl_b32 s6, s14, 13")
        a("s_add_u32 s5, s5, s6")
        a("v_cmp_gt_u32 vcc, 64, v10")
        a("v_cndmask_b32 v6, v7, v5, vcc")
        a("buffer_load_dword v16, v6, s[48:51], s5 offen")
        vm.issue("touch", 3)
    if G1MAP != 47: touches = touches214
    if TOUCH1 and TLATE == 0: touches()
    srd(a, 60, 44, 16384, WS_ST)
    a("s_cmp_eq_u32 s15, 0")
    a("s_cselect_b32 s5, 0, 0x7ffffff0")
    a("v_and_b32 v13, 1, v3")
    a(f"v_lshlrev_b32 v13, {FSH}, v13")
    a("v_add_u32 v13, s5, v13")
    a("v_mov_b32 v15, s5")
    a(f"s_lshl_b32 s72, s12, {FSH+1}")
    a(f"s_add_u32 s72, s72, {F_S}")
    fix_tag(a)
    a(f"s_waitcnt vmcnt({vm.wait_for(('c', 0))})")
    a("s_barrier")
    for c in range(NINIT, 4): dma(c)
    if TOUCH1 and TLATE == 1: touches()
    for c in range(NCH - 1):
        a(f"s_waitcnt vmcnt({vm.wait_for(('c', c + 1))})")
        a("s_barrier")
        if LFINE:
            kern.PROF_V = 20; stamp(a, 8 + c); kern.PROF_V = 1
        if c + 4 < NCH: dma(c + 4)
        if c == 8:
            a(f"buffer_load_dword v14, v13, s[80:83], s72 offen {SC}")
            vm.issue("poll")
        if W2TOUCH and c == W2T_C:
            a("v_lshlrev_b32 v20, 4, v3")
            a("s_mov_b64 s[86:87], exec")
            a("s_mov_b32 exec_hi, 0xffffff")
            a(f"buffer_load_dwordx4 v[24:27], v20, s[80:83], 0 offen offset:{F_W} {SC}")
            a("s_mov_b64 exec, s[86:87]")
            vm.issue("pollw")
        if W2TOUCH and c == W2T_C + 2:
            a(f"s_waitcnt vmcnt({vm.wait_for('pollw')})")
            a("s_mov_b32 exec_hi, 0xffffff")
            a("v_cmp_ne_u32 vcc, s46, v24")
            for i in range(25, 28):
                a(f"v_cmp_ne_u32 s[88:89], s46, v{i}")
                a("s_or_b64 vcc, vcc, s[88:89]")
            a("s_mov_b64 exec, -1")
            a("s_cmp_eq_u64 vcc, 0")
            a("s_cselect_b32 s5, 0, 0x7ffffff0")
            srd(a, 56, 44, SZ_WF, WS_W2F)
            a("v_add_u32 v20, -256, v0")
            a("v_lshlrev_b32 v20, 7, v20")
            a("v_add_u32 v20, s5, v20")
            a("s_mul_i32 s5, s14, 57344")
            a(f"buffer_load_dword v21, v20, s[56:59], s5 offen {SC}")
            a("s_add_u32 s5, s5, 32768")
            a("v_cmp_gt_u32 vcc, 192, v10")
            a("v_mov_b32 v22, 0x7ffffff0")
            a("v_cndmask_b32 v20, v22, v20, vcc")
            a(f"buffer_load_dword v22, v20, s[56:59], s5 offen {SC}")
            vm.issue("w2t", 2)
        if c == 11:
            a(f"s_waitcnt vmcnt({vm.wait_for('poll')})")
            labs = a.newlabel("g1sk"); lab = a.newlabel("g1sp")
            a("s_cmp_eq_u32 s15, 0")
            a(f"s_cbranch_scc0 {labs}")
            a("s_mov_b32 s77, 0")
            a.label(lab)
            a("v_cmp_ne_u32 vcc, s46, v14")
            a(f"s_cbranch_vccz {labs}")
            a("s_add_u32 s77, s77, 1")
            a(f"s_cmp_ge_u32 s77, {SPIN:#x}")
            a(f"s_cbranch_scc1 {labs}")
            a("s_sleep 8")
            a(f"buffer_load_dword v14, v13, s[80:83], s72 offen {SC}")
            a("s_waitcnt vmcnt(0)")
            a(f"s_branch {lab}")
            a.label(labs)
            a("s_lshl_b32 s5, s12, 10")
            a("v_lshlrev_b32 v14, 4, v3")
            a("v_add_u32 v14, v15, v14")
            a(f"buffer_load_dwordx4 v[16:19], v14, s[60:63], s5 offen {SC}")
            vm.issue("stats")
    lab_end = a.newlabel("g1ldend")
    a("s_cmp_eq_u32 s15, 0")
    a(f"s_cbranch_scc0 {lab_end}")
    a("s_waitcnt vmcnt(0)")
    a(f"ds_write_b128 v14, v[16:19] offset:{WL+1024}")
    a("s_waitcnt lgkmcnt(0)")
    a.label(lab_end)
    a("s_waitcnt vmcnt(0)")
    if LDPRIO: a("s_setprio 0")
    a("s_barrier")
    if EARLYG2:
        g2_setup(a)
        a("s_mov_b32 s91, 1")
        le = a.newlabel("g2early")
        a("v_lshlrev_b32 v4, 4, v2")
        a(f"s_mov_b32 s9, {F_W}")
        a("s_mov_b32 exec_hi, 0xffffff")
        a(f"buffer_load_dwordx4 v[8:11], v4, s[80:83], s9 offen {SC}")
        a("s_waitcnt vmcnt(0)")
        a("v_cmp_ne_u32 vcc, s46, v8")
        for i in range(9, 12):
            a(f"v_cmp_ne_u32 s[88:89], s46, v{i}")
            a("s_or_b64 vcc, vcc, s[88:89]")
        a("s_mov_b64 exec, -1")
        a(f"s_cbranch_vccnz {le}")
        for ks in range(G2_NPRE):
            for g in g2_dmaA(ks):
                for ins in g: a(ins)
        a("s_waitcnt vmcnt(0)")
        a("s_mov_b32 s91, 2")
        a.label(le)
    a("s_branch L_g1_done")
    a.label("L_g1_compute")
    if G1PRIO: a(f"s_setprio {G1PRIO}")
    srd(a, 56, 44, SZ_H, WS_H)
    a("s_and_b32 s15, s7, 1")
    a("s_lshr_b32 s11, s7, 1")
    a("v_and_b32 v4, 31, v3")
    a("v_lshrrev_b32 v6, 5, v3")
    a("v_bfe_u32 v7, v3, 2, 2")
    a("v_xor_b32 v7, v7, v6")
    a("v_lshlrev_b32 v4, 6, v4")
    a("v_lshl_add_u32 v4, v7, 4, v4")
    a("s_lshl_b32 s5, s11, 12")
    a("v_add_u32 v4, s5, v4")
    a("v_xor_b32 v5, 32, v4")
    a("v_bfe_u32 v7, v3, 2, 2")
    a("v_lshl_add_u32 v8, v6, 3, v7")
    a("v_lshlrev_b32 v8, 8, v8")
    a("v_bfe_u32 v9, v3, 4, 1")
    a("v_lshl_add_u32 v8, v9, 5, v8")
    a("v_and_b32 v9, 3, v3")
    a("v_lshl_add_u32 v8, v9, 3, v8")
    a(f"v_add_u32 v8, {WB}, v8")
    a("s_lshl_b32 s5, s15, 1")
    a("s_add_u32 s68, s5, s11")
    a("s_xor_b32 s69, s68, 1")
    a("v_xor_b32 v9, s69, v7")
    a("v_xor_b32 v6, s68, v7")
    a("v_lshl_add_u32 v7, v9, 6, v8")
    a("v_lshl_add_u32 v6, v6, 6, v8")
    SEL = 8; WACC = 12; ACC = 64; SETS = [16, 32, 48]
    a("v_and_b32 v2, 31, v3")
    a("v_cmp_eq_u32 vcc, 0, v2")
    a("v_cmp_eq_u32 s[70:71], 17, v2")
    a("s_or_b64 vcc, vcc, s[70:71]")
    a("v_mov_b32 v2, 0x3f803f80")
    a(f"v_cndmask_b32 v{SEL}, 0, v2, vcc")
    for i in range(1, 4): a(f"v_mov_b32 v{SEL+i}, v{SEL}")
    for i in range(4): a(f"v_mov_b32 v{WACC+i}, 0")
    for i in range(64): a(f"v_mov_b32 v{ACC+i}, 0")
    def rlist(c, st, S):
        o = (c % NB) * 8192
        vb = 4 if st == 0 else 5
        return [f"ds_read_b64_tr_b16 v[{S}:{S+1}], v6 offset:{o+st*4096}",
                f"ds_read_b64_tr_b16 v[{S+2}:{S+3}], v6 offset:{o+st*4096+1024}",
                f"ds_read_b128 v[{S+8}:{S+11}], v{vb} offset:{o}",
                f"ds_read_b128 v[{S+12}:{S+15}], v{vb} offset:{o+2048}",
                f"ds_read_b64_tr_b16 v[{S+4}:{S+5}], v7 offset:{o+st*4096}",
                f"ds_read_b64_tr_b16 v[{S+6}:{S+7}], v7 offset:{o+st*4096+1024}"]
    def mlist(S):
        m = []
        for aa in range(2):
            for b in range(2):
                d = ACC + 16*(2*aa+b)
                m.append(f"v_mfma_f32_32x32x16_bf16 v[{d}:{d+15}], v[{S+4*aa}:{S+4*aa+3}], v[{S+8+4*b}:{S+8+4*b+3}], v[{d}:{d+15}]")
        m.append(f"v_mfma_f32_16x16x32_bf16 v[{WACC}:{WACC+3}], v[{SEL}:{SEL+3}], v[{S}:{S+3}], v[{WACC}:{WACC+3}]")
        return m
    if TLBT:
        lt = a.newlabel("tlb")
        a("s_cmp_eq_u32 s7, 0")
        a(f"s_cbranch_scc0 {lt}")
        tlb_touch(a, 2, 2)
        srd(a, 72, 40, SZ_X)
        a("v_mov_b32 v3, 0")
        a("buffer_load_dword v3, v3, s[72:75], 0 offen")
        a.label(lt)
    fix_tag(a)
    a("s_barrier")
    stamp(a, 1)
    for ins in rlist(0, 0, SETS[0]) + rlist(0, 1, SETS[1]): a(ins)
    for c in range(NCH):
        if c < NCH - 1: a("s_barrier")
        nxt = c + 1 < NCH
        for st in range(2):
            s_ = 2*c + st
            a(f"s_waitcnt lgkmcnt({0 if s_ == 2*NCH - 1 else 6})")
            R = rlist(c + 1, st, SETS[(s_ + 2) % 3]) if nxt else []
            M = mlist(SETS[s_ % 3])
            pat = [1, 2, 1, 2, 0]; ri = 0
            for i, m in enumerate(M):
                a(m)
                for _ in range(pat[i]):
                    if ri < len(R): a(R[ri]); ri += 1
    stamp(a, 2)
    if TLBT: a("s_waitcnt vmcnt(0)")
    if EPRIO: a(f"s_setprio {EPRIO}")
    a("v_and_b32 v3, 63, v0")
    a("s_lshl_b32 s5, s68, 7")
    a("v_and_b32 v2, 15, v3")
    a("v_lshlrev_b32 v2, 2, v2")
    a("v_add_u32 v2, s5, v2")
    a("s_mov_b64 s[70:71], exec")
    a("s_mov_b64 exec, 0xffff")
    a(f"ds_write_b32 v2, v{WACC} offset:{WL}")
    a(f"ds_write_b32 v2, v{WACC+1} offset:{WL+64}")
    a("s_mov_b64 exec, s[70:71]")
    a("s_waitcnt lgkmcnt(0)")
    a("s_barrier")
    WR = 16; ST = 48
    a("v_lshrrev_b32 v2, 5, v3")
    a("v_lshlrev_b32 v2, 4, v2")
    a("s_lshl_b32 s5, s68, 7")
    a("v_add_u32 v4, s5, v2")
    a("s_lshl_b32 s5, s69, 7")
    a("v_add_u32 v5, s5, v2")
    a("v_and_b32 v2, 31, v3")
    a("v_lshlrev_b32 v2, 3, v2")
    a("s_lshl_b32 s5, s11, 9")
    a("v_add_u32 v2, s5, v2")
    a(f"ds_read_b64 v[{ST}:{ST+1}], v2 offset:{WL+1024}")
    a(f"ds_read_b64 v[{ST+2}:{ST+3}], v2 offset:{WL+1024+256}")
    for aa in range(2):
        for q in range(4):
            a(f"ds_read_b128 v[{WR+16*aa+4*q}:{WR+16*aa+4*q+3}], v{4+aa} offset:{WL+32*q}")
    a("s_lshl_b32 s4, s12, 2")
    a("s_lshl_b32 s5, s11, 1")
    a("s_add_u32 s4, s4, s5")
    a("s_mul_i32 s4, s4, 112")
    a("s_lshl_b32 s5, s13, 3")
    a("s_add_u32 s4, s4, s5")
    a("s_lshl_b32 s5, s68, 1")
    a("s_add_u32 s74, s4, s5")
    a("s_lshl_b32 s74, s74, 10")
    a("s_lshl_b32 s5, s69, 1")
    a("s_add_u32 s75, s4, s5")
    a("s_lshl_b32 s75, s75, 10")
    a("v_lshlrev_b32 v3, 4, v3")
    a("s_waitcnt lgkmcnt(8)")
    if not RFOLD:
        a(f"v_mul_f32 v{ST}, v{ST}, v{ST+1}")
        a(f"v_mul_f32 v{ST+2}, v{ST+2}, v{ST+3}")
    a("s_waitcnt lgkmcnt(0)")
    TT = 52
    for aa in range(2):
        for b in range(2):
            d = ACC + 16*(2*aa+b); w = WR + 16*aa
            if G1PK:
                for k in range(8):
                    t = TT + 2*(k % 4)
                    a(f"v_pk_mul_f32 v[{t}:{t+1}], v[{w+2*k}:{w+2*k+1}], v[{ST+2*b}:{ST+2*b+1}] op_sel_hi:[1,0]")
                    a(f"v_pk_fma_f32 v[{d+2*k}:{d+2*k+1}], v[{d+2*k}:{d+2*k+1}], v[{ST+2*b}:{ST+2*b+1}], v[{t}:{t+1}] op_sel:[0,1,0] op_sel_hi:[1,1,1] neg_lo:[0,0,1] neg_hi:[0,0,1]")
            elif RFOLD:
                for k in range(16):
                    a(f"v_fma_f32 v{d+k}, -v{ST+2*b}, v{w+k}, v{d+k}")
            else:
                for k in range(16):
                    t = TT + (k % 8)
                    a(f"v_mul_f32 v{t}, v{w+k}, v{ST+2*b}")
                    a(f"v_fma_f32 v{d+k}, v{d+k}, v{ST+2*b+1}, -v{t}")
            for k in range(8):
                if G1PK:
                    a(f"v_cvt_pk_bf16_f32 v{d+k}, v{d+2*k}, v{d+2*k+1}")
                    a(f"v_pk_max_i16 v{d+k}, v{d+k}, 0")
                else:
                    a(f"v_max_f32 v{d+2*k}, 0, v{d+2*k}")
                    a(f"v_max_f32 v{d+2*k+1}, 0, v{d+2*k+1}")
                    a(f"v_cvt_pk_bf16_f32 v{d+k}, v{d+2*k}, v{d+2*k+1}")
            a(f"s_add_u32 s5, s{74+aa}, {b*112*1024}")
            a(f"buffer_store_dwordx4 v[{d}:{d+3}], v3, s[56:59], s5 offen {SC}")
            a(f"buffer_store_dwordx4 v[{d+4}:{d+7}], v3, s[56:59], s5 offen offset:1024 {SC}")
    stamp(a, 5)
    a("s_setprio 0")
    a("s_waitcnt vmcnt(0)")
    a.label("L_g1_done")
    a("s_barrier")
    lab = a.newlabel("g1pub")
    a(f"s_cmp_eq_u32 s7, {HPUB}")
    a(f"s_cbranch_scc0 {lab}")
    publish(a, "s92", 4, 5)
    a.label(lab)
    stamp(a, 3)

def body_g2(a):
    PF = 3; NK = 14; NPRE = 5; GREG = 10240
    vm = VM()
    if G2PRIO: a(f"s_setprio {G2PRIO}")
    lab_su = a.newlabel("g2su")
    a("s_cmp_eq_u32 s91, 0")
    a(f"s_cbranch_scc0 {lab_su}")
    g2_setup(a)
    a.label(lab_su)
    ACC = 64; FR = 16
    def off(ks): return (ks % 4) * 1024
    def inc(ks, regs):
        return [f"s_add_u32 s{r}, s{r}, 4096" for r in regs] if ks % 4 == 3 else []
    def lA(ks):
        S = FR + 16*(ks % PF)
        return [[f"buffer_load_dwordx4 v[{S}:{S+3}], v3, s[48:51], s68 offen offset:{off(ks)} {SC}"],
                [f"buffer_load_dwordx4 v[{S+4}:{S+7}], v3, s[48:51], s69 offen offset:{off(ks)} {SC}"] + inc(ks, (68, 69))]
    def lB(ks):
        S = FR + 16*(ks % PF)
        return [[f"buffer_load_dwordx4 v[{S+8}:{S+11}], v3, s[52:55], s70 offen offset:{off(ks)} {SC}"],
                [f"buffer_load_dwordx4 v[{S+12}:{S+15}], v3, s[52:55], s71 offen offset:{off(ks)} {SC}"] + inc(ks, (70, 71))]
    for _ in range(DIAGDELAY): a("s_sleep 32")
    stamp(a, 20)
    a(f"s_mov_b32 s9, {F_W}")
    def fw_poll():
        lk = a.newlabel("fwk")
        a("s_cmp_eq_u32 s91, 2")
        a(f"s_cbranch_scc1 {lk}")
        wait_flags(a, 56, "s9", 4, 8, wide=True, compact=True)
        a.label(lk)
    wg_wait(a, fw_poll, wave=WPOLL)
    stamp(a, 17)
    if kern.PROF: a(f"v_writelane_b32 v{kern.PROF_V}, s77, 19")
    a("s_lshr_b32 s9, s12, 1")
    a(f"s_mul_i32 s9, s9, {14*128 if FSH == 7 else 64}")
    a(f"s_add_u32 s9, s9, {F_H}")
    a("s_mul_i32 s4, s7, 7")
    a("s_lshr_b32 s4, s4, 2")
    a("s_mul_i32 s6, s7, 224")
    a("s_add_u32 s6, s6, 223")
    a("s_lshr_b32 s6, s6, 7")
    a("v_add_u32 v4, s4, v2")
    a("v_min_u32 v4, s6, v4")
    a(f"v_lshlrev_b32 v4, {FSH}, v4")
    a("s_mov_b64 s[86:87], exec")
    a("s_mov_b64 exec, 7")
    a(f"buffer_load_dword v8, v4, s[80:83], s9 offen {SC}")
    a("s_mov_b64 exec, s[86:87]")
    dmaA = g2_dmaA
    assert G2RING and NEARLY == 5
    lp1 = a.newlabel("g2p1"); lp2 = a.newlabel("g2p2")
    a("s_cmp_eq_u32 s91, 2")
    a(f"s_cbranch_scc1 {lp1}")
    for ks in range(NPRE):
        for g in dmaA(ks):
            for ins in g: a(ins)
        vm.issue(("a", ks), 2)
    a(f"s_waitcnt vmcnt({2*NPRE})")
    a(f"s_branch {lp2}")
    a.label(lp1)
    a("s_waitcnt vmcnt(0)")
    a.label(lp2)
    a("v_add_u32 v14, s90, v3")
    stamp(a, 18)
    lab = a.newlabel("wh"); ok = a.newlabel("whok")
    a("s_mov_b64 exec, 7")
    a("s_mov_b32 s77, 0")
    a.label(lab)
    a("v_cmp_ne_u32 vcc, s46, v8")
    a(f"s_cbranch_vccz {ok}")
    a("s_add_u32 s77, s77, 1")
    a(f"s_cmp_ge_u32 s77, {SPIN:#x}")
    a(f"s_cbranch_scc1 {ok}")
    a(f"s_sleep {HSLEEP}")
    a(f"buffer_load_dword v8, v4, s[80:83], s9 offen {SC}")
    a(f"s_waitcnt vmcnt(0)")
    a(f"s_branch {lab}")
    a.label(ok)
    a("s_mov_b64 exec, s[86:87]")
    stamp(a, 6)
    def lAl(ks):
        S = FR + 16*(ks % PF)
        return [[f"ds_read_b128 v[{S}:{S+3}], v14 offset:{ks*2048}"], [f"ds_read_b128 v[{S+4}:{S+7}], v14 offset:{ks*2048+1024}"]]
    AS = [16, 24]; BS = [32, 40, 48, 56]; PB = 4
    def rA(ks):
        S = AS[ks % 2]; o = (ks % NPRE)*2048
        return [f"ds_read_b128 v[{S}:{S+3}], v14 offset:{o}", f"ds_read_b128 v[{S+4}:{S+7}], v14 offset:{o+1024}"]
    def rB(ks):
        S = BS[ks % PB]
        return [[f"buffer_load_dwordx4 v[{S}:{S+3}], v3, s[52:55], s70 offen offset:{off(ks)} {SC}"],
                [f"buffer_load_dwordx4 v[{S+4}:{S+7}], v3, s[52:55], s71 offen offset:{off(ks)} {SC}"] + inc(ks, (70, 71))]
    if G2RING:
        for ks in range(PB):
            for g in rB(ks):
                for ins in g: a(ins)
            vm.issue(("k", ks), 2)
        for ks in range(NEARLY, NPRE):
            for g in dmaA(ks):
                for ins in g: a(ins)
            vm.issue(("a", ks), 2)
        a(f"s_waitcnt vmcnt({vm.wait_for(('a', 0))})")
        for ins in rA(0): a(ins)
    else:
        for ks in range(PF):
            for g in lB(ks):
                for ins in g: a(ins)
            vm.issue(("k", ks), 2)
        a(f"s_waitcnt vmcnt({vm.wait_for('pre')})")
        for ks in range(PF):
            for g in lAl(ks):
                for ins in g: a(ins)
    srd(a, 56, 44, SZ_X, WS_AOUT)
    srd(a, 60, 16, SZ_X)
    srd(a, 64, 40, SZ_X)
    a("s_lshr_b32 s8, s7, 2")
    a("s_bfe_u32 s9, s7, 0x10001")
    a("s_and_b32 s15, s7, 1")
    a("s_lshl_b32 s4, s12, 6")
    a("s_lshl_b32 s5, s9, 5")
    a("s_add_u32 s4, s4, s5")
    a("s_lshl_b32 s5, s13, 6")
    a("s_lshl_b32 s6, s8, 5")
    a("s_add_u32 s5, s5, s6")
    a("s_lshl_b32 s6, s15, 4")
    a("s_add_u32 s5, s5, s6")
    a("s_mul_i32 s10, s4, 896")
    a("s_lshl_b32 s6, s5, 1")
    a("s_add_u32 s10, s10, s6")
    a("s_lshl_b32 s11, s5, 12")
    a("s_lshl_b32 s6, s4, 1")
    a("s_add_u32 s11, s11, s6")
    a("v_and_b32 v4, 31, v2")
    a("v_lshrrev_b32 v5, 5, v2")
    a("v_mul_u32_u24 v6, 896, v4")
    a("v_lshl_add_u32 v6, v5, 3, v6")
    a("v_lshlrev_b32 v7, 14, v5")
    a("v_lshl_add_u32 v7, v4, 1, v7")
    XR = 8
    for q in range(2):
        a(f"buffer_load_dwordx2 v[{XR+2*q}:{XR+2*q+1}], v6, s[60:63], s10 offen offset:{16*q}")
    vm.issue("x", 2)
    if RFOLD:
        srd(a, 72, 44, 16384, WS_ST)
        a("s_lshl_b32 s6, s4, 3")
        a("v_lshlrev_b32 v5, 3, v4")
        a(f"buffer_load_dword v5, v5, s[72:75], s6 offen offset:4 {SC}")
        vm.issue("r")
    for ks in range(NK if G2RING else 0):
        n = vm.wait_for(("k", ks))
        if ks + 1 < NK: n = min(n, vm.wait_for(("a", ks + 1)))
        a(f"s_waitcnt vmcnt({n}) lgkmcnt(0)")
        if ks == 0: stamp(a, 7)
        SA = AS[ks % 2]; SB = BS[ks % PB]
        ms = []
        for aa in range(2):
            for b in range(2):
                d = ACC + 16*(2*aa+b)
                ms.append(f"v_mfma_f32_32x32x16_bf16 v[{d}:{d+15}], v[{SA+4*aa}:{SA+4*aa+3}], v[{SB+4*b}:{SB+4*b+3}], v[{d}:{d+15}]")
        RA = rA(ks + 1) if ks + 1 < NK else []
        RB = rB(ks + PB) if ks + PB < NK else None
        DA = dmaA(ks + NPRE) if ks + NPRE < NK else None
        a(ms[0])
        if RA: a(RA[0])
        a(ms[1])
        if RA: a(RA[1])
        a(ms[2])
        if RB:
            for ins in RB[0]: a(ins)
            vm.issue(("k", ks + PB))
        if DA:
            for ins in DA[0]: a(ins)
            vm.issue(("a", ks + NPRE))
        a(ms[3])
        if RB:
            for ins in RB[1]: a(ins)
            vm.issue(("k", ks + PB))
        if DA:
            for ins in DA[1]: a(ins)
            vm.issue(("a", ks + NPRE))
    for ks in range(0 if G2RING else NK):
        w = f"s_waitcnt vmcnt({vm.wait_for(('k', ks))})"
        if ks < NPRE: w += f" lgkmcnt({2*max(0, min(ks + PF - 1, NPRE - 1) - ks)})"
        a(w)
        if ks == 0: stamp(a, 7)
        S = FR + 16*(ks % PF)
        nx = ks + PF < NK
        loc = ks + PF < NPRE
        LA = (lAl(ks + PF) if loc else lA(ks + PF)) if nx else None; LB = lB(ks + PF) if nx else None
        ms = []
        for aa in range(2):
            for b in range(2):
                d = ACC + 16*(2*aa+b)
                ms.append(f"v_mfma_f32_32x32x16_bf16 v[{d}:{d+15}], v[{S+4*aa}:{S+4*aa+3}], v[{S+8+4*b}:{S+8+4*b+3}], v[{d}:{d+15}]")
        a(ms[0]); a(ms[1])
        if nx:
            for ins in LA[0]: a(ins)
        a(ms[2])
        if nx:
            for ins in LB[0]: a(ins)
        a(ms[3])
        if nx:
            for ins in LA[1] + LB[1]: a(ins)
            vm.issue(("k", ks + PF), 2 if loc else 4)
    stamp(a, 8)
    a("s_lshl_b32 s5, s13, 7")
    a("s_and_b32 s6, s2, 7")
    a("s_lshl_b32 s6, s6, 10")
    a("s_add_u32 s5, s5, s6")
    a(f"s_add_u32 s5, s5, {F_C}")
    labc = a.newlabel("g2c")
    a("s_cmp_eq_u32 s7, 0")
    a(f"s_cbranch_scc0 {labc}")
    wait_flags(a, 32, "s5", 12, 13, compact=True)
    a.label(labc)
    AR = 16
    a(f"s_mul_i32 s4, s7, {GREG}")
    a("v_add_u32 v12, s4, v3")
    l1 = a.newlabel("g2r"); l2 = a.newlabel("g2re")
    a("s_cmp_eq_u32 s8, 0")
    a(f"s_cbranch_scc0 {l1}")
    for i in range(8): a(f"ds_write_b128 v12, v[{ACC+32+4*i}:{ACC+32+4*i+3}] offset:{1024*i}")
    a(f"s_branch {l2}")
    a.label(l1)
    for i in range(8): a(f"ds_write_b128 v12, v[{ACC+4*i}:{ACC+4*i+3}] offset:{1024*i}")
    for i in range(32): a(f"v_mov_b32 v{ACC+i}, v{ACC+32+i}")
    a.label(l2)
    a("s_xor_b32 s4, s7, 4")
    a(f"s_mul_i32 s4, s4, {GREG}")
    a("v_add_u32 v12, s4, v3")
    a("s_waitcnt lgkmcnt(0)")
    stamp(a, 10)
    a("s_barrier")
    stamp(a, 11)
    for q in range(2):
        for r in range(4):
            a(f"s_add_u32 s6, s11, {(8*q+r)*4096}")
            a(f"buffer_load_ushort v{AR+4*q+r}, v7, s[56:59], s6 offen {SC}")
    R = ACC + 32
    for i in range(8): a(f"ds_read_b128 v[{R+4*i}:{R+4*i+3}], v12 offset:{1024*i}")
    for i in range(8):
        a(f"s_waitcnt lgkmcnt({7-i})")
        for k in range(4): a(f"v_add_f32 v{ACC+4*i+k}, v{ACC+4*i+k}, v{R+4*i+k}")
    a("s_barrier")
    stamp(a, 12)
    a("s_and_b32 s4, s7, 3")
    a("s_lshl_b32 s5, s8, 15")
    a("s_lshl_b32 s6, s4, 11")
    a("s_add_u32 s6, s6, s5")
    a("v_add_u32 v12, s6, v3")
    OWN = 40
    for p in range(4):
        lo = a.newlabel("g2o"); le = a.newlabel("g2e")
        a(f"s_cmp_eq_u32 s4, {p}")
        a(f"s_cbranch_scc1 {lo}")
        for j in range(2):
            a(f"ds_write_b128 v12, v[{ACC+8*p+4*j}:{ACC+8*p+4*j+3}] offset:{p*8192+j*1024}")
        a(f"s_branch {le}")
        a.label(lo)
        for k in range(8): a(f"v_mov_b32 v{OWN+k}, v{ACC+8*p+k}")
        a.label(le)
    a("s_lshl_b32 s6, s4, 13")
    a("s_add_u32 s6, s6, s5")
    a("v_add_u32 v12, s6, v3")
    a("s_waitcnt lgkmcnt(0)")
    a("s_barrier")
    stamp(a, 13)
    for j in range(3):
        a(f"s_add_u32 s6, s4, {1+j}")
        a("s_and_b32 s6, s6, 3")
        a("s_lshl_b32 s6, s6, 11")
        a(f"v_add_u32 v{13+j}, s6, v12")
        for jj in range(2):
            a(f"ds_read_b128 v[{R+8*j+4*jj}:{R+8*j+4*jj+3}], v{13+j} offset:{jj*1024}")
    a("s_waitcnt lgkmcnt(2)")
    for k in range(8): a(f"v_add_f32 v{R+k}, v{R+k}, v{R+8+k}")
    a("s_waitcnt lgkmcnt(0)")
    for k in range(8): a(f"v_add_f32 v{R+16+k}, v{R+16+k}, v{OWN+k}")
    for k in range(8): a(f"v_add_f32 v{R+k}, v{R+k}, v{R+16+k}")
    stamp(a, 14)
    a("s_waitcnt vmcnt(0)")
    stamp(a, 15)
    T = 24
    for q in range(2):
        for hh in range(2):
            f0 = R + 4*q + 2*hh; x = XR + 2*q + hh; ao = AR + 4*q + 2*hh
            if RFOLD:
                a(f"v_mul_f32 v{f0}, v{f0}, v5")
                a(f"v_mul_f32 v{f0+1}, v{f0+1}, v5")
            a(f"v_cvt_pk_bf16_f32 v{T}, v{f0}, v{f0+1}")
            unpack(a, T+1, T+2, T)
            unpack(a, T+3, T+4, x)
            a(f"v_lshlrev_b32 v{ao}, 16, v{ao}")
            a(f"v_lshlrev_b32 v{ao+1}, 16, v{ao+1}")
            a(f"v_add_f32 v{T+3}, v{T+3}, v{ao}")
            a(f"v_add_f32 v{T+4}, v{T+4}, v{ao+1}")
            a(f"v_cvt_pk_bf16_f32 v{T}, v{T+3}, v{T+4}")
            unpack(a, T+3, T+4, T)
            a(f"v_add_f32 v{T+1}, v{T+1}, v{T+3}")
            a(f"v_add_f32 v{T+2}, v{T+2}, v{T+4}")
            a(f"v_cvt_pk_bf16_f32 v{32+2*q+hh}, v{T+1}, v{T+2}")
        a(f"buffer_store_dwordx2 v[{32+2*q}:{32+2*q+1}], v6, s[64:67], s10 offen offset:{16*q}")
    stamp(a, 16)
    lab = a.newlabel("g2ep")
    a("s_or_b32 s4, s3, s7")
    a("s_cmp_eq_u32 s4, 0")
    a(f"s_cbranch_scc0 {lab}")
    if FSH == 7:
        a(f"s_mov_b32 s9, {F_H}")
        wait_flags(a, 56, "s9", 4, 8, wide=True)
    else:
        for rb in range(16):
            a(f"s_mov_b32 s9, {F_H + 64*rb}")
            wait_flags(a, 14, "s9", 4, 8, compact=True)
    publish(a, F_E, 4, 5)
    a.label(lab)

def body_ln(a):
    X = 8; F = 40
    srd(a, 48, 16, SZ_X)
    srd(a, 56, 44, SZ_X, WS_XNT)
    srd(a, 60, 44, 16384, WS_ST)
    a("v_lshrrev_b32 v1 , 3, v0".replace("v1 ", "v104"))
    a("v_and_b32 v2, 7, v0")
    a("s_mul_i32 s4, s3, 57344")
    a("v_mul_u32_u24 v3, 896, v104")
    a("v_lshl_add_u32 v3, v2, 4, v3")
    for j in range(7):
        a(f"buffer_load_dwordx4 v[{X+4*j}:{X+4*j+3}], v3, s[48:51], s4 offen offset:{128*j}")
    if CODEPF:
        a("s_getpc_b64 s[4:5]")
        a.label("L_pc")
        a(f"s_sub_u32 s4, s4, L_pc-{NAME}")
        a("s_subb_u32 s5, s5, 0")
        a("v_lshlrev_b32 v110, 7, v0")
        a(f"v_cmp_gt_u32 vcc, L_code_end-{NAME}, v110")
        a("s_and_saveexec_b64 s[10:11], vcc")
        lskip = a.newlabel("cpf")
        a(f"s_cbranch_execz {lskip}")
        a("v_mov_b32 v113, s5")
        a("v_add_co_u32 v112, vcc, s4, v110")
        a("v_addc_co_u32 v113, vcc, 0, v113, vcc")
        a("global_load_dword v111, v[112:113], off")
        a.label(lskip)
        a("s_mov_b64 exec, s[10:11]")
        a("s_mul_i32 s4, s3, 57344")
    a("v_mul_u32_u24 v5, 912, v104")
    a("v_lshl_add_u32 v5, v2, 4, v5")
    fix_tag(a)
    for j in range(7):
        a(f"s_waitcnt vmcnt({6-j})")
        if j == 6: stamp(a, 1)
        for k in range(4):
            unpack(a, F+8*j+2*k, F+8*j+2*k+1, X+4*j+k)
    def pkadd(d, x, y, neg=False, bc=None):
        if LNPK:
            m = ""
            if bc == 0: m += " op_sel_hi:[1,0]"
            if neg: m += " neg_lo:[0,1] neg_hi:[0,1]"
            a(f"v_pk_add_f32 v[{d}:{d+1}], v[{x}:{x+1}], v[{y}:{y+1}]{m}")
        else:
            op = "v_sub_f32" if neg else "v_add_f32"
            a(f"{op} v{d}, v{x}, v{y}"); a(f"{op} v{d+1}, v{x+1}, v{y if bc == 0 else y+1}")
    pkadd(6, F, F+2); pkadd(96, F+4, F+6)
    for i in range(4, 28):
        r = 6 if i % 2 == 0 else 96
        pkadd(r, r, F+2*i)
    a("v_add_f32 v6, v6, v7")
    a("v_add_f32 v96, v96, v97")
    a("v_add_f32 v6, v6, v96")
    def red8(r):
        a(f"v_add_f32_dpp v{r}, v{r}, v{r} quad_perm:[1,0,3,2] row_mask:0xf bank_mask:0xf")
        a(f"v_add_f32_dpp v{r}, v{r}, v{r} quad_perm:[2,3,0,1] row_mask:0xf bank_mask:0xf")
        a(f"v_add_f32_dpp v{r}, v{r}, v{r} row_half_mirror row_mask:0xf bank_mask:0xf")
    red8(6)
    a(f"s_mov_b32 s5, {f32bits(1.0/448):#x}")
    a("v_mul_f32 v6, s5, v6")
    bf_round(a, 98, 6)
    a("v_mov_b32 v7, v6")
    for i in range(4): a(f"v_mov_b32 v{106+i}, 0")
    for i in range(28):
        t = 100 + 2*(i % 2)
        acc = 106 + 2*(i % 2)
        pkadd(t, F+2*i, 6, neg=True)
        if LNPK: a(f"v_pk_fma_f32 v[{acc}:{acc+1}], v[{t}:{t+1}], v[{t}:{t+1}], v[{acc}:{acc+1}]")
        else:
            a(f"v_fmac_f32 v{acc}, v{t}, v{t}"); a(f"v_fmac_f32 v{acc+1}, v{t+1}, v{t+1}")
    a("v_add_f32 v106, v106, v107")
    a("v_add_f32 v108, v108, v109")
    a("v_add_f32 v7, v106, v108")
    red8(7)
    a("v_mul_f32 v7, s5, v7")
    bf_round(a, 7, 7)
    a(f"v_add_f32 v7, {f32bits(1e-5):#x}, v7")
    bf_round(a, 7, 7)
    a("v_sqrt_f32 v7, v7")
    bf_round(a, 99, 7)
    a("v_rcp_f32 v99, v99")
    a("s_lshl_b32 s6, s3, 9")
    a("v_lshlrev_b32 v100, 3, v104")
    a(f"buffer_store_dwordx2 v[98:99], v100, s[60:63], s6 offen {SC}")
    a("v_readfirstlane_b32 s7, v0")
    for j in range(7):
        for k in range(4):
            lo = F+8*j+2*k; d = X+4*j+k
            pkadd(lo, lo, 98, neg=True, bc=0)
            a(f"v_cvt_pk_bf16_f32 v{d}, v{lo}, v{lo+1}")
        for k in range(4):
            lo = F+8*j+2*k; d = X+4*j+k
            unpack(a, lo, lo+1, d)
            if LNPK: a(f"v_pk_mul_f32 v[{lo}:{lo+1}], v[{lo}:{lo+1}], v[98:99] op_sel:[0,1] op_sel_hi:[1,1]")
            else:
                a(f"v_mul_f32 v{lo}, v{lo}, v99"); a(f"v_mul_f32 v{lo+1}, v{lo+1}, v99")
            a(f"v_cvt_pk_bf16_f32 v{d}, v{lo}, v{lo+1}")
        a(f"ds_write_b128 v5, v[{X+4*j}:{X+4*j+3}] offset:{128*j}")
    a("v_and_b32 v104, 63, v0")
    a("v_lshrrev_b32 v2, 4, v104")
    a("v_bfe_u32 v3, v104, 2, 2")
    a("v_and_b32 v6, 3, v104")
    a("v_bfe_u32 v8, v0, 6, 1")
    a("v_lshl_add_u32 v7, v2, 3, v3")
    a("v_lshl_add_u32 v7, v8, 5, v7")
    a("v_mul_u32_u24 v7, 912, v7")
    a("v_lshl_add_u32 v7, v6, 3, v7")
    a("v_lshrrev_b32 v6, 7, v0")
    a("v_lshl_add_u32 v7, v6, 5, v7")
    a("v_and_b32 v3, 15, v104")
    a("v_lshl_add_u32 v3, v6, 4, v3")
    a("v_lshlrev_b32 v3, 6, v3")
    a("v_lshl_add_u32 v3, v2, 4, v3")
    a("v_mul_u32_u24 v8, 28672, v8")
    a("v_add_u32 v3, v3, v8")
    a("s_mul_i32 s6, s3, 57344")
    a("s_waitcnt vmcnt(0) lgkmcnt(0)")
    a("s_barrier")
    lab = a.newlabel("lnpub")
    a("s_cmp_lt_u32 s7, 64")
    a(f"s_cbranch_scc0 {lab}")
    a(f"s_lshl_b32 s5, s3, {FSH}")
    a(f"s_add_u32 s5, s5, {F_S}")
    publish(a, "s5", 100, 101)
    a.label(lab)
    stamp(a, 2)
    R = 40
    for t in range(7):
        r = R + 4*t
        a(f"ds_read_b64_tr_b16 v[{r}:{r+1}], v7 offset:{128*t}")
        a(f"ds_read_b64_tr_b16 v[{r+2}:{r+3}], v7 offset:{128*t+4*912}")
    for t in range(7):
        r = R + 4*t
        a(f"s_waitcnt lgkmcnt({2*(6-t)})")
        a(f"buffer_store_dwordx4 v[{r}:{r+3}], v3, s[56:59], s6 offen {SC}")
        if t < 6: a(f"v_add_u32 v3, {64*64}, v3")
    a("s_waitcnt vmcnt(0)")
    a("s_barrier")
    lab = a.newlabel("lnpub2")
    a("s_cmp_lt_u32 s7, 64")
    a(f"s_cbranch_scc0 {lab}")
    a(f"s_lshl_b32 s6, s3, {XSH}")
    a(f"s_add_u32 s6, s6, {F_X}")
    publish_rep(a, "s6", 100, 101, 4096)
    a.label(lab)

KG8_W = 32 * KG_RS
CNT = 81904
def body_kg(a):
    LOG2E = 1.4426950408889634
    SZP = 448*256*2
    P = 8
    if KGHI: a(f"s_setprio {KGHI}")
    for i, ptr in enumerate([18, 20, 22, 24, 26, 28]):
        srd(a, 48 + 4*i, ptr, SZP)
    a("s_lshl_b32 s4, s3, 10")
    a("v_lshlrev_b32 v3, 1, v0")
    for i in range(6):
        a(f"buffer_load_ushort v{P+i}, v3, s[{48+4*i}:{51+4*i}], s4 offen")
    a("s_lshl_b32 s5, s3, 2")
    a("s_load_dword s8, s[30:31], s5")
    a("s_load_dword s9, s[32:33], s5")
    W = 124
    def w2_load():
        srd(a, 72, 38, SZ_WF)
        a("v_lshrrev_b32 v116, 5, v0")
        a("v_and_b32 v117, 31, v0")
        a("s_lshr_b32 s4, s3, 1")
        a("s_mul_i32 s4, s4, 14336")
        a("s_and_b32 s5, s3, 1")
        a("s_mul_i32 s5, s5, 448")
        a("s_add_u32 s4, s4, s5")
        a("v_mul_u32_u24 v116, 896, v116")
        a("v_lshl_add_u32 v116, v117, 4, v116")
        a(f"buffer_load_dwordx4 v[{W}:{W+3}], v116, s[72:75], s4 offen")
    if W2MODE == 0: w2_load()
    a("v_lshrrev_b32 v4, 6, v0")
    a("v_and_b32 v2, 63, v0")
    a(f"v_mul_u32_u24 v6, {KG8_W}, v4")
    a("v_lshl_add_u32 v7, v2, 2, v6")
    a("v_and_b32 v3, 31, v2")
    a(f"v_mul_u32_u24 v3, {KG_RS}, v3")
    a("v_add_u32 v6, v6, v3")
    a("v_lshrrev_b32 v3, 5, v2")
    a("v_lshl_add_u32 v6, v3, 4, v6")
    a("v_readfirstlane_b32 s7, v4")
    BF = 16; ACC = 48; CH = 64; T = 108
    for i in range(16): a(f"v_mov_b32 v{ACC+i}, 0")
    fix_tag(a)
    a("s_mov_b32 s47, s9")
    a("v_lshrrev_b32 v4, 8, v0")
    a("v_mov_b32 v5, s8")
    a("v_lshlrev_b32 v3, 16, v5")
    a("v_and_b32 v5, 0xffff0000, v5")
    a("v_cmp_eq_u32 vcc, 0, v4")
    a("v_cndmask_b32 v5, v5, v3, vcc")
    a(f"v_mul_f32 v5, {f32bits(LOG2E):#x}, v5")
    a("v_exp_f32 v5, v5")
    bf_round(a, 5, 5)
    W2S = 8*KG8_W
    def w2_lds_write():
        a("v_lshrrev_b32 v3, 5, v0")
        a("v_and_b32 v4, 31, v0")
        a("v_mul_u32_u24 v3, 528, v3")
        a("v_lshl_add_u32 v3, v4, 4, v3")
        a(f"v_add_u32 v3, {W2S}, v3")
        a(f"ds_write_b128 v3, v[{W}:{W+3}]")
    def w2_frag_store():
        srd(a, 72, 44, SZ_WF, WS_W2F)
        a("v_lshrrev_b32 v4, 5, v2")
        a("v_bfe_u32 v3, v2, 2, 2")
        a("v_lshl_add_u32 v4, v4, 2, v3")
        a("v_mul_u32_u24 v4, 528, v4")
        a("v_bfe_u32 v3, v2, 4, 1")
        a("v_lshl_add_u32 v4, v3, 5, v4")
        a("v_and_b32 v3, 3, v2")
        a("v_lshl_add_u32 v4, v3, 3, v4")
        a("s_lshl_b32 s5, s7, 6")
        a(f"s_add_u32 s5, s5, {W2S}")
        a("v_add_u32 v4, s5, v4")
        labw = a.newlabel("kgw2")
        a("s_cmp_eq_u32 s7, 7")
        a(f"s_cbranch_scc1 {labw}")
        a(f"ds_read_b64_tr_b16 v[{W}:{W+1}], v4")
        a(f"ds_read_b64_tr_b16 v[{W+2}:{W+3}], v4 offset:{8*528}")
        a("s_and_b32 s5, s3, 1")
        a("s_mul_i32 s5, s5, 7")
        a("s_add_u32 s5, s5, s7")
        a("s_mul_i32 s5, s5, 112")
        a("s_lshr_b32 s6, s3, 1")
        a("s_add_u32 s5, s5, s6")
        a("s_lshl_b32 s5, s5, 10")
        a("v_lshlrev_b32 v3, 4, v2")
        a("s_waitcnt lgkmcnt(0)")
        if not NOW2ST: a(f"buffer_store_dwordx4 v[{W}:{W+3}], v3, s[72:75], s5 offen {W2SC}")
        a.label(labw)
    a("s_waitcnt vmcnt(0)")
    stamp(a, 1)
    if W2MODE == 0:
        w2_lds_write()
        for i in range(6): a(f"v_lshlrev_b32 v{P+i}, 16, v{P+i}")
        a("s_waitcnt lgkmcnt(0)")
        a("s_barrier")
        w2_frag_store()
    elif W2MODE == 3:
        w2_load()
        for i in range(6): a(f"v_lshlrev_b32 v{P+i}, 16, v{P+i}")
        a("s_waitcnt vmcnt(0)")
        w2_lds_write()
        a("s_waitcnt lgkmcnt(0)")
        a("s_barrier")
        w2_frag_store()
        a("s_waitcnt vmcnt(0)")
        a("s_barrier")
        labp3 = a.newlabel("kgpub3")
        a("s_cmp_eq_u32 s7, 0")
        a(f"s_cbranch_scc0 {labp3}")
        a("s_lshl_b32 s6, s3, 2")
        a(f"s_add_u32 s6, s6, {F_W}")
        publish(a, "s6", 116, 117)
        a.label(labp3)
        a("s_and_b32 s5, s2, 7")
        a("s_lshl_b32 s5, s5, 12")
        a(f"s_add_u32 s5, s5, {F_X}")
        global SLEEP
        sl = SLEEP; SLEEP = XSLEEP
        wg_wait(a, lambda: wait_flags(a, 32, "s5", 116, 117, compact=(XSH == 2)), wave=1)
        SLEEP = sl
    else:
        w2_load()
        for i in range(6): a(f"v_lshlrev_b32 v{P+i}, 16, v{P+i}")
    if NOKG: a("s_branch L_kg_skip")
    a(f"v_mul_f32 v14, v5, v{P}")
    a(f"v_mul_f32 v15, v5, v{P+1}")
    a(f"v_mul_f32 v14, {f32bits(LOG2E):#x}, v14")
    a("v_mul_f32 v15, 0.15915494, v15")
    a(f"v_mul_f32 v{P+2}, v5, v{P+2}")
    a(f"v_mul_f32 v{P+3}, v5, v{P+3}")
    regs = {}; nxt = [CH]
    def alloc(name):
        r = nxt[0]; nxt[0] += 2
        assert nxt[0] <= T, name
        regs[name] = (r, r + 1); return regs[name]
    def cmul(dst, x, w):
        (dr, di), (xr, xi), (wr, wi) = dst, x, w
        return [f"v_mul_f32 v{dr}, v{xi}, v{wi}", f"v_mul_f32 v{di}, v{xi}, v{wr}",
                f"v_fma_f32 v{dr}, v{xr}, v{wr}, -v{dr}", f"v_fma_f32 v{di}, v{xr}, v{wi}, v{di}"]
    tcount = [0, 0, 0, 0]; cur = [0]
    def emitrow(row, z, neg):
        t = T + 2*cur[0] + (tcount[cur[0]] % 2); tcount[cur[0]] += 1
        n = "-" if neg else ""
        return [f"v_cvt_pk_bf16_f32 v{t}, v{z[0]}, {n}v{z[1]}", f"ds_write_b32 v7, v{t} offset:{row*KG_RS}"]
    def direct(dst, tmul, tmp):
        (dr, di) = dst
        return [f"v_mul_f32 v{tmp}, {f32bits(float(tmul)):#x}, v14", f"v_mul_f32 v{tmp+1}, {f32bits(float(tmul)):#x}, v15",
                f"v_exp_f32 v{tmp}, v{tmp}", f"v_fract_f32 v{tmp+1}, v{tmp+1}",
                f"v_cos_f32 v{dr}, v{tmp+1}", f"v_sin_f32 v{di}, v{tmp+1}",
                f"v_mul_f32 v{dr}, v{dr}, v{tmp}", f"v_mul_f32 v{di}, v{di}, v{tmp}"]
    X0 = alloc("X0"); w1 = alloc("w1"); w8 = alloc("w8"); w256 = alloc("w256"); w512 = alloc("w512"); w1024 = alloc("w1024")
    w16 = alloc("w16"); ya = [alloc("ya0"), alloc("ya1")]; yb = [alloc("yb0"), alloc("yb1")]
    c0 = cmul(X0, (P+4, P+5), (P+2, P+3))
    for ins in interleave([direct(w8, 8, 86), direct(w16, 16, 88), direct(w1, 1, 90), direct(w256, 256, 92), c0]): a(ins)
    cur[0] = 2
    chY0 = [f"v_mov_b32 v{T+8}, 0x3f80", f"ds_write_b32 v7, v{T+8} offset:0"] + emitrow(2, w16, False)
    prev = w16
    for k, j in enumerate(range(4, 32, 2)):
        d = ya[k % 2]; chY0 += cmul(d, prev, w16) + emitrow(j, d, False); prev = d
    cur[0] = 3
    chY1 = emitrow(1, w8, False); prev = w8
    for k, j in enumerate(range(3, 32, 2)):
        d = yb[k % 2]; chY1 += cmul(d, prev, w16) + emitrow(j, d, False); prev = d
    X = {0: X0}
    for h in [8, 256, 264, 512, 520, 2, 4]: X[h] = alloc(f"X{h}")
    chP = cmul(w512, w256, w256) + cmul(X[8], X0, w8) + cmul(w1024, w512, w512) + cmul(X[256], X0, w256) + cmul(X[264], X[8], w256) + cmul(X[512], X0, w512) + cmul(X[520], X[8], w512)
    for ins in interleave([chY0, chY1, chP]): a(ins)
    if W2MODE == 2:
        a("s_waitcnt vmcnt(0)")
        w2_lds_write()
        a(f"v_mov_b32 v3, {CNT}")
        a("v_mov_b32 v4, 0")
        a("ds_write_b32 v3, v4")
        a("s_waitcnt lgkmcnt(0)")
        a("s_barrier")
        w2_frag_store()
    a("s_waitcnt lgkmcnt(0)")
    for ks in range(8):
        a(f"ds_read_b128 v[{BF+4*ks}:{BF+4*ks+3}], v6 offset:{ks*32}")
    t1, t2, t3, t4, t5 = w16, ya[0], ya[1], yb[0], yb[1]
    for h in [768, 776, 6]: X[h] = alloc(f"X{h}")
    cur[0] = 0
    chA = emitrow(KG_H[0], X0, True)
    chA += cmul(t1, X0, w1) + emitrow(KG_H[1], t1, True)
    chA += cmul(X[2], t1, w1) + emitrow(KG_H[2], X[2], True)
    chA += cmul(t1, X[2], w1) + emitrow(KG_H[3], t1, True)
    chA += cmul(X[4], t1, w1) + emitrow(KG_H[4], X[4], True)
    chA += cmul(t1, X[4], w1) + emitrow(KG_H[5], t1, True)
    chA += cmul(X[6], t1, w1) + emitrow(KG_H[6], X[6], True)
    chA += cmul(t1, X[6], w1) + emitrow(KG_H[7], t1, True)
    chA += cmul(t1, X[2], w256) + emitrow(KG_H[258], t1, True)
    chA += cmul(t1, X[6], w256) + emitrow(KG_H[262], t1, True)
    cur[0] = 1
    chB = emitrow(KG_H[256], X[256], True) + emitrow(KG_H[264], X[264], True) + emitrow(KG_H[512], X[512], True) + emitrow(KG_H[520], X[520], True)
    chB += cmul(X[768], X[256], w512) + emitrow(KG_H[768], X[768], True)
    chB += cmul(X[776], X[264], w512) + emitrow(KG_H[776], X[776], True)
    for i, (h, src) in enumerate([(1024, 0), (1032, 8), (1280, 256), (1288, 264)]):
        t = t2 if i % 2 == 0 else t3
        chB += cmul(t, X[src], w1024) + emitrow(KG_H[h], t, True)
    a("s_waitcnt lgkmcnt(0)")
    il = interleave([chA, chB])
    for ins in il[:W2CUT]: a(ins)
    if W2MODE == 2 and W2PUB == "count":
        a("s_waitcnt vmcnt(0) lgkmcnt(0)")
        a(f"v_mov_b32 v3, {CNT}")
        a("v_mov_b32 v4, 1")
        a("s_mov_b64 s[86:87], exec")
        a("s_mov_b64 exec, 1")
        a("ds_add_rtn_u32 v4, v3, v4")
        a("s_waitcnt lgkmcnt(0)")
        a("v_readfirstlane_b32 s5, v4")
        a("s_mov_b64 exec, s[86:87]")
        labq = a.newlabel("kgq")
        a("s_cmp_eq_u32 s5, 7")
        a(f"s_cbranch_scc0 {labq}")
        a("s_lshl_b32 s6, s3, 2")
        a(f"s_add_u32 s6, s6, {F_W}")
        publish(a, "s6", 3, 4)
        a.label(labq)
    if KGHI and W2MODE == 2: a("s_setprio 0")
    for ins in il[W2CUT:]: a(ins)
    cur[0] = 2
    chC2 = []
    for i, (h, src) in enumerate([(1536, 512), (1544, 520), (1792, 768), (1800, 776)]):
        t = t4 if i % 2 == 0 else t5
        chC2 += cmul(t, X[src], w1024) + emitrow(KG_H[h], t, True)
    cur[0] = 3
    chD = cmul(t2, X[4], w256) + emitrow(KG_H[260], t2, True) + cmul(t3, t2, w512) + emitrow(KG_H[772], t3, True)
    cur[0] = 0
    chE = cmul(t1, X[4], w512) + emitrow(KG_H[516], t1, True)
    for ins in interleave([chC2, chD, chE]): a(ins)
    AF = CH
    a("s_waitcnt lgkmcnt(0)")
    for ks in range(8):
        a(f"ds_read_b128 v[{AF+4*ks}:{AF+4*ks+3}], v6 offset:{ks*32}")
    for ks in range(8):
        a(f"s_waitcnt lgkmcnt({7-ks})")
        a(f"v_mfma_f32_32x32x16_bf16 v[{ACC}:{ACC+15}], v[{AF+4*ks}:{AF+4*ks+3}], v[{BF+4*ks}:{BF+4*ks+3}], v[{ACC}:{ACC+15}]")
    if NOKG: a.label("L_kg_skip")
    if KGHI and W2MODE != 2 and KGLOW == 0: a("s_setprio 0")
    stamp(a, 2)
    def pubW():
        labp = a.newlabel("kgpub")
        a("s_cmp_eq_u32 s7, 0")
        a(f"s_cbranch_scc0 {labp}")
        a("s_lshl_b32 s6, s3, 2")
        a(f"s_add_u32 s6, s6, {F_W}")
        publish(a, "s6", 116, 117)
        a.label(labp)
    a("s_waitcnt vmcnt(0)")
    if W2MODE == 1:
        w2_lds_write()
        a("s_waitcnt lgkmcnt(0)")
    a("s_barrier")
    if W2MODE == 0 or (W2MODE == 2 and W2PUB == "barrier"): pubW()
    elif W2MODE == 1: w2_frag_store()
    a("s_and_b32 s9, s7, 3")
    a("s_lshr_b32 s10, s7, 2")
    a(f"s_mul_i32 s11, s10, {CV_CH}")
    a("v_lshlrev_b32 v4, 4, v2")
    a("v_add_u32 v4, s11, v4")
    lab1 = a.newlabel("kg_nw"); lab2 = a.newlabel("kg_w2"); lab3 = a.newlabel("kg_end")
    a("s_cmp_eq_u32 s9, 0")
    a(f"s_cbranch_scc1 {lab1}")
    a("s_sub_u32 s5, s9, 1")
    a("s_lshl_b32 s5, s5, 12")
    a("v_add_u32 v5, s5, v4")
    for q in range(4):
        a(f"ds_write_b128 v5, v[{ACC+4*q}:{ACC+4*q+3}] offset:{1024*q}")
    a.label(lab1)
    a("s_waitcnt lgkmcnt(0)" if W2MODE != 1 else "s_waitcnt vmcnt(0) lgkmcnt(0)")
    a("s_barrier")
    if W2MODE == 1: pubW()
    if KGHI and W2MODE != 2 and KGLOW == 1: a("s_setprio 0")
    a("s_cmp_eq_u32 s9, 0")
    a(f"s_cbranch_scc0 {lab3}")
    R = 64
    for j in range(3):
        for q in range(4):
            a(f"ds_read_b128 v[{R+16*j+4*q}:{R+16*j+4*q+3}], v4 offset:{4096*j+1024*q}")
    for j in range(3):
        a(f"s_waitcnt lgkmcnt({4*(2-j)})")
        for i in range(16): a(f"v_add_f32 v{ACC+i}, v{ACC+i}, v{R+16*j+i}")
    a("v_and_b32 v5, 31, v2")
    a("v_lshlrev_b32 v5, 4, v5")
    a(f"v_sub_u32 v6, {CV_K + 4080 - 3584}, v5")
    a("v_add_u32 v6, s11, v6")
    def pk(d, lo, hi): a(f"v_cvt_pk_bf16_f32 v{d}, v{ACC+lo}, v{ACC+hi}")
    def store(base, d): a(f"ds_write_b128 v6, v[{d}:{d+3}] offset:{3584 - 2*base}")
    O = 64
    a("s_mov_b64 s[10:11], exec")
    a("s_mov_b32 exec_lo, -1")
    a("s_mov_b32 exec_hi, 0")
    pk(O, 7, 6); pk(O+1, 5, 4); pk(O+2, 3, 2); pk(O+3, 1, 0); store(0, O)
    pk(O+4, 12, 11); pk(O+5, 10, 10); pk(O+6, 10, 9); pk(O+7, 8, 8); store(256, O+4)
    a("s_mov_b32 exec_lo, 0")
    a("s_mov_b32 exec_hi, -1")
    for b in range(2):
        o = O + 8 + 4*b; r0 = 3*b
        pk(o, r0+2, r0+2); pk(o+1, r0+1, r0+1); pk(o+2, r0+1, r0); pk(o+3, r0, r0); store(512 + 256*b, o)
    a("v_and_b32 v5, 1, v2")
    a("v_cmp_eq_u32 vcc, 0, v5")
    for b in range(4):
        o = O + 16 + 4*b; r0 = 6 + 2*b
        a(f"v_cndmask_b32 v{O+40}, v{ACC+r0+1}, v{ACC+r0}, vcc")
        pk(o, r0+1, r0+1)
        a(f"v_cvt_pk_bf16_f32 v{o+1}, v{ACC+r0+1}, v{O+40}")
        pk(o+2, r0, r0); pk(o+3, r0, r0); store(1024 + 256*b, o)
    a("s_mov_b64 exec, s[10:11]")
    a.label(lab3)
    a("s_waitcnt lgkmcnt(0)")
    a("s_barrier")
    stamp(a, 3)

def body_cv(a):
    srd(a, 48, 44, SZ_X, WS_XNT)
    srd(a, 56, 44, SZ_X, WS_AOUT)
    a("v_lshrrev_b32 v12, 8, v0")
    a("v_and_b32 v2, 255, v0")
    a(f"v_mul_u32_u24 v5, {CV_CH}, v12")
    for i in range(4): a(f"v_mov_b32 v{48+i}, 0")
    a("v_lshl_add_u32 v6, v2, 4, v5")
    a("v_cmp_gt_u32 vcc, 140, v2")
    a("s_and_saveexec_b64 s[10:11], vcc")
    for rho in range(4):
        a(f"ds_write_b128 v6, v[48:51] offset:{cvbase(rho)}")
    a("s_mov_b64 exec, s[10:11]")
    a("v_cmp_gt_u32 vcc, 16, v2")
    a("s_and_saveexec_b64 s[10:11], vcc")
    a(f"ds_write_b128 v6, v[48:51] offset:{CV_K+4096}")
    a("s_mov_b64 exec, s[10:11]")
    a("s_and_b32 s5, s2, 7")
    a("s_lshl_b32 s5, s5, 12")
    a(f"s_add_u32 s5, s5, {F_X}")
    if W2MODE != 3: wg_wait(a, lambda: wait_flags(a, 32, "s5", 3, 4, compact=(XSH == 2)) if "X" not in SKIPW else None)
    stamp(a, 4)
    a("s_lshl_b32 s4, s3, 7")
    a("v_lshrrev_b32 v3, 2, v2")
    a("v_mul_u32_u24 v3, 28672, v3")
    a("v_lshl_add_u32 v3, v12, 6, v3")
    a("v_and_b32 v4, 3, v2")
    a("v_lshl_add_u32 v3, v4, 4, v3")
    D = 16
    a(f"buffer_load_dwordx4 v[{D}:{D+3}], v3, s[48:51], s4 offen {SC}")
    a("v_cmp_eq_u32 vcc, 0, v4")
    a(f"v_mov_b32 v4, {-8 & 0xffffffff:#x}")
    a(f"v_mov_b32 v6, {(56 - 28672) & 0xffffffff:#x}")
    a("v_cndmask_b32 v4, v4, v6, vcc")
    a("v_add_u32 v4, v4, v3")
    a("v_max_i32 v4, 0, v4")
    a(f"buffer_load_dwordx2 v[{D+4}:{D+5}], v4, s[48:51], s4 offen {SC}")
    a("s_lshl_b32 s4, s3, 13")
    a("v_lshrrev_b32 v7, 4, v2")
    a(f"v_mul_u32_u24 v7, {CV_BS}, v7")
    a("v_and_b32 v8, 15, v2")
    a("v_lshl_add_u32 v7, v8, 4, v7")
    a("v_add_u32 v7, v7, v5")
    a("v_cmp_eq_u32 vcc, 0, v2")
    a("v_and_b32 v13, 63, v0")
    a("v_bfe_u32 v14, v0, 6, 2")
    a("v_lshrrev_b32 v3, 5, v13")
    a("v_and_b32 v4, 3, v13")
    a("v_add_u32 v4, 1, v4")
    a("v_and_b32 v4, 3, v4")
    a("v_bfe_u32 v6, v13, 2, 3")
    a(f"v_mul_u32_u24 v8, {CV_CS}, v4")
    a(f"v_mul_u32_u24 v9, {CV_BS}, v6")
    a("v_add3_u32 v8, v8, v9, v5")
    a("v_lshl_add_u32 v8, v3, 4, v8")
    a(f"v_mul_u32_u24 v9, {2*CV_BS}, v14")
    a("v_sub_u32 v8, v8, v9")
    a("v_and_b32 v4, 31, v13")
    a("v_lshlrev_b32 v9, 3, v4")
    a("v_sub_u32 v9, v5, v9")
    a("v_lshl_add_u32 v9, v3, 4, v9")
    a("v_lshlrev_b32 v10, 9, v14")
    a("v_sub_u32 v9, v9, v10")
    a(f"v_add_u32 v9, {CV_K + 2*(2156-240)}, v9")
    a("v_add_u32 v10, -2048, v9")
    A0 = 64; A1 = 80
    for i in range(32): a(f"v_mov_b32 v{A0+i}, 0")
    a("s_waitcnt vmcnt(0)")
    a(f"v_cndmask_b32_e64 v{D+4}, v{D+4}, 0, vcc")
    a(f"v_cndmask_b32_e64 v{D+5}, v{D+5}, 0, vcc")
    d = D; p = d + 4; ob = 7*CV_BS; E = 52
    a(f"ds_write_b128 v7, v[{d}:{d+3}] offset:{cvbase(3)+ob}")
    a(f"v_mov_b32 v{E}, v{p+1}"); a(f"v_mov_b32 v{E+1}, v{d}"); a(f"v_mov_b32 v{E+2}, v{d+1}"); a(f"v_mov_b32 v{E+3}, v{d+2}")
    a(f"ds_write_b128 v7, v[{E}:{E+3}] offset:{cvbase(1)+ob}")
    a(f"v_alignbit_b32 v{E+4}, v{d}, v{p+1}, 16")
    a(f"v_alignbit_b32 v{E+5}, v{d+1}, v{d}, 16")
    a(f"v_alignbit_b32 v{E+6}, v{d+2}, v{d+1}, 16")
    a(f"v_alignbit_b32 v{E+7}, v{d+3}, v{d+2}, 16")
    a(f"ds_write_b128 v7, v[{E+4}:{E+7}] offset:{cvbase(2)+ob}")
    a(f"v_alignbit_b32 v{E+8}, v{p+1}, v{p}, 16")
    a(f"v_mov_b32 v{E+9}, v{E+4}"); a(f"v_mov_b32 v{E+10}, v{E+5}"); a(f"v_mov_b32 v{E+11}, v{E+6}")
    a(f"ds_write_b128 v7, v[{E+8}:{E+11}] offset:{cvbase(0)+ob}")
    a("s_waitcnt lgkmcnt(0)")
    a("s_barrier")
    stamp(a, 5)
    NS = 3; NSTEP = 16
    def rdl(sp):
        S = 16 + 16*(sp % NS)
        z = 1008 - 16*sp
        ou = (z >> 7)*CV_BS + (z & 127)*2
        ok = 32*(15 - sp)
        return [f"ds_read_b128 v[{S}:{S+3}], v8 offset:{ou}",
                f"ds_read_b64 v[{S+8}:{S+9}], v9 offset:{ok}",
                f"ds_read_b64 v[{S+10}:{S+11}], v9 offset:{ok+8}",
                f"ds_read_b128 v[{S+4}:{S+7}], v8 offset:{ou+8*CV_BS}",
                f"ds_read_b64 v[{S+12}:{S+13}], v10 offset:{ok}",
                f"ds_read_b64 v[{S+14}:{S+15}], v10 offset:{ok+8}"]
    for ins in rdl(0) + rdl(1): a(ins)
    for sp in range(NSTEP if not NOCV else 1):
        a(f"s_waitcnt lgkmcnt({6 if sp < NSTEP-1 else 0})")
        S = 16 + 16*(sp % NS)
        R = rdl(sp + 2) if sp + 2 < NSTEP else []
        M = [f"v_mfma_f32_32x32x16_bf16 v[{A0}:{A0+15}], v[{S}:{S+3}], v[{S+8}:{S+11}], v[{A0}:{A0+15}]",
             f"v_mfma_f32_32x32x16_bf16 v[{A1}:{A1+15}], v[{S+4}:{S+7}], v[{S+8}:{S+11}], v[{A1}:{A1+15}]",
             f"v_mfma_f32_32x32x16_bf16 v[{A1}:{A1+15}], v[{S}:{S+3}], v[{S+12}:{S+15}], v[{A1}:{A1+15}]"]
        for i in range(3):
            a(M[i])
            for ins in R[2*i:2*i+2]: a(ins)
    stamp(a, 6)
    a("v_lshlrev_b32 v3, 4, v13")
    a("v_add_u32 v3, v3, v5")
    a("s_and_b32 s9, s7, 3")
    a("s_barrier")
    OWN = 40
    for p_ in range(4):
        lo = a.newlabel("cvo"); le = a.newlabel("cve")
        a(f"s_cmp_eq_u32 s9, {p_}")
        a(f"s_cbranch_scc1 {lo}")
        a(f"s_cmp_gt_u32 s9, {p_}")
        a("s_cselect_b32 s5, 1, 0")
        a("s_sub_u32 s5, s9, s5")
        a("s_lshl_b32 s5, s5, 11")
        a("v_add_u32 v4, s5, v3")
        for j in range(2):
            a(f"ds_write_b128 v4, v[{A0+8*p_+4*j}:{A0+8*p_+4*j+3}] offset:{CV_CS+p_*3*2048+j*1024}")
        a(f"s_branch {le}")
        a.label(lo)
        for k in range(8): a(f"v_mov_b32 v{OWN+k}, v{A0+8*p_+k}")
        a.label(le)
    a("s_mul_i32 s5, s9, 6144")
    a("v_add_u32 v4, s5, v3")
    a("v_lshrrev_b32 v3, 5, v13")
    a("v_lshrrev_b32 v6, 1, v14")
    a("v_and_b32 v7, 1, v14")
    a("v_lshl_add_u32 v6, v6, 3, v3")
    a("v_lshl_add_u32 v6, v7, 2, v6")
    a(f"v_mul_u32_u24 v7, {CV_BS}, v6")
    a("v_and_b32 v9, 31, v13")
    a("v_lshl_add_u32 v7, v9, 3, v7")
    a("v_add_u32 v7, v7, v5")
    a("v_lshlrev_b32 v8, 12, v12")
    a("v_lshl_add_u32 v8, v6, 8, v8")
    a("v_lshl_add_u32 v8, v9, 3, v8")
    a("v_mov_b32 v10, s47")
    a("v_lshlrev_b32 v11, 16, v10")
    a("v_and_b32 v10, 0xffff0000, v10")
    a("v_cmp_eq_u32 vcc, 0, v12")
    a("v_cndmask_b32 v10, v10, v11, vcc")
    a("s_waitcnt lgkmcnt(0)")
    a("s_barrier")
    R = 16
    for src in range(3):
        for j in range(2):
            a(f"ds_read_b128 v[{R+8*src+4*j}:{R+8*src+4*j+3}], v4 offset:{CV_CS+src*2048+j*1024}")
    X = 48
    for qq in range(2): a(f"ds_read_b64 v[{X+2*qq}:{X+2*qq+1}], v7 offset:{cvbase(3) + (7+2*qq)*CV_BS}")
    a("s_waitcnt lgkmcnt(4)")
    for k in range(8): a(f"v_add_f32 v{R+k}, v{R+k}, v{R+8+k}")
    a("s_waitcnt lgkmcnt(2)")
    for k in range(8): a(f"v_add_f32 v{R+16+k}, v{R+16+k}, v{OWN+k}")
    for k in range(8): a(f"v_add_f32 v{R+k}, v{R+k}, v{R+16+k}")
    a("s_waitcnt lgkmcnt(0)")
    T = 56
    for qq in range(2):
        for hh in range(2):
            y0 = R + 4*qq + 2*hh; x = X + 2*qq + hh
            a(f"v_cvt_pk_bf16_f32 v{T}, v{y0}, v{y0+1}")
            unpack(a, T+1, T+2, T)
            unpack(a, T+3, T+4, x)
            a(f"v_mul_f32 v{T+3}, v{T+3}, v10")
            a(f"v_mul_f32 v{T+4}, v{T+4}, v10")
            a(f"v_cvt_pk_bf16_f32 v{T}, v{T+3}, v{T+4}")
            unpack(a, T+3, T+4, T)
            a(f"v_add_f32 v{T+1}, v{T+1}, v{T+3}")
            a(f"v_add_f32 v{T+2}, v{T+2}, v{T+4}")
            a(f"v_cvt_pk_bf16_f32 v{64+2*qq+hh}, v{T+1}, v{T+2}")
        a(f"buffer_store_dwordx2 v[{64+2*qq}:{64+2*qq+1}], v8, s[56:59], s4 offen offset:{512*qq} {SC}")
    a("s_waitcnt vmcnt(0)")
    a("s_barrier")
    lab = a.newlabel("cvpub")
    a("s_cmp_eq_u32 s7, 0")
    a(f"s_cbranch_scc0 {lab}")
    a("s_lshl_b32 s6, s3, 2")
    a(f"s_add_u32 s6, s6, {F_C}")
    publish_rep(a, "s6", 3, 4, 1024)
    a.label(lab)

def build_kernel():
    a = Asm()
    load_ptrs(a)
    def common():
        a("s_waitcnt lgkmcnt(0)")
        srd(a, 80, 44, FL_SZ, WS_FL)
        a("s_load_dword s46, s[80:81], 0")
    a("s_cmp_lt_u32 s2, 224")
    a("s_cbranch_scc1 L_B")
    a("s_cmp_lt_u32 s2, 256")
    a("s_cbranch_scc1 L_LN")
    a("s_cmp_ge_u32 s2, 480")
    a("s_cbranch_scc1 L_end")
    common()
    a("s_sub_u32 s3, s2, 256")
    kern.PROF_V = 1; stamp(a, 0)
    body_g1(a)
    if not NOP2: body_g2(a)
    if kern.PROF: a("s_waitcnt vmcnt(0)")
    stamp(a, 9); prof_flush(a, 0, 4)
    if kern.PROF and WAVEPROF:
        lab = a.newlabel("wp")
        a("s_cmp_lt_u32 s2, 384")
        a(f"s_cbranch_scc0 {lab}")
        srd(a, 76, 44, 0x100000, kern.WS_PROF)
        a("s_sub_u32 s4, s2, 256")
        a("s_lshl_b32 s4, s4, 3")
        a("s_add_u32 s4, s4, s7")
        a("s_add_u32 s4, s4, 1024")
        a("s_lshl_b32 s4, s4, 7")
        a("v_and_b32 v2, 31, v0")
        a("v_lshlrev_b32 v2, 2, v2")
        a("s_mov_b64 exec, 0xffffffff")
        a(f"buffer_store_dword v{kern.PROF_V}, v2, s[76:79], s4 offen")
        a.label(lab)
    a.label("L_end")
    a("s_endpgm")
    a.label("L_B")
    common()
    a("s_mov_b32 s3, s2")
    kern.PROF_V = 123; stamp(a, 0)
    body_kg(a)
    kern.PROF_V = 1
    if kern.PROF: a("v_mov_b32 v1, v123")
    if not NOP2: body_cv(a)
    stamp(a, 7); prof_flush(a, 0, 4)
    a("s_endpgm")
    a.label("L_LN")
    common()
    a("s_sub_u32 s3, s2, 224")
    kern.PROF_V = 123; stamp(a, 0)
    body_ln(a)
    stamp(a, 3); prof_flush(a, 0, 4)
    a("s_endpgm")
    a.label("L_code_end")
    a("s_endpgm")
    return a

def build(path):
    a = build_kernel()
    t, d, n = kernel_text(NAME, a, 128)
    hdr = "; generated by dev/kern4.py (own generator)\n; @launch grid=(480,1,1) block=(512,1,1) lds=81920\n.amdgcn_target \"amdgcn-amd-amdhsa--gfx950\"\n"
    open(path, "w").write(hdr + t + d)
    print(f"{path}: {len(t.splitlines())} lines, {n} hazard pads")

BASE = dict(FSH=7, XSH=2, W2PUB="count", KGHI=2, W2CUT=40, WPOLL=4, HPUB=7, LDPRIO=0, G1PRIO=1, G2PRIO=0, G2RING=True, NEARLY=5, W2MODE=1, XSLEEP=16, KGLOW=1, EARLYG2=True, TLATE=1, NINIT=4, TOUCH1=True, EPRIO=3, HSLEEP=4)
if __name__ == "__main__":
    globals().update(BASE)
    CODEPF = True; build("v_p.s")
    TLBT = True; build("v_q.s")
```

```python
from asmgen import Asm, kernel_text
import kern
from kern import (srd, load_ptrs, f32bits, bf_round, unpack, interleave, kg_row, KG_H, KG_RS,
                  WS_H, WS_W2F, WS_XNT, WS_AOUT, SZ_H, SZ_WF, SZ_X, stamp, prof_flush)
from kern2 import VM
SC = "sc1"
NAME = "parallel_sum__ssm_conv_s4__dense_activation_relu__prompt_kernel"
WS_ST = 0x1300000
WS_FL = 0x1400000
F_E = 0; F_S = 0x1000; F_H = 0x2000; F_W = 0x9000; F_X = 0x10000; F_C = 0x18000; FL_SZ = 0x20000
SPIN = 0x80000
LFINE = False
TOUCH1 = True
NOP2 = False
EARLY = False
NOWM = False
G1PAT = [1, 2, 1, 2, 0]
OUTSC = ''
TLBT = False
CODEPF = False
RFOLD = False
EARLYG2 = True
KGLOW = 0
NOW2ST = False
W2SC = 'sc1'
XSLEEP = 16
NEARLY = 5
G2RING = True
WAVEPROF = False
LDPRIO = 0
G2PRIO = 0
FSH = 7
XSH = 7
W2PUB = 'count'
WPOLL = 0
HPUB = 0
KGHI = 2
W2CUT = 40
DIAGDELAY = 0
W2TOUCH = False
W2T_C = 8
W2MODE = 2
NOKG = False
NOCV = False
G1MAP = 47
WAVEH = False
HSLEEP = 8
TLATE = 0
NINIT = 4
G1PK = False
LNPK = False
EPRIO = 0
SKIPW = ''
G1PRIO = 1
CV_BS = 320; CV_CS = 7376; CV_K = 4*CV_CS; CV_CH = CV_K + 4352
def cvbase(rho): return ((rho + 1) & 3) * CV_CS

def so(soff):
    return f"{soff} offen" if isinstance(soff, str) else f"0 offen offset:{soff}"

def fix_tag(a):
    a("s_waitcnt lgkmcnt(0)")
    a("s_add_u32 s46, s46, 1")

def tlb_touch(a, t0, t1):
    srd(a, 72, 44, 0x1600000)
    a(f"v_and_b32 v{t0}, 63, v0")
    a(f"v_lshlrev_b32 v{t0}, 21, v{t0}")
    a(f"v_add_u32 v{t0}, 0x1ff80, v{t0}") if False else None
    a("s_mov_b64 s[86:87], exec")
    a("s_mov_b64 exec, 0x7ff")
    a(f"buffer_load_dword v{t1}, v{t0}, s[72:75], 0 offen {SC}")
    a("s_mov_b64 exec, s[86:87]")

def publish(a, soff, t0, t1):
    a(f"v_mov_b32 v{t0}, 0")
    a(f"v_mov_b32 v{t1}, s46")
    a("s_mov_b64 s[86:87], exec")
    a("s_mov_b64 exec, 1")
    a(f"buffer_store_dword v{t1}, v{t0}, s[80:83], {so(soff)} {SC}")
    a("s_mov_b64 exec, s[86:87]")

def publish_rep(a, soff, t0, t1, stride):
    a(f"v_and_b32 v{t0}, 7, v0")
    a(f"v_mul_u32_u24 v{t0}, {stride}, v{t0}")
    a(f"v_mov_b32 v{t1}, s46")
    a("s_mov_b64 s[86:87], exec")
    a("s_mov_b64 exec, 0xff")
    a(f"buffer_store_dword v{t1}, v{t0}, s[80:83], {soff} offen {SC}")
    a("s_mov_b64 exec, s[86:87]")

SLEEP = 8
def wg_wait(a, fn, wave=0):
    lab = a.newlabel("wgw")
    a(f"s_cmp_eq_u32 s7, {wave}")
    a(f"s_cbranch_scc0 {lab}")
    fn()
    a.label(lab)
    a("s_barrier")

def wait_flags(a, n, soff, t0, t1, wide=False, compact=False):
    lab = a.newlabel("wf"); ok = a.newlabel("wfok")
    a(f"v_and_b32 v{t0}, 63, v0")
    sh = (4 if wide else 2) if compact else (9 if wide else 7)
    a(f"v_lshlrev_b32 v{t0}, {sh}, v{t0}")
    a("s_mov_b64 s[86:87], exec")
    m = (1 << n) - 1
    a(f"s_mov_b32 exec_lo, {m & 0xffffffff:#x}")
    a(f"s_mov_b32 exec_hi, {m >> 32:#x}")
    a("s_mov_b32 s77, 0")
    a.label(lab)
    if compact and wide:
        a(f"buffer_load_dwordx4 v[{t1}:{t1+3}], v{t0}, s[80:83], {soff} offen {SC}")
    else:
        for k in range(4 if wide else 1):
            a(f"buffer_load_dword v{t1+k}, v{t0}, s[80:83], {soff} offen offset:{128*k} {SC}")
    a("s_waitcnt vmcnt(0)")
    a(f"v_cmp_ne_u32 vcc, s46, v{t1}")
    if wide:
        for i in range(1, 4):
            a(f"v_cmp_ne_u32 s[88:89], s46, v{t1+i}")
            a("s_or_b64 vcc, vcc, s[88:89]")
    a(f"s_cbranch_vccz {ok}")
    a("s_add_u32 s77, s77, 1")
    a(f"s_cmp_ge_u32 s77, {SPIN:#x}")
    a(f"s_cbranch_scc1 {ok}")
    a(f"s_sleep {SLEEP}")
    a(f"s_branch {lab}")
    a.label(ok)
    a("s_mov_b64 exec, s[86:87]")

G2_NPRE = 5; G2_GREG = 10240
def g2_setup(a):
    srd(a, 48, 44, SZ_WF, WS_W2F)
    srd(a, 52, 44, SZ_H, WS_H)
    a("s_lshr_b32 s14, s3, 3")
    a("s_mul_hi_u32 s5, s14, 0x24924925")
    a("s_mul_i32 s13, s5, 7")
    a("s_sub_u32 s13, s14, s13")
    a("s_and_b32 s12, s3, 7")
    a("s_lshl_b32 s12, s12, 2")
    a("s_add_u32 s12, s12, s5")
    a("v_and_b32 v2, 63, v0")
    a("v_lshlrev_b32 v3, 4, v2")
    a("s_mul_i32 s4, s7, 14")
    a("s_lshl_b32 s5, s13, 1")
    a("s_mul_i32 s5, s5, 112")
    a("s_add_u32 s5, s5, s4")
    a("s_lshl_b32 s68, s5, 10")
    a(f"s_add_u32 s69, s68, {112*1024}")
    a("s_lshl_b32 s5, s12, 1")
    a("s_mul_i32 s5, s5, 112")
    a("s_add_u32 s5, s5, s4")
    a("s_lshl_b32 s70, s5, 10")
    a(f"s_add_u32 s71, s70, {112*1024}")
    ACC = 64
    for i in range(64): a(f"v_mov_b32 v{ACC+i}, 0")
    a(f"s_mul_i32 s90, s7, {G2_GREG}")

def g2_dmaA(ks):
    return [[f"s_add_u32 m0, s90, {(ks % G2_NPRE)*2048 + t*1024}", f"buffer_load_dwordx4 v3, s[48:51], s{68+t} offen {SC} lds", f"s_add_u32 s{68+t}, s{68+t}, 1024"] for t in range(2)]

def body_g1(a):
    NB = 5; NCH = 14; WB = NB*8192
    WL = 4*8192
    a("s_lshr_b32 s14, s3, 3")
    if G1MAP == 47:
        a("s_mul_hi_u32 s5, s14, 0x24924925")
        a("s_mul_i32 s13, s5, 7")
        a("s_sub_u32 s13, s14, s13")
        a("s_and_b32 s6, s3, 1")
        a("s_mul_i32 s6, s6, 7")
        a("s_add_u32 s13, s13, s6")
        a("s_bfe_u32 s12, s3, 0x20001")
        a("s_lshl_b32 s12, s12, 2")
        a("s_add_u32 s12, s12, s5")
    else:
        a("s_mul_hi_u32 s5, s14, 0x12492493")
        a("s_mul_i32 s13, s5, 14")
        a("s_sub_u32 s13, s14, s13")
        a("s_and_b32 s12, s3, 7")
        a("s_lshl_b32 s12, s12, 1")
        a("s_add_u32 s12, s12, s5")
    a(f"s_mul_i32 s92, s12, {14 if FSH == 7 else 16}")
    a("s_add_u32 s92, s92, s13")
    a(f"s_lshl_b32 s92, s92, {FSH}")
    a(f"s_add_u32 s92, s92, {F_H}")
    a("s_mov_b32 s91, 0")
    a("v_lshrrev_b32 v2, 6, v0")
    a("v_and_b32 v3, 63, v0")
    a("v_readfirstlane_b32 s7, v2")
    a("s_cmp_lt_u32 s7, 4")
    a("s_cbranch_scc1 L_g1_compute")
    vm = VM()
    if LDPRIO: a(f"s_setprio {LDPRIO}")
    srd(a, 48, 16, SZ_X)
    srd(a, 52, 36, SZ_WF)
    a("s_sub_u32 s15, s7, 4")
    a("v_lshrrev_b32 v8, 2, v3")
    a("v_and_b32 v4, 3, v3")
    a("v_bfe_u32 v5, v3, 4, 2")
    a("v_xor_b32 v4, v4, v5")
    a("v_mul_u32_u24 v8, 896, v8")
    a("v_lshl_add_u32 v8, v4, 4, v8")
    a("v_lshrrev_b32 v9, 4, v3")
    a("v_and_b32 v5, 15, v3")
    a("v_lshlrev_b32 v6, 2, v9")
    a("v_xor_b32 v5, v5, v6")
    a("v_mul_u32_u24 v9, 3584, v9")
    a("v_lshl_add_u32 v9, v5, 4, v9")
    a("s_lshl_b32 s8, s12, 2")
    a("s_add_u32 s8, s8, s15")
    a("s_mul_i32 s8, s8, 28672")
    a("s_mul_i32 s9, s15, 28672")
    a("s_lshl_b32 s5, s13, 8")
    a("s_add_u32 s9, s9, s5")
    a("s_lshl_b32 s10, s15, 11")
    def dma(c):
        buf = (c % NB) * 8192
        a(f"s_add_u32 m0, s10, {buf}")
        a("s_add_u32 s5, s8, 14336")
        a(f"buffer_load_dwordx4 v8, s[48:51], s8 offen lds")
        a(f"s_add_u32 m0, s10, {buf+WB}")
        a("s_add_u32 s6, s9, 14336")
        a(f"buffer_load_dwordx4 v9, s[52:55], s9 offen lds")
        a(f"s_add_u32 m0, s10, {buf+1024}")
        a("s_add_u32 s8, s8, 64")
        a(f"buffer_load_dwordx4 v8, s[48:51], s5 offen lds")
        a(f"s_add_u32 m0, s10, {buf+WB+1024}")
        a("s_add_u32 s9, s9, 114688")
        a(f"buffer_load_dwordx4 v9, s[52:55], s6 offen lds")
        vm.issue(("c", c), 4)
    for c in range(NINIT): dma(c)
    def touches():
        a("v_add_u32 v10, -256, v0")
        a("s_mul_i32 s5, s14, 224")
        a("v_add_u32 v5, s5, v10")
        a("s_mov_b32 s6, 0x12492493")
        a("v_mul_hi_u32 v6, v5, s6")
        a("v_mul_u32_u24 v7, 14, v6")
        a("v_sub_u32 v7, v5, v7")
        a("v_mul_u32_u24 v6, 3584, v6")
        a("v_lshl_add_u32 v6, v7, 7, v6")
        a("s_and_b32 s6, s3, 1")
        a("s_mul_i32 s6, s6, 1792")
        a("v_cmp_gt_u32 vcc, 224, v10")
        a("v_mov_b32 v7, 0x7ffffff0")
        a("v_cndmask_b32 v6, v7, v6, vcc")
        a("buffer_load_dword v11, v6, s[52:55], s6 offen")
        a("s_bfe_u32 s5, s3, 0x20001")
        a("s_mul_i32 s5, s5, 458752")
        a("s_lshl_b32 s6, s14, 14")
        a("s_add_u32 s5, s5, s6")
        a("v_lshlrev_b32 v5, 7, v10")
        a("v_cmp_gt_u32 vcc, 128, v10")
        a("v_mov_b32 v7, 0x7ffffff0")
        a("v_cndmask_b32 v6, v7, v5, vcc")
        a("buffer_load_dword v12, v6, s[48:51], s5 offen")
        vm.issue("touch", 2)
    def touches214():
        a("v_add_u32 v10, -256, v0")
        a("s_mul_i32 s5, s14, 57344")
        a("v_lshlrev_b32 v5, 7, v10")
        a("buffer_load_dword v11, v5, s[52:55], s5 offen")
        a("s_add_u32 s5, s5, 32768")
        a("v_cmp_gt_u32 vcc, 192, v10")
        a("v_mov_b32 v7, 0x7ffffff0")
        a("v_cndmask_b32 v6, v7, v5, vcc")
        a("buffer_load_dword v12, v6, s[52:55], s5 offen")
        a("s_and_b32 s5, s3, 7")
        a("s_mul_i32 s5, s5, 229376")
        a("s_lshl_b32 s6, s14, 13")
        a("s_add_u32 s5, s5, s6")
        a("v_cmp_gt_u32 vcc, 64, v10")
        a("v_cndmask_b32 v6, v7, v5, vcc")
        a("buffer_load_dword v16, v6, s[48:51], s5 offen")
        vm.issue("touch", 3)
    if G1MAP != 47: touches = touches214
    if TOUCH1 and TLATE == 0: touches()
    srd(a, 60, 44, 16384, WS_ST)
    a("s_cmp_eq_u32 s15, 0")
    a("s_cselect_b32 s5, 0, 0x7ffffff0")
    a("v_and_b32 v13, 1, v3")
    a(f"v_lshlrev_b32 v13, {FSH}, v13")
    a("v_add_u32 v13, s5, v13")
    a("v_mov_b32 v15, s5")
    a(f"s_lshl_b32 s72, s12, {FSH+1}")
    a(f"s_add_u32 s72, s72, {F_S}")
    fix_tag(a)
    a(f"s_waitcnt vmcnt({vm.wait_for(('c', 0))})")
    a("s_barrier")
    for c in range(NINIT, 4): dma(c)
    if EARLY: dma(4)
    if TOUCH1 and TLATE == 1: touches()
    for c in range(NCH - 1):
        a(f"s_waitcnt vmcnt({vm.wait_for(('c', c + 1))})")
        a("s_barrier")
        if LFINE:
            kern.PROF_V = 20; stamp(a, 8 + c); kern.PROF_V = 1
        AH = 5 if EARLY else 4
        if c + AH < NCH: dma(c + AH)
        if c == 8:
            a(f"buffer_load_dword v14, v13, s[80:83], s72 offen {SC}")
            vm.issue("poll")
        if W2TOUCH and c == W2T_C:
            a("v_lshlrev_b32 v20, 4, v3")
            a("s_mov_b64 s[86:87], exec")
            a("s_mov_b32 exec_hi, 0xffffff")
            a(f"buffer_load_dwordx4 v[24:27], v20, s[80:83], 0 offen offset:{F_W} {SC}")
            a("s_mov_b64 exec, s[86:87]")
            vm.issue("pollw")
        if W2TOUCH and c == W2T_C + 2:
            a(f"s_waitcnt vmcnt({vm.wait_for('pollw')})")
            a("s_mov_b32 exec_hi, 0xffffff")
            a("v_cmp_ne_u32 vcc, s46, v24")
            for i in range(25, 28):
                a(f"v_cmp_ne_u32 s[88:89], s46, v{i}")
                a("s_or_b64 vcc, vcc, s[88:89]")
            a("s_mov_b64 exec, -1")
            a("s_cmp_eq_u64 vcc, 0")
            a("s_cselect_b32 s5, 0, 0x7ffffff0")
            srd(a, 56, 44, SZ_WF, WS_W2F)
            a("v_add_u32 v20, -256, v0")
            a("v_lshlrev_b32 v20, 7, v20")
            a("v_add_u32 v20, s5, v20")
            a("s_mul_i32 s5, s14, 57344")
            a(f"buffer_load_dword v21, v20, s[56:59], s5 offen {SC}")
            a("s_add_u32 s5, s5, 32768")
            a("v_cmp_gt_u32 vcc, 192, v10")
            a("v_mov_b32 v22, 0x7ffffff0")
            a("v_cndmask_b32 v20, v22, v20, vcc")
            a(f"buffer_load_dword v22, v20, s[56:59], s5 offen {SC}")
            vm.issue("w2t", 2)
        if c == 11:
            a(f"s_waitcnt vmcnt({vm.wait_for('poll')})")
            labs = a.newlabel("g1sk"); lab = a.newlabel("g1sp")
            a("s_cmp_eq_u32 s15, 0")
            a(f"s_cbranch_scc0 {labs}")
            a("s_mov_b32 s77, 0")
            a.label(lab)
            a("v_cmp_ne_u32 vcc, s46, v14")
            a(f"s_cbranch_vccz {labs}")
            a("s_add_u32 s77, s77, 1")
            a(f"s_cmp_ge_u32 s77, {SPIN:#x}")
            a(f"s_cbranch_scc1 {labs}")
            a("s_sleep 8")
            a(f"buffer_load_dword v14, v13, s[80:83], s72 offen {SC}")
            a("s_waitcnt vmcnt(0)")
            a(f"s_branch {lab}")
            a.label(labs)
            a("s_lshl_b32 s5, s12, 10")
            a("v_lshlrev_b32 v14, 4, v3")
            a("v_add_u32 v14, v15, v14")
            a(f"buffer_load_dwordx4 v[16:19], v14, s[60:63], s5 offen {SC}")
            vm.issue("stats")
    lab_end = a.newlabel("g1ldend")
    a("s_cmp_eq_u32 s15, 0")
    a(f"s_cbranch_scc0 {lab_end}")
    a("s_waitcnt vmcnt(0)")
    a(f"ds_write_b128 v14, v[16:19] offset:{WL+1024}")
    a("s_waitcnt lgkmcnt(0)")
    a.label(lab_end)
    a("s_waitcnt vmcnt(0)")
    if LDPRIO: a("s_setprio 0")
    a("s_barrier")
    if EARLYG2:
        g2_setup(a)
        a("s_mov_b32 s91, 1")
        le = a.newlabel("g2early")
        a("v_lshlrev_b32 v4, 4, v2")
        a(f"s_mov_b32 s9, {F_W}")
        a("s_mov_b32 exec_hi, 0xffffff")
        a(f"buffer_load_dwordx4 v[8:11], v4, s[80:83], s9 offen {SC}")
        a("s_waitcnt vmcnt(0)")
        a("v_cmp_ne_u32 vcc, s46, v8")
        for i in range(9, 12):
            a(f"v_cmp_ne_u32 s[88:89], s46, v{i}")
            a("s_or_b64 vcc, vcc, s[88:89]")
        a("s_mov_b64 exec, -1")
        a(f"s_cbranch_vccnz {le}")
        for ks in range(G2_NPRE):
            for g in g2_dmaA(ks):
                for ins in g: a(ins)
        a("s_waitcnt vmcnt(0)")
        a("s_mov_b32 s91, 2")
        a.label(le)
    a("s_branch L_g1_done")
    a.label("L_g1_compute")
    if G1PRIO: a(f"s_setprio {G1PRIO}")
    srd(a, 56, 44, SZ_H, WS_H)
    a("s_and_b32 s15, s7, 1")
    a("s_lshr_b32 s11, s7, 1")
    a("v_and_b32 v4, 31, v3")
    a("v_lshrrev_b32 v6, 5, v3")
    a("v_bfe_u32 v7, v3, 2, 2")
    a("v_xor_b32 v7, v7, v6")
    a("v_lshlrev_b32 v4, 6, v4")
    a("v_lshl_add_u32 v4, v7, 4, v4")
    a("s_lshl_b32 s5, s11, 12")
    a("v_add_u32 v4, s5, v4")
    a("v_xor_b32 v5, 32, v4")
    a("v_bfe_u32 v7, v3, 2, 2")
    a("v_lshl_add_u32 v8, v6, 3, v7")
    a("v_lshlrev_b32 v8, 8, v8")
    a("v_bfe_u32 v9, v3, 4, 1")
    a("v_lshl_add_u32 v8, v9, 5, v8")
    a("v_and_b32 v9, 3, v3")
    a("v_lshl_add_u32 v8, v9, 3, v8")
    a(f"v_add_u32 v8, {WB}, v8")
    a("s_lshl_b32 s5, s15, 1")
    a("s_add_u32 s68, s5, s11")
    a("s_xor_b32 s69, s68, 1")
    a("v_xor_b32 v9, s69, v7")
    a("v_xor_b32 v6, s68, v7")
    a("v_lshl_add_u32 v7, v9, 6, v8")
    a("v_lshl_add_u32 v6, v6, 6, v8")
    SEL = 8; WACC = 12; ACC = 64; SETS = [16, 32, 48]
    a("v_and_b32 v2, 31, v3")
    a("v_cmp_eq_u32 vcc, 0, v2")
    a("v_cmp_eq_u32 s[70:71], 17, v2")
    a("s_or_b64 vcc, vcc, s[70:71]")
    a("v_mov_b32 v2, 0x3f803f80")
    a(f"v_cndmask_b32 v{SEL}, 0, v2, vcc")
    for i in range(1, 4): a(f"v_mov_b32 v{SEL+i}, v{SEL}")
    for i in range(4): a(f"v_mov_b32 v{WACC+i}, 0")
    for i in range(64): a(f"v_mov_b32 v{ACC+i}, 0")
    def rlist(c, st, S):
        o = (c % NB) * 8192
        vb = 4 if st == 0 else 5
        return [f"ds_read_b64_tr_b16 v[{S}:{S+1}], v6 offset:{o+st*4096}",
                f"ds_read_b64_tr_b16 v[{S+2}:{S+3}], v6 offset:{o+st*4096+1024}",
                f"ds_read_b128 v[{S+8}:{S+11}], v{vb} offset:{o}",
                f"ds_read_b128 v[{S+12}:{S+15}], v{vb} offset:{o+2048}",
                f"ds_read_b64_tr_b16 v[{S+4}:{S+5}], v7 offset:{o+st*4096}",
                f"ds_read_b64_tr_b16 v[{S+6}:{S+7}], v7 offset:{o+st*4096+1024}"]
    def mlist(S):
        m = []
        for aa in range(2):
            for b in range(2):
                d = ACC + 16*(2*aa+b)
                m.append(f"v_mfma_f32_32x32x16_bf16 v[{d}:{d+15}], v[{S+4*aa}:{S+4*aa+3}], v[{S+8+4*b}:{S+8+4*b+3}], v[{d}:{d+15}]")
        if not NOWM: m.append(f"v_mfma_f32_16x16x32_bf16 v[{WACC}:{WACC+3}], v[{SEL}:{SEL+3}], v[{S}:{S+3}], v[{WACC}:{WACC+3}]")
        return m
    if TLBT:
        lt = a.newlabel("tlb")
        a("s_cmp_eq_u32 s7, 0")
        a(f"s_cbranch_scc0 {lt}")
        tlb_touch(a, 2, 2)
        srd(a, 72, 40, SZ_X)
        a("v_mov_b32 v3, 0")
        a("buffer_load_dword v3, v3, s[72:75], 0 offen")
        a.label(lt)
    fix_tag(a)
    a("s_barrier")
    stamp(a, 1)
    for ins in rlist(0, 0, SETS[0]) + rlist(0, 1, SETS[1]): a(ins)
    for c in range(NCH):
        if EARLY and c < NCH - 1: a("s_waitcnt lgkmcnt(0)")
        if c < NCH - 1: a("s_barrier")
        nxt = c + 1 < NCH
        for st in range(2):
            s_ = 2*c + st
            a(f"s_waitcnt lgkmcnt({0 if s_ == 2*NCH - 1 else 6})")
            R = rlist(c + 1, st, SETS[(s_ + 2) % 3]) if nxt else []
            M = mlist(SETS[s_ % 3])
            pat = G1PAT; ri = 0
            for i, m in enumerate(M):
                a(m)
                for _ in range(pat[i]):
                    if ri < len(R): a(R[ri]); ri += 1
    stamp(a, 2)
    if TLBT: a("s_waitcnt vmcnt(0)")
    if EPRIO: a(f"s_setprio {EPRIO}")
    a("v_and_b32 v3, 63, v0")
    a("s_lshl_b32 s5, s68, 7")
    a("v_and_b32 v2, 15, v3")
    a("v_lshlrev_b32 v2, 2, v2")
    a("v_add_u32 v2, s5, v2")
    a("s_mov_b64 s[70:71], exec")
    a("s_mov_b64 exec, 0xffff")
    a(f"ds_write_b32 v2, v{WACC} offset:{WL}")
    a(f"ds_write_b32 v2, v{WACC+1} offset:{WL+64}")
    a("s_mov_b64 exec, s[70:71]")
    a("s_waitcnt lgkmcnt(0)")
    a("s_barrier")
    WR = 16; ST = 48
    a("v_lshrrev_b32 v2, 5, v3")
    a("v_lshlrev_b32 v2, 4, v2")
    a("s_lshl_b32 s5, s68, 7")
    a("v_add_u32 v4, s5, v2")
    a("s_lshl_b32 s5, s69, 7")
    a("v_add_u32 v5, s5, v2")
    a("v_and_b32 v2, 31, v3")
    a("v_lshlrev_b32 v2, 3, v2")
    a("s_lshl_b32 s5, s11, 9")
    a("v_add_u32 v2, s5, v2")
    a(f"ds_read_b64 v[{ST}:{ST+1}], v2 offset:{WL+1024}")
    a(f"ds_read_b64 v[{ST+2}:{ST+3}], v2 offset:{WL+1024+256}")
    for aa in range(2):
        for q in range(4):
            a(f"ds_read_b128 v[{WR+16*aa+4*q}:{WR+16*aa+4*q+3}], v{4+aa} offset:{WL+32*q}")
    a("s_lshl_b32 s4, s12, 2")
    a("s_lshl_b32 s5, s11, 1")
    a("s_add_u32 s4, s4, s5")
    a("s_mul_i32 s4, s4, 112")
    a("s_lshl_b32 s5, s13, 3")
    a("s_add_u32 s4, s4, s5")
    a("s_lshl_b32 s5, s68, 1")
    a("s_add_u32 s74, s4, s5")
    a("s_lshl_b32 s74, s74, 10")
    a("s_lshl_b32 s5, s69, 1")
    a("s_add_u32 s75, s4, s5")
    a("s_lshl_b32 s75, s75, 10")
    a("v_lshlrev_b32 v3, 4, v3")
    a("s_waitcnt lgkmcnt(8)")
    if not RFOLD:
        a(f"v_mul_f32 v{ST}, v{ST}, v{ST+1}")
        a(f"v_mul_f32 v{ST+2}, v{ST+2}, v{ST+3}")
    a("s_waitcnt lgkmcnt(0)")
    TT = 52
    for aa in range(2):
        for b in range(2):
            d = ACC + 16*(2*aa+b); w = WR + 16*aa
            if G1PK:
                for k in range(8):
                    t = TT + 2*(k % 4)
                    a(f"v_pk_mul_f32 v[{t}:{t+1}], v[{w+2*k}:{w+2*k+1}], v[{ST+2*b}:{ST+2*b+1}] op_sel_hi:[1,0]")
                    a(f"v_pk_fma_f32 v[{d+2*k}:{d+2*k+1}], v[{d+2*k}:{d+2*k+1}], v[{ST+2*b}:{ST+2*b+1}], v[{t}:{t+1}] op_sel:[0,1,0] op_sel_hi:[1,1,1] neg_lo:[0,0,1] neg_hi:[0,0,1]")
            elif RFOLD:
                for k in range(16):
                    a(f"v_fma_f32 v{d+k}, -v{ST+2*b}, v{w+k}, v{d+k}")
            else:
                for k in range(16):
                    t = TT + (k % 8)
                    a(f"v_mul_f32 v{t}, v{w+k}, v{ST+2*b}")
                    a(f"v_fma_f32 v{d+k}, v{d+k}, v{ST+2*b+1}, -v{t}")
            for k in range(8):
                if G1PK:
                    a(f"v_cvt_pk_bf16_f32 v{d+k}, v{d+2*k}, v{d+2*k+1}")
                    a(f"v_pk_max_i16 v{d+k}, v{d+k}, 0")
                else:
                    a(f"v_max_f32 v{d+2*k}, 0, v{d+2*k}")
                    a(f"v_max_f32 v{d+2*k+1}, 0, v{d+2*k+1}")
                    a(f"v_cvt_pk_bf16_f32 v{d+k}, v{d+2*k}, v{d+2*k+1}")
            a(f"s_add_u32 s5, s{74+aa}, {b*112*1024}")
            a(f"buffer_store_dwordx4 v[{d}:{d+3}], v3, s[56:59], s5 offen {SC}")
            a(f"buffer_store_dwordx4 v[{d+4}:{d+7}], v3, s[56:59], s5 offen offset:1024 {SC}")
    stamp(a, 5)
    a("s_setprio 0")
    a("s_waitcnt vmcnt(0)")
    a.label("L_g1_done")
    a("s_barrier")
    lab = a.newlabel("g1pub")
    a(f"s_cmp_eq_u32 s7, {HPUB}")
    a(f"s_cbranch_scc0 {lab}")
    publish(a, "s92", 4, 5)
    a.label(lab)
    stamp(a, 3)

def body_g2(a):
    PF = 3; NK = 14; NPRE = 5; GREG = 10240
    vm = VM()
    if G2PRIO: a(f"s_setprio {G2PRIO}")
    lab_su = a.newlabel("g2su")
    a("s_cmp_eq_u32 s91, 0")
    a(f"s_cbranch_scc0 {lab_su}")
    g2_setup(a)
    a.label(lab_su)
    ACC = 64; FR = 16
    def off(ks): return (ks % 4) * 1024
    def inc(ks, regs):
        return [f"s_add_u32 s{r}, s{r}, 4096" for r in regs] if ks % 4 == 3 else []
    def lA(ks):
        S = FR + 16*(ks % PF)
        return [[f"buffer_load_dwordx4 v[{S}:{S+3}], v3, s[48:51], s68 offen offset:{off(ks)} {SC}"],
                [f"buffer_load_dwordx4 v[{S+4}:{S+7}], v3, s[48:51], s69 offen offset:{off(ks)} {SC}"] + inc(ks, (68, 69))]
    def lB(ks):
        S = FR + 16*(ks % PF)
        return [[f"buffer_load_dwordx4 v[{S+8}:{S+11}], v3, s[52:55], s70 offen offset:{off(ks)} {SC}"],
                [f"buffer_load_dwordx4 v[{S+12}:{S+15}], v3, s[52:55], s71 offen offset:{off(ks)} {SC}"] + inc(ks, (70, 71))]
    for _ in range(DIAGDELAY): a("s_sleep 32")
    stamp(a, 20)
    a(f"s_mov_b32 s9, {F_W}")
    def fw_poll():
        lk = a.newlabel("fwk")
        a("s_cmp_eq_u32 s91, 2")
        a(f"s_cbranch_scc1 {lk}")
        wait_flags(a, 56, "s9", 4, 8, wide=True, compact=True)
        a.label(lk)
    wg_wait(a, fw_poll, wave=WPOLL)
    stamp(a, 17)
    if kern.PROF: a(f"v_writelane_b32 v{kern.PROF_V}, s77, 19")
    a("s_lshr_b32 s9, s12, 1")
    a(f"s_mul_i32 s9, s9, {14*128 if FSH == 7 else 64}")
    a(f"s_add_u32 s9, s9, {F_H}")
    a("s_mul_i32 s4, s7, 7")
    a("s_lshr_b32 s4, s4, 2")
    a("s_mul_i32 s6, s7, 224")
    a("s_add_u32 s6, s6, 223")
    a("s_lshr_b32 s6, s6, 7")
    a("v_add_u32 v4, s4, v2")
    a("v_min_u32 v4, s6, v4")
    a(f"v_lshlrev_b32 v4, {FSH}, v4")
    a("s_mov_b64 s[86:87], exec")
    a("s_mov_b64 exec, 7")
    a(f"buffer_load_dword v8, v4, s[80:83], s9 offen {SC}")
    a("s_mov_b64 exec, s[86:87]")
    dmaA = g2_dmaA
    assert G2RING and NEARLY == 5
    lp1 = a.newlabel("g2p1"); lp2 = a.newlabel("g2p2")
    a("s_cmp_eq_u32 s91, 2")
    a(f"s_cbranch_scc1 {lp1}")
    for ks in range(NPRE):
        for g in dmaA(ks):
            for ins in g: a(ins)
        vm.issue(("a", ks), 2)
    a(f"s_waitcnt vmcnt({2*NPRE})")
    a(f"s_branch {lp2}")
    a.label(lp1)
    a("s_waitcnt vmcnt(0)")
    a.label(lp2)
    a("v_add_u32 v14, s90, v3")
    stamp(a, 18)
    lab = a.newlabel("wh"); ok = a.newlabel("whok")
    a("s_mov_b64 exec, 7")
    a("s_mov_b32 s77, 0")
    a.label(lab)
    a("v_cmp_ne_u32 vcc, s46, v8")
    a(f"s_cbranch_vccz {ok}")
    a("s_add_u32 s77, s77, 1")
    a(f"s_cmp_ge_u32 s77, {SPIN:#x}")
    a(f"s_cbranch_scc1 {ok}")
    a(f"s_sleep {HSLEEP}")
    a(f"buffer_load_dword v8, v4, s[80:83], s9 offen {SC}")
    a(f"s_waitcnt vmcnt(0)")
    a(f"s_branch {lab}")
    a.label(ok)
    a("s_mov_b64 exec, s[86:87]")
    stamp(a, 6)
    def lAl(ks):
        S = FR + 16*(ks % PF)
        return [[f"ds_read_b128 v[{S}:{S+3}], v14 offset:{ks*2048}"], [f"ds_read_b128 v[{S+4}:{S+7}], v14 offset:{ks*2048+1024}"]]
    AS = [16, 24]; BS = [32, 40, 48, 56]; PB = 4
    def rA(ks):
        S = AS[ks % 2]; o = (ks % NPRE)*2048
        return [f"ds_read_b128 v[{S}:{S+3}], v14 offset:{o}", f"ds_read_b128 v[{S+4}:{S+7}], v14 offset:{o+1024}"]
    def rB(ks):
        S = BS[ks % PB]
        return [[f"buffer_load_dwordx4 v[{S}:{S+3}], v3, s[52:55], s70 offen offset:{off(ks)} {SC}"],
                [f"buffer_load_dwordx4 v[{S+4}:{S+7}], v3, s[52:55], s71 offen offset:{off(ks)} {SC}"] + inc(ks, (70, 71))]
    if G2RING:
        for ks in range(PB):
            for g in rB(ks):
                for ins in g: a(ins)
            vm.issue(("k", ks), 2)
        for ks in range(NEARLY, NPRE):
            for g in dmaA(ks):
                for ins in g: a(ins)
            vm.issue(("a", ks), 2)
        a(f"s_waitcnt vmcnt({vm.wait_for(('a', 0))})")
        for ins in rA(0): a(ins)
    else:
        for ks in range(PF):
            for g in lB(ks):
                for ins in g: a(ins)
            vm.issue(("k", ks), 2)
        a(f"s_waitcnt vmcnt({vm.wait_for('pre')})")
        for ks in range(PF):
            for g in lAl(ks):
                for ins in g: a(ins)
    srd(a, 56, 44, SZ_X, WS_AOUT)
    srd(a, 60, 16, SZ_X)
    srd(a, 64, 40, SZ_X)
    a("s_lshr_b32 s8, s7, 2")
    a("s_bfe_u32 s9, s7, 0x10001")
    a("s_and_b32 s15, s7, 1")
    a("s_lshl_b32 s4, s12, 6")
    a("s_lshl_b32 s5, s9, 5")
    a("s_add_u32 s4, s4, s5")
    a("s_lshl_b32 s5, s13, 6")
    a("s_lshl_b32 s6, s8, 5")
    a("s_add_u32 s5, s5, s6")
    a("s_lshl_b32 s6, s15, 4")
    a("s_add_u32 s5, s5, s6")
    a("s_mul_i32 s10, s4, 896")
    a("s_lshl_b32 s6, s5, 1")
    a("s_add_u32 s10, s10, s6")
    a("s_lshl_b32 s11, s5, 12")
    a("s_lshl_b32 s6, s4, 1")
    a("s_add_u32 s11, s11, s6")
    a("v_and_b32 v4, 31, v2")
    a("v_lshrrev_b32 v5, 5, v2")
    a("v_mul_u32_u24 v6, 896, v4")
    a("v_lshl_add_u32 v6, v5, 3, v6")
    a("v_lshlrev_b32 v7, 14, v5")
    a("v_lshl_add_u32 v7, v4, 1, v7")
    XR = 8
    for q in range(2):
        a(f"buffer_load_dwordx2 v[{XR+2*q}:{XR+2*q+1}], v6, s[60:63], s10 offen offset:{16*q}")
    vm.issue("x", 2)
    if RFOLD:
        srd(a, 72, 44, 16384, WS_ST)
        a("s_lshl_b32 s6, s4, 3")
        a("v_lshlrev_b32 v5, 3, v4")
        a(f"buffer_load_dword v5, v5, s[72:75], s6 offen offset:4 {SC}")
        vm.issue("r")
    for ks in range(NK if G2RING else 0):
        n = vm.wait_for(("k", ks))
        if ks + 1 < NK: n = min(n, vm.wait_for(("a", ks + 1)))
        a(f"s_waitcnt vmcnt({n}) lgkmcnt(0)")
        if ks == 0: stamp(a, 7)
        SA = AS[ks % 2]; SB = BS[ks % PB]
        ms = []
        for aa in range(2):
            for b in range(2):
                d = ACC + 16*(2*aa+b)
                ms.append(f"v_mfma_f32_32x32x16_bf16 v[{d}:{d+15}], v[{SA+4*aa}:{SA+4*aa+3}], v[{SB+4*b}:{SB+4*b+3}], v[{d}:{d+15}]")
        RA = rA(ks + 1) if ks + 1 < NK else []
        RB = rB(ks + PB) if ks + PB < NK else None
        DA = dmaA(ks + NPRE) if ks + NPRE < NK else None
        a(ms[0])
        if RA: a(RA[0])
        a(ms[1])
        if RA: a(RA[1])
        a(ms[2])
        if RB:
            for ins in RB[0]: a(ins)
            vm.issue(("k", ks + PB))
        if DA:
            for ins in DA[0]: a(ins)
            vm.issue(("a", ks + NPRE))
        a(ms[3])
        if RB:
            for ins in RB[1]: a(ins)
            vm.issue(("k", ks + PB))
        if DA:
            for ins in DA[1]: a(ins)
            vm.issue(("a", ks + NPRE))
    for ks in range(0 if G2RING else NK):
        w = f"s_waitcnt vmcnt({vm.wait_for(('k', ks))})"
        if ks < NPRE: w += f" lgkmcnt({2*max(0, min(ks + PF - 1, NPRE - 1) - ks)})"
        a(w)
        if ks == 0: stamp(a, 7)
        S = FR + 16*(ks % PF)
        nx = ks + PF < NK
        loc = ks + PF < NPRE
        LA = (lAl(ks + PF) if loc else lA(ks + PF)) if nx else None; LB = lB(ks + PF) if nx else None
        ms = []
        for aa in range(2):
            for b in range(2):
                d = ACC + 16*(2*aa+b)
                ms.append(f"v_mfma_f32_32x32x16_bf16 v[{d}:{d+15}], v[{S+4*aa}:{S+4*aa+3}], v[{S+8+4*b}:{S+8+4*b+3}], v[{d}:{d+15}]")
        a(ms[0]); a(ms[1])
        if nx:
            for ins in LA[0]: a(ins)
        a(ms[2])
        if nx:
            for ins in LB[0]: a(ins)
        a(ms[3])
        if nx:
            for ins in LA[1] + LB[1]: a(ins)
            vm.issue(("k", ks + PF), 2 if loc else 4)
    stamp(a, 8)
    a("s_lshl_b32 s5, s13, 7")
    a("s_and_b32 s6, s2, 7")
    a("s_lshl_b32 s6, s6, 10")
    a("s_add_u32 s5, s5, s6")
    a(f"s_add_u32 s5, s5, {F_C}")
    labc = a.newlabel("g2c")
    a("s_cmp_eq_u32 s7, 0")
    a(f"s_cbranch_scc0 {labc}")
    wait_flags(a, 32, "s5", 12, 13, compact=True)
    a.label(labc)
    AR = 16
    a(f"s_mul_i32 s4, s7, {GREG}")
    a("v_add_u32 v12, s4, v3")
    l1 = a.newlabel("g2r"); l2 = a.newlabel("g2re")
    a("s_cmp_eq_u32 s8, 0")
    a(f"s_cbranch_scc0 {l1}")
    for i in range(8): a(f"ds_write_b128 v12, v[{ACC+32+4*i}:{ACC+32+4*i+3}] offset:{1024*i}")
    a(f"s_branch {l2}")
    a.label(l1)
    for i in range(8): a(f"ds_write_b128 v12, v[{ACC+4*i}:{ACC+4*i+3}] offset:{1024*i}")
    for i in range(32): a(f"v_mov_b32 v{ACC+i}, v{ACC+32+i}")
    a.label(l2)
    a("s_xor_b32 s4, s7, 4")
    a(f"s_mul_i32 s4, s4, {GREG}")
    a("v_add_u32 v12, s4, v3")
    a("s_waitcnt lgkmcnt(0)")
    stamp(a, 10)
    a("s_barrier")
    stamp(a, 11)
    for q in range(2):
        for r in range(4):
            a(f"s_add_u32 s6, s11, {(8*q+r)*4096}")
            a(f"buffer_load_ushort v{AR+4*q+r}, v7, s[56:59], s6 offen {SC}")
    R = ACC + 32
    for i in range(8): a(f"ds_read_b128 v[{R+4*i}:{R+4*i+3}], v12 offset:{1024*i}")
    for i in range(8):
        a(f"s_waitcnt lgkmcnt({7-i})")
        for k in range(4): a(f"v_add_f32 v{ACC+4*i+k}, v{ACC+4*i+k}, v{R+4*i+k}")
    a("s_barrier")
    stamp(a, 12)
    a("s_and_b32 s4, s7, 3")
    a("s_lshl_b32 s5, s8, 15")
    a("s_lshl_b32 s6, s4, 11")
    a("s_add_u32 s6, s6, s5")
    a("v_add_u32 v12, s6, v3")
    OWN = 40
    for p in range(4):
        lo = a.newlabel("g2o"); le = a.newlabel("g2e")
        a(f"s_cmp_eq_u32 s4, {p}")
        a(f"s_cbranch_scc1 {lo}")
        for j in range(2):
            a(f"ds_write_b128 v12, v[{ACC+8*p+4*j}:{ACC+8*p+4*j+3}] offset:{p*8192+j*1024}")
        a(f"s_branch {le}")
        a.label(lo)
        for k in range(8): a(f"v_mov_b32 v{OWN+k}, v{ACC+8*p+k}")
        a.label(le)
    a("s_lshl_b32 s6, s4, 13")
    a("s_add_u32 s6, s6, s5")
    a("v_add_u32 v12, s6, v3")
    a("s_waitcnt lgkmcnt(0)")
    a("s_barrier")
    stamp(a, 13)
    for j in range(3):
        a(f"s_add_u32 s6, s4, {1+j}")
        a("s_and_b32 s6, s6, 3")
        a("s_lshl_b32 s6, s6, 11")
        a(f"v_add_u32 v{13+j}, s6, v12")
        for jj in range(2):
            a(f"ds_read_b128 v[{R+8*j+4*jj}:{R+8*j+4*jj+3}], v{13+j} offset:{jj*1024}")
    a("s_waitcnt lgkmcnt(2)")
    for k in range(8): a(f"v_add_f32 v{R+k}, v{R+k}, v{R+8+k}")
    a("s_waitcnt lgkmcnt(0)")
    for k in range(8): a(f"v_add_f32 v{R+16+k}, v{R+16+k}, v{OWN+k}")
    for k in range(8): a(f"v_add_f32 v{R+k}, v{R+k}, v{R+16+k}")
    stamp(a, 14)
    a("s_waitcnt vmcnt(0)")
    stamp(a, 15)
    T = 24
    for q in range(2):
        for hh in range(2):
            f0 = R + 4*q + 2*hh; x = XR + 2*q + hh; ao = AR + 4*q + 2*hh
            if RFOLD:
                a(f"v_mul_f32 v{f0}, v{f0}, v5")
                a(f"v_mul_f32 v{f0+1}, v{f0+1}, v5")
            a(f"v_cvt_pk_bf16_f32 v{T}, v{f0}, v{f0+1}")
            unpack(a, T+1, T+2, T)
            unpack(a, T+3, T+4, x)
            a(f"v_lshlrev_b32 v{ao}, 16, v{ao}")
            a(f"v_lshlrev_b32 v{ao+1}, 16, v{ao+1}")
            a(f"v_add_f32 v{T+3}, v{T+3}, v{ao}")
            a(f"v_add_f32 v{T+4}, v{T+4}, v{ao+1}")
            a(f"v_cvt_pk_bf16_f32 v{T}, v{T+3}, v{T+4}")
            unpack(a, T+3, T+4, T)
            a(f"v_add_f32 v{T+1}, v{T+1}, v{T+3}")
            a(f"v_add_f32 v{T+2}, v{T+2}, v{T+4}")
            a(f"v_cvt_pk_bf16_f32 v{32+2*q+hh}, v{T+1}, v{T+2}")
        a(f"buffer_store_dwordx2 v[{32+2*q}:{32+2*q+1}], v6, s[64:67], s10 offen offset:{16*q} {OUTSC}")
    stamp(a, 16)
    lab = a.newlabel("g2ep")
    a("s_or_b32 s4, s3, s7")
    a("s_cmp_eq_u32 s4, 0")
    a(f"s_cbranch_scc0 {lab}")
    if FSH == 7:
        a(f"s_mov_b32 s9, {F_H}")
        wait_flags(a, 56, "s9", 4, 8, wide=True)
    else:
        for rb in range(16):
            a(f"s_mov_b32 s9, {F_H + 64*rb}")
            wait_flags(a, 14, "s9", 4, 8, compact=True)
    publish(a, F_E, 4, 5)
    a.label(lab)

def body_ln(a):
    X = 8; F = 40
    srd(a, 48, 16, SZ_X)
    srd(a, 56, 44, SZ_X, WS_XNT)
    srd(a, 60, 44, 16384, WS_ST)
    a("v_lshrrev_b32 v1 , 3, v0".replace("v1 ", "v104"))
    a("v_and_b32 v2, 7, v0")
    a("s_mul_i32 s4, s3, 57344")
    a("v_mul_u32_u24 v3, 896, v104")
    a("v_lshl_add_u32 v3, v2, 4, v3")
    for j in range(7):
        a(f"buffer_load_dwordx4 v[{X+4*j}:{X+4*j+3}], v3, s[48:51], s4 offen offset:{128*j}")
    if CODEPF:
        a("s_getpc_b64 s[4:5]")
        a.label("L_pc")
        a(f"s_sub_u32 s4, s4, L_pc-{NAME}")
        a("s_subb_u32 s5, s5, 0")
        a("v_lshlrev_b32 v110, 7, v0")
        a(f"v_cmp_gt_u32 vcc, L_code_end-{NAME}, v110")
        a("s_and_saveexec_b64 s[10:11], vcc")
        lskip = a.newlabel("cpf")
        a(f"s_cbranch_execz {lskip}")
        a("v_mov_b32 v113, s5")
        a("v_add_co_u32 v112, vcc, s4, v110")
        a("v_addc_co_u32 v113, vcc, 0, v113, vcc")
        a("global_load_dword v111, v[112:113], off")
        a.label(lskip)
        a("s_mov_b64 exec, s[10:11]")
        a("s_mul_i32 s4, s3, 57344")
    a("v_mul_u32_u24 v5, 912, v104")
    a("v_lshl_add_u32 v5, v2, 4, v5")
    fix_tag(a)
    for j in range(7):
        a(f"s_waitcnt vmcnt({6-j})")
        if j == 6: stamp(a, 1)
        for k in range(4):
            unpack(a, F+8*j+2*k, F+8*j+2*k+1, X+4*j+k)
    def pkadd(d, x, y, neg=False, bc=None):
        if LNPK:
            m = ""
            if bc == 0: m += " op_sel_hi:[1,0]"
            if neg: m += " neg_lo:[0,1] neg_hi:[0,1]"
            a(f"v_pk_add_f32 v[{d}:{d+1}], v[{x}:{x+1}], v[{y}:{y+1}]{m}")
        else:
            op = "v_sub_f32" if neg else "v_add_f32"
            a(f"{op} v{d}, v{x}, v{y}"); a(f"{op} v{d+1}, v{x+1}, v{y if bc == 0 else y+1}")
    pkadd(6, F, F+2); pkadd(96, F+4, F+6)
    for i in range(4, 28):
        r = 6 if i % 2 == 0 else 96
        pkadd(r, r, F+2*i)
    a("v_add_f32 v6, v6, v7")
    a("v_add_f32 v96, v96, v97")
    a("v_add_f32 v6, v6, v96")
    def red8(r):
        a(f"v_add_f32_dpp v{r}, v{r}, v{r} quad_perm:[1,0,3,2] row_mask:0xf bank_mask:0xf")
        a(f"v_add_f32_dpp v{r}, v{r}, v{r} quad_perm:[2,3,0,1] row_mask:0xf bank_mask:0xf")
        a(f"v_add_f32_dpp v{r}, v{r}, v{r} row_half_mirror row_mask:0xf bank_mask:0xf")
    red8(6)
    a(f"s_mov_b32 s5, {f32bits(1.0/448):#x}")
    a("v_mul_f32 v6, s5, v6")
    bf_round(a, 98, 6)
    a("v_mov_b32 v7, v6")
    for i in range(4): a(f"v_mov_b32 v{106+i}, 0")
    for i in range(28):
        t = 100 + 2*(i % 2)
        acc = 106 + 2*(i % 2)
        pkadd(t, F+2*i, 6, neg=True)
        if LNPK: a(f"v_pk_fma_f32 v[{acc}:{acc+1}], v[{t}:{t+1}], v[{t}:{t+1}], v[{acc}:{acc+1}]")
        else:
            a(f"v_fmac_f32 v{acc}, v{t}, v{t}"); a(f"v_fmac_f32 v{acc+1}, v{t+1}, v{t+1}")
    a("v_add_f32 v106, v106, v107")
    a("v_add_f32 v108, v108, v109")
    a("v_add_f32 v7, v106, v108")
    red8(7)
    a("v_mul_f32 v7, s5, v7")
    bf_round(a, 7, 7)
    a(f"v_add_f32 v7, {f32bits(1e-5):#x}, v7")
    bf_round(a, 7, 7)
    a("v_sqrt_f32 v7, v7")
    bf_round(a, 99, 7)
    a("v_rcp_f32 v99, v99")
    a("s_lshl_b32 s6, s3, 9")
    a("v_lshlrev_b32 v100, 3, v104")
    a(f"buffer_store_dwordx2 v[98:99], v100, s[60:63], s6 offen {SC}")
    a("v_readfirstlane_b32 s7, v0")
    for j in range(7):
        for k in range(4):
            lo = F+8*j+2*k; d = X+4*j+k
            pkadd(lo, lo, 98, neg=True, bc=0)
            a(f"v_cvt_pk_bf16_f32 v{d}, v{lo}, v{lo+1}")
        for k in range(4):
            lo = F+8*j+2*k; d = X+4*j+k
            unpack(a, lo, lo+1, d)
            if LNPK: a(f"v_pk_mul_f32 v[{lo}:{lo+1}], v[{lo}:{lo+1}], v[98:99] op_sel:[0,1] op_sel_hi:[1,1]")
            else:
                a(f"v_mul_f32 v{lo}, v{lo}, v99"); a(f"v_mul_f32 v{lo+1}, v{lo+1}, v99")
            a(f"v_cvt_pk_bf16_f32 v{d}, v{lo}, v{lo+1}")
        a(f"ds_write_b128 v5, v[{X+4*j}:{X+4*j+3}] offset:{128*j}")
    a("v_and_b32 v104, 63, v0")
    a("v_lshrrev_b32 v2, 4, v104")
    a("v_bfe_u32 v3, v104, 2, 2")
    a("v_and_b32 v6, 3, v104")
    a("v_bfe_u32 v8, v0, 6, 1")
    a("v_lshl_add_u32 v7, v2, 3, v3")
    a("v_lshl_add_u32 v7, v8, 5, v7")
    a("v_mul_u32_u24 v7, 912, v7")
    a("v_lshl_add_u32 v7, v6, 3, v7")
    a("v_lshrrev_b32 v6, 7, v0")
    a("v_lshl_add_u32 v7, v6, 5, v7")
    a("v_and_b32 v3, 15, v104")
    a("v_lshl_add_u32 v3, v6, 4, v3")
    a("v_lshlrev_b32 v3, 6, v3")
    a("v_lshl_add_u32 v3, v2, 4, v3")
    a("v_mul_u32_u24 v8, 28672, v8")
    a("v_add_u32 v3, v3, v8")
    a("s_mul_i32 s6, s3, 57344")
    a("s_waitcnt vmcnt(0) lgkmcnt(0)")
    a("s_barrier")
    lab = a.newlabel("lnpub")
    a("s_cmp_lt_u32 s7, 64")
    a(f"s_cbranch_scc0 {lab}")
    a(f"s_lshl_b32 s5, s3, {FSH}")
    a(f"s_add_u32 s5, s5, {F_S}")
    publish(a, "s5", 100, 101)
    a.label(lab)
    stamp(a, 2)
    R = 40
    for t in range(7):
        r = R + 4*t
        a(f"ds_read_b64_tr_b16 v[{r}:{r+1}], v7 offset:{128*t}")
        a(f"ds_read_b64_tr_b16 v[{r+2}:{r+3}], v7 offset:{128*t+4*912}")
    for t in range(7):
        r = R + 4*t
        a(f"s_waitcnt lgkmcnt({2*(6-t)})")
        a(f"buffer_store_dwordx4 v[{r}:{r+3}], v3, s[56:59], s6 offen {SC}")
        if t < 6: a(f"v_add_u32 v3, {64*64}, v3")
    a("s_waitcnt vmcnt(0)")
    a("s_barrier")
    lab = a.newlabel("lnpub2")
    a("s_cmp_lt_u32 s7, 64")
    a(f"s_cbranch_scc0 {lab}")
    a(f"s_lshl_b32 s6, s3, {XSH}")
    a(f"s_add_u32 s6, s6, {F_X}")
    publish_rep(a, "s6", 100, 101, 4096)
    a.label(lab)

KG8_W = 32 * KG_RS
CNT = 81904
def body_kg(a):
    LOG2E = 1.4426950408889634
    SZP = 448*256*2
    P = 8
    if KGHI: a(f"s_setprio {KGHI}")
    for i, ptr in enumerate([18, 20, 22, 24, 26, 28]):
        srd(a, 48 + 4*i, ptr, SZP)
    a("s_lshl_b32 s4, s3, 10")
    a("v_lshlrev_b32 v3, 1, v0")
    for i in range(6):
        a(f"buffer_load_ushort v{P+i}, v3, s[{48+4*i}:{51+4*i}], s4 offen")
    a("s_lshl_b32 s5, s3, 2")
    a("s_load_dword s8, s[30:31], s5")
    a("s_load_dword s9, s[32:33], s5")
    W = 124
    def w2_load():
        srd(a, 72, 38, SZ_WF)
        a("v_lshrrev_b32 v116, 5, v0")
        a("v_and_b32 v117, 31, v0")
        a("s_lshr_b32 s4, s3, 1")
        a("s_mul_i32 s4, s4, 14336")
        a("s_and_b32 s5, s3, 1")
        a("s_mul_i32 s5, s5, 448")
        a("s_add_u32 s4, s4, s5")
        a("v_mul_u32_u24 v116, 896, v116")
        a("v_lshl_add_u32 v116, v117, 4, v116")
        a(f"buffer_load_dwordx4 v[{W}:{W+3}], v116, s[72:75], s4 offen")
    if W2MODE == 0: w2_load()
    a("v_lshrrev_b32 v4, 6, v0")
    a("v_and_b32 v2, 63, v0")
    a(f"v_mul_u32_u24 v6, {KG8_W}, v4")
    a("v_lshl_add_u32 v7, v2, 2, v6")
    a("v_and_b32 v3, 31, v2")
    a(f"v_mul_u32_u24 v3, {KG_RS}, v3")
    a("v_add_u32 v6, v6, v3")
    a("v_lshrrev_b32 v3, 5, v2")
    a("v_lshl_add_u32 v6, v3, 4, v6")
    a("v_readfirstlane_b32 s7, v4")
    BF = 16; ACC = 48; CH = 64; T = 108
    for i in range(16): a(f"v_mov_b32 v{ACC+i}, 0")
    fix_tag(a)
    a("s_mov_b32 s47, s9")
    a("v_lshrrev_b32 v4, 8, v0")
    a("v_mov_b32 v5, s8")
    a("v_lshlrev_b32 v3, 16, v5")
    a("v_and_b32 v5, 0xffff0000, v5")
    a("v_cmp_eq_u32 vcc, 0, v4")
    a("v_cndmask_b32 v5, v5, v3, vcc")
    a(f"v_mul_f32 v5, {f32bits(LOG2E):#x}, v5")
    a("v_exp_f32 v5, v5")
    bf_round(a, 5, 5)
    W2S = 8*KG8_W
    def w2_lds_write():
        a("v_lshrrev_b32 v3, 5, v0")
        a("v_and_b32 v4, 31, v0")
        a("v_mul_u32_u24 v3, 528, v3")
        a("v_lshl_add_u32 v3, v4, 4, v3")
        a(f"v_add_u32 v3, {W2S}, v3")
        a(f"ds_write_b128 v3, v[{W}:{W+3}]")
    def w2_frag_store():
        srd(a, 72, 44, SZ_WF, WS_W2F)
        a("v_lshrrev_b32 v4, 5, v2")
        a("v_bfe_u32 v3, v2, 2, 2")
        a("v_lshl_add_u32 v4, v4, 2, v3")
        a("v_mul_u32_u24 v4, 528, v4")
        a("v_bfe_u32 v3, v2, 4, 1")
        a("v_lshl_add_u32 v4, v3, 5, v4")
        a("v_and_b32 v3, 3, v2")
        a("v_lshl_add_u32 v4, v3, 3, v4")
        a("s_lshl_b32 s5, s7, 6")
        a(f"s_add_u32 s5, s5, {W2S}")
        a("v_add_u32 v4, s5, v4")
        labw = a.newlabel("kgw2")
        a("s_cmp_eq_u32 s7, 7")
        a(f"s_cbranch_scc1 {labw}")
        a(f"ds_read_b64_tr_b16 v[{W}:{W+1}], v4")
        a(f"ds_read_b64_tr_b16 v[{W+2}:{W+3}], v4 offset:{8*528}")
        a("s_and_b32 s5, s3, 1")
        a("s_mul_i32 s5, s5, 7")
        a("s_add_u32 s5, s5, s7")
        a("s_mul_i32 s5, s5, 112")
        a("s_lshr_b32 s6, s3, 1")
        a("s_add_u32 s5, s5, s6")
        a("s_lshl_b32 s5, s5, 10")
        a("v_lshlrev_b32 v3, 4, v2")
        a("s_waitcnt lgkmcnt(0)")
        if not NOW2ST: a(f"buffer_store_dwordx4 v[{W}:{W+3}], v3, s[72:75], s5 offen {W2SC}")
        a.label(labw)
    a("s_waitcnt vmcnt(0)")
    stamp(a, 1)
    if W2MODE == 0:
        w2_lds_write()
        for i in range(6): a(f"v_lshlrev_b32 v{P+i}, 16, v{P+i}")
        a("s_waitcnt lgkmcnt(0)")
        a("s_barrier")
        w2_frag_store()
    elif W2MODE == 3:
        w2_load()
        for i in range(6): a(f"v_lshlrev_b32 v{P+i}, 16, v{P+i}")
        a("s_waitcnt vmcnt(0)")
        w2_lds_write()
        a("s_waitcnt lgkmcnt(0)")
        a("s_barrier")
        w2_frag_store()
        a("s_waitcnt vmcnt(0)")
        a("s_barrier")
        labp3 = a.newlabel("kgpub3")
        a("s_cmp_eq_u32 s7, 0")
        a(f"s_cbranch_scc0 {labp3}")
        a("s_lshl_b32 s6, s3, 2")
        a(f"s_add_u32 s6, s6, {F_W}")
        publish(a, "s6", 116, 117)
        a.label(labp3)
        a("s_and_b32 s5, s2, 7")
        a("s_lshl_b32 s5, s5, 12")
        a(f"s_add_u32 s5, s5, {F_X}")
        global SLEEP
        sl = SLEEP; SLEEP = XSLEEP
        wg_wait(a, lambda: wait_flags(a, 32, "s5", 116, 117, compact=(XSH == 2)), wave=1)
        SLEEP = sl
    else:
        w2_load()
        for i in range(6): a(f"v_lshlrev_b32 v{P+i}, 16, v{P+i}")
    if NOKG: a("s_branch L_kg_skip")
    a(f"v_mul_f32 v14, v5, v{P}")
    a(f"v_mul_f32 v15, v5, v{P+1}")
    a(f"v_mul_f32 v14, {f32bits(LOG2E):#x}, v14")
    a("v_mul_f32 v15, 0.15915494, v15")
    a(f"v_mul_f32 v{P+2}, v5, v{P+2}")
    a(f"v_mul_f32 v{P+3}, v5, v{P+3}")
    regs = {}; nxt = [CH]
    def alloc(name):
        r = nxt[0]; nxt[0] += 2
        assert nxt[0] <= T, name
        regs[name] = (r, r + 1); return regs[name]
    def cmul(dst, x, w):
        (dr, di), (xr, xi), (wr, wi) = dst, x, w
        return [f"v_mul_f32 v{dr}, v{xi}, v{wi}", f"v_mul_f32 v{di}, v{xi}, v{wr}",
                f"v_fma_f32 v{dr}, v{xr}, v{wr}, -v{dr}", f"v_fma_f32 v{di}, v{xr}, v{wi}, v{di}"]
    tcount = [0, 0, 0, 0]; cur = [0]
    def emitrow(row, z, neg):
        t = T + 2*cur[0] + (tcount[cur[0]] % 2); tcount[cur[0]] += 1
        n = "-" if neg else ""
        return [f"v_cvt_pk_bf16_f32 v{t}, v{z[0]}, {n}v{z[1]}", f"ds_write_b32 v7, v{t} offset:{row*KG_RS}"]
    def direct(dst, tmul, tmp):
        (dr, di) = dst
        return [f"v_mul_f32 v{tmp}, {f32bits(float(tmul)):#x}, v14", f"v_mul_f32 v{tmp+1}, {f32bits(float(tmul)):#x}, v15",
                f"v_exp_f32 v{tmp}, v{tmp}", f"v_fract_f32 v{tmp+1}, v{tmp+1}",
                f"v_cos_f32 v{dr}, v{tmp+1}", f"v_sin_f32 v{di}, v{tmp+1}",
                f"v_mul_f32 v{dr}, v{dr}, v{tmp}", f"v_mul_f32 v{di}, v{di}, v{tmp}"]
    X0 = alloc("X0"); w1 = alloc("w1"); w8 = alloc("w8"); w256 = alloc("w256"); w512 = alloc("w512"); w1024 = alloc("w1024")
    w16 = alloc("w16"); ya = [alloc("ya0"), alloc("ya1")]; yb = [alloc("yb0"), alloc("yb1")]
    c0 = cmul(X0, (P+4, P+5), (P+2, P+3))
    for ins in interleave([direct(w8, 8, 86), direct(w16, 16, 88), direct(w1, 1, 90), direct(w256, 256, 92), c0]): a(ins)
    cur[0] = 2
    chY0 = [f"v_mov_b32 v{T+8}, 0x3f80", f"ds_write_b32 v7, v{T+8} offset:0"] + emitrow(2, w16, False)
    prev = w16
    for k, j in enumerate(range(4, 32, 2)):
        d = ya[k % 2]; chY0 += cmul(d, prev, w16) + emitrow(j, d, False); prev = d
    cur[0] = 3
    chY1 = emitrow(1, w8, False); prev = w8
    for k, j in enumerate(range(3, 32, 2)):
        d = yb[k % 2]; chY1 += cmul(d, prev, w16) + emitrow(j, d, False); prev = d
    X = {0: X0}
    for h in [8, 256, 264, 512, 520, 2, 4]: X[h] = alloc(f"X{h}")
    chP = cmul(w512, w256, w256) + cmul(X[8], X0, w8) + cmul(w1024, w512, w512) + cmul(X[256], X0, w256) + cmul(X[264], X[8], w256) + cmul(X[512], X0, w512) + cmul(X[520], X[8], w512)
    for ins in interleave([chY0, chY1, chP]): a(ins)
    if W2MODE == 2:
        a("s_waitcnt vmcnt(0)")
        w2_lds_write()
        a(f"v_mov_b32 v3, {CNT}")
        a("v_mov_b32 v4, 0")
        a("ds_write_b32 v3, v4")
        a("s_waitcnt lgkmcnt(0)")
        a("s_barrier")
        w2_frag_store()
    a("s_waitcnt lgkmcnt(0)")
    for ks in range(8):
        a(f"ds_read_b128 v[{BF+4*ks}:{BF+4*ks+3}], v6 offset:{ks*32}")
    t1, t2, t3, t4, t5 = w16, ya[0], ya[1], yb[0], yb[1]
    for h in [768, 776, 6]: X[h] = alloc(f"X{h}")
    cur[0] = 0
    chA = emitrow(KG_H[0], X0, True)
    chA += cmul(t1, X0, w1) + emitrow(KG_H[1], t1, True)
    chA += cmul(X[2], t1, w1) + emitrow(KG_H[2], X[2], True)
    chA += cmul(t1, X[2], w1) + emitrow(KG_H[3], t1, True)
    chA += cmul(X[4], t1, w1) + emitrow(KG_H[4], X[4], True)
    chA += cmul(t1, X[4], w1) + emitrow(KG_H[5], t1, True)
    chA += cmul(X[6], t1, w1) + emitrow(KG_H[6], X[6], True)
    chA += cmul(t1, X[6], w1) + emitrow(KG_H[7], t1, True)
    chA += cmul(t1, X[2], w256) + emitrow(KG_H[258], t1, True)
    chA += cmul(t1, X[6], w256) + emitrow(KG_H[262], t1, True)
    cur[0] = 1
    chB = emitrow(KG_H[256], X[256], True) + emitrow(KG_H[264], X[264], True) + emitrow(KG_H[512], X[512], True) + emitrow(KG_H[520], X[520], True)
    chB += cmul(X[768], X[256], w512) + emitrow(KG_H[768], X[768], True)
    chB += cmul(X[776], X[264], w512) + emitrow(KG_H[776], X[776], True)
    for i, (h, src) in enumerate([(1024, 0), (1032, 8), (1280, 256), (1288, 264)]):
        t = t2 if i % 2 == 0 else t3
        chB += cmul(t, X[src], w1024) + emitrow(KG_H[h], t, True)
    a("s_waitcnt lgkmcnt(0)")
    il = interleave([chA, chB])
    for ins in il[:W2CUT]: a(ins)
    if W2MODE == 2 and W2PUB == "count":
        a("s_waitcnt vmcnt(0) lgkmcnt(0)")
        a(f"v_mov_b32 v3, {CNT}")
        a("v_mov_b32 v4, 1")
        a("s_mov_b64 s[86:87], exec")
        a("s_mov_b64 exec, 1")
        a("ds_add_rtn_u32 v4, v3, v4")
        a("s_waitcnt lgkmcnt(0)")
        a("v_readfirstlane_b32 s5, v4")
        a("s_mov_b64 exec, s[86:87]")
        labq = a.newlabel("kgq")
        a("s_cmp_eq_u32 s5, 7")
        a(f"s_cbranch_scc0 {labq}")
        a("s_lshl_b32 s6, s3, 2")
        a(f"s_add_u32 s6, s6, {F_W}")
        publish(a, "s6", 3, 4)
        a.label(labq)
    if KGHI and W2MODE == 2: a("s_setprio 0")
    for ins in il[W2CUT:]: a(ins)
    cur[0] = 2
    chC2 = []
    for i, (h, src) in enumerate([(1536, 512), (1544, 520), (1792, 768), (1800, 776)]):
        t = t4 if i % 2 == 0 else t5
        chC2 += cmul(t, X[src], w1024) + emitrow(KG_H[h], t, True)
    cur[0] = 3
    chD = cmul(t2, X[4], w256) + emitrow(KG_H[260], t2, True) + cmul(t3, t2, w512) + emitrow(KG_H[772], t3, True)
    cur[0] = 0
    chE = cmul(t1, X[4], w512) + emitrow(KG_H[516], t1, True)
    for ins in interleave([chC2, chD, chE]): a(ins)
    AF = CH
    a("s_waitcnt lgkmcnt(0)")
    for ks in range(8):
        a(f"ds_read_b128 v[{AF+4*ks}:{AF+4*ks+3}], v6 offset:{ks*32}")
    for ks in range(8):
        a(f"s_waitcnt lgkmcnt({7-ks})")
        a(f"v_mfma_f32_32x32x16_bf16 v[{ACC}:{ACC+15}], v[{AF+4*ks}:{AF+4*ks+3}], v[{BF+4*ks}:{BF+4*ks+3}], v[{ACC}:{ACC+15}]")
    if NOKG: a.label("L_kg_skip")
    if KGHI and W2MODE != 2 and KGLOW == 0: a("s_setprio 0")
    stamp(a, 2)
    def pubW():
        labp = a.newlabel("kgpub")
        a("s_cmp_eq_u32 s7, 0")
        a(f"s_cbranch_scc0 {labp}")
        a("s_lshl_b32 s6, s3, 2")
        a(f"s_add_u32 s6, s6, {F_W}")
        publish(a, "s6", 116, 117)
        a.label(labp)
    a("s_waitcnt vmcnt(0)")
    if W2MODE == 1:
        w2_lds_write()
        a("s_waitcnt lgkmcnt(0)")
    a("s_barrier")
    if W2MODE == 0 or (W2MODE == 2 and W2PUB == "barrier"): pubW()
    elif W2MODE == 1: w2_frag_store()
    a("s_and_b32 s9, s7, 3")
    a("s_lshr_b32 s10, s7, 2")
    a(f"s_mul_i32 s11, s10, {CV_CH}")
    a("v_lshlrev_b32 v4, 4, v2")
    a("v_add_u32 v4, s11, v4")
    lab1 = a.newlabel("kg_nw"); lab2 = a.newlabel("kg_w2"); lab3 = a.newlabel("kg_end")
    a("s_cmp_eq_u32 s9, 0")
    a(f"s_cbranch_scc1 {lab1}")
    a("s_sub_u32 s5, s9, 1")
    a("s_lshl_b32 s5, s5, 12")
    a("v_add_u32 v5, s5, v4")
    for q in range(4):
        a(f"ds_write_b128 v5, v[{ACC+4*q}:{ACC+4*q+3}] offset:{1024*q}")
    a.label(lab1)
    a("s_waitcnt lgkmcnt(0)" if W2MODE != 1 else "s_waitcnt vmcnt(0) lgkmcnt(0)")
    a("s_barrier")
    if W2MODE == 1: pubW()
    if KGHI and W2MODE != 2 and KGLOW == 1: a("s_setprio 0")
    a("s_cmp_eq_u32 s9, 0")
    a(f"s_cbranch_scc0 {lab3}")
    R = 64
    for j in range(3):
        for q in range(4):
            a(f"ds_read_b128 v[{R+16*j+4*q}:{R+16*j+4*q+3}], v4 offset:{4096*j+1024*q}")
    for j in range(3):
        a(f"s_waitcnt lgkmcnt({4*(2-j)})")
        for i in range(16): a(f"v_add_f32 v{ACC+i}, v{ACC+i}, v{R+16*j+i}")
    a("v_and_b32 v5, 31, v2")
    a("v_lshlrev_b32 v5, 4, v5")
    a(f"v_sub_u32 v6, {CV_K + 4080 - 3584}, v5")
    a("v_add_u32 v6, s11, v6")
    def pk(d, lo, hi): a(f"v_cvt_pk_bf16_f32 v{d}, v{ACC+lo}, v{ACC+hi}")
    def store(base, d): a(f"ds_write_b128 v6, v[{d}:{d+3}] offset:{3584 - 2*base}")
    O = 64
    a("s_mov_b64 s[10:11], exec")
    a("s_mov_b32 exec_lo, -1")
    a("s_mov_b32 exec_hi, 0")
    pk(O, 7, 6); pk(O+1, 5, 4); pk(O+2, 3, 2); pk(O+3, 1, 0); store(0, O)
    pk(O+4, 12, 11); pk(O+5, 10, 10); pk(O+6, 10, 9); pk(O+7, 8, 8); store(256, O+4)
    a("s_mov_b32 exec_lo, 0")
    a("s_mov_b32 exec_hi, -1")
    for b in range(2):
        o = O + 8 + 4*b; r0 = 3*b
        pk(o, r0+2, r0+2); pk(o+1, r0+1, r0+1); pk(o+2, r0+1, r0); pk(o+3, r0, r0); store(512 + 256*b, o)
    a("v_and_b32 v5, 1, v2")
    a("v_cmp_eq_u32 vcc, 0, v5")
    for b in range(4):
        o = O + 16 + 4*b; r0 = 6 + 2*b
        a(f"v_cndmask_b32 v{O+40}, v{ACC+r0+1}, v{ACC+r0}, vcc")
        pk(o, r0+1, r0+1)
        a(f"v_cvt_pk_bf16_f32 v{o+1}, v{ACC+r0+1}, v{O+40}")
        pk(o+2, r0, r0); pk(o+3, r0, r0); store(1024 + 256*b, o)
    a("s_mov_b64 exec, s[10:11]")
    a.label(lab3)
    a("s_waitcnt lgkmcnt(0)")
    a("s_barrier")
    stamp(a, 3)

def body_cv(a):
    srd(a, 48, 44, SZ_X, WS_XNT)
    srd(a, 56, 44, SZ_X, WS_AOUT)
    a("v_lshrrev_b32 v12, 8, v0")
    a("v_and_b32 v2, 255, v0")
    a(f"v_mul_u32_u24 v5, {CV_CH}, v12")
    for i in range(4): a(f"v_mov_b32 v{48+i}, 0")
    a("v_lshl_add_u32 v6, v2, 4, v5")
    a("v_cmp_gt_u32 vcc, 140, v2")
    a("s_and_saveexec_b64 s[10:11], vcc")
    for rho in range(4):
        a(f"ds_write_b128 v6, v[48:51] offset:{cvbase(rho)}")
    a("s_mov_b64 exec, s[10:11]")
    a("v_cmp_gt_u32 vcc, 16, v2")
    a("s_and_saveexec_b64 s[10:11], vcc")
    a(f"ds_write_b128 v6, v[48:51] offset:{CV_K+4096}")
    a("s_mov_b64 exec, s[10:11]")
    a("s_and_b32 s5, s2, 7")
    a("s_lshl_b32 s5, s5, 12")
    a(f"s_add_u32 s5, s5, {F_X}")
    if W2MODE != 3: wg_wait(a, lambda: wait_flags(a, 32, "s5", 3, 4, compact=(XSH == 2)) if "X" not in SKIPW else None)
    stamp(a, 4)
    a("s_lshl_b32 s4, s3, 7")
    a("v_lshrrev_b32 v3, 2, v2")
    a("v_mul_u32_u24 v3, 28672, v3")
    a("v_lshl_add_u32 v3, v12, 6, v3")
    a("v_and_b32 v4, 3, v2")
    a("v_lshl_add_u32 v3, v4, 4, v3")
    D = 16
    a(f"buffer_load_dwordx4 v[{D}:{D+3}], v3, s[48:51], s4 offen {SC}")
    a("v_cmp_eq_u32 vcc, 0, v4")
    a(f"v_mov_b32 v4, {-8 & 0xffffffff:#x}")
    a(f"v_mov_b32 v6, {(56 - 28672) & 0xffffffff:#x}")
    a("v_cndmask_b32 v4, v4, v6, vcc")
    a("v_add_u32 v4, v4, v3")
    a("v_max_i32 v4, 0, v4")
    a(f"buffer_load_dwordx2 v[{D+4}:{D+5}], v4, s[48:51], s4 offen {SC}")
    a("s_lshl_b32 s4, s3, 13")
    a("v_lshrrev_b32 v7, 4, v2")
    a(f"v_mul_u32_u24 v7, {CV_BS}, v7")
    a("v_and_b32 v8, 15, v2")
    a("v_lshl_add_u32 v7, v8, 4, v7")
    a("v_add_u32 v7, v7, v5")
    a("v_cmp_eq_u32 vcc, 0, v2")
    a("v_and_b32 v13, 63, v0")
    a("v_bfe_u32 v14, v0, 6, 2")
    a("v_lshrrev_b32 v3, 5, v13")
    a("v_and_b32 v4, 3, v13")
    a("v_add_u32 v4, 1, v4")
    a("v_and_b32 v4, 3, v4")
    a("v_bfe_u32 v6, v13, 2, 3")
    a(f"v_mul_u32_u24 v8, {CV_CS}, v4")
    a(f"v_mul_u32_u24 v9, {CV_BS}, v6")
    a("v_add3_u32 v8, v8, v9, v5")
    a("v_lshl_add_u32 v8, v3, 4, v8")
    a(f"v_mul_u32_u24 v9, {2*CV_BS}, v14")
    a("v_sub_u32 v8, v8, v9")
    a("v_and_b32 v4, 31, v13")
    a("v_lshlrev_b32 v9, 3, v4")
    a("v_sub_u32 v9, v5, v9")
    a("v_lshl_add_u32 v9, v3, 4, v9")
    a("v_lshlrev_b32 v10, 9, v14")
    a("v_sub_u32 v9, v9, v10")
    a(f"v_add_u32 v9, {CV_K + 2*(2156-240)}, v9")
    a("v_add_u32 v10, -2048, v9")
    A0 = 64; A1 = 80
    for i in range(32): a(f"v_mov_b32 v{A0+i}, 0")
    a("s_waitcnt vmcnt(0)")
    a(f"v_cndmask_b32_e64 v{D+4}, v{D+4}, 0, vcc")
    a(f"v_cndmask_b32_e64 v{D+5}, v{D+5}, 0, vcc")
    d = D; p = d + 4; ob = 7*CV_BS; E = 52
    a(f"ds_write_b128 v7, v[{d}:{d+3}] offset:{cvbase(3)+ob}")
    a(f"v_mov_b32 v{E}, v{p+1}"); a(f"v_mov_b32 v{E+1}, v{d}"); a(f"v_mov_b32 v{E+2}, v{d+1}"); a(f"v_mov_b32 v{E+3}, v{d+2}")
    a(f"ds_write_b128 v7, v[{E}:{E+3}] offset:{cvbase(1)+ob}")
    a(f"v_alignbit_b32 v{E+4}, v{d}, v{p+1}, 16")
    a(f"v_alignbit_b32 v{E+5}, v{d+1}, v{d}, 16")
    a(f"v_alignbit_b32 v{E+6}, v{d+2}, v{d+1}, 16")
    a(f"v_alignbit_b32 v{E+7}, v{d+3}, v{d+2}, 16")
    a(f"ds_write_b128 v7, v[{E+4}:{E+7}] offset:{cvbase(2)+ob}")
    a(f"v_alignbit_b32 v{E+8}, v{p+1}, v{p}, 16")
    a(f"v_mov_b32 v{E+9}, v{E+4}"); a(f"v_mov_b32 v{E+10}, v{E+5}"); a(f"v_mov_b32 v{E+11}, v{E+6}")
    a(f"ds_write_b128 v7, v[{E+8}:{E+11}] offset:{cvbase(0)+ob}")
    a("s_waitcnt lgkmcnt(0)")
    a("s_barrier")
    stamp(a, 5)
    NS = 3; NSTEP = 16
    def rdl(sp):
        S = 16 + 16*(sp % NS)
        z = 1008 - 16*sp
        ou = (z >> 7)*CV_BS + (z & 127)*2
        ok = 32*(15 - sp)
        return [f"ds_read_b128 v[{S}:{S+3}], v8 offset:{ou}",
                f"ds_read_b64 v[{S+8}:{S+9}], v9 offset:{ok}",
                f"ds_read_b64 v[{S+10}:{S+11}], v9 offset:{ok+8}",
                f"ds_read_b128 v[{S+4}:{S+7}], v8 offset:{ou+8*CV_BS}",
                f"ds_read_b64 v[{S+12}:{S+13}], v10 offset:{ok}",
                f"ds_read_b64 v[{S+14}:{S+15}], v10 offset:{ok+8}"]
    for ins in rdl(0) + rdl(1): a(ins)
    for sp in range(NSTEP if not NOCV else 1):
        a(f"s_waitcnt lgkmcnt({6 if sp < NSTEP-1 else 0})")
        S = 16 + 16*(sp % NS)
        R = rdl(sp + 2) if sp + 2 < NSTEP else []
        M = [f"v_mfma_f32_32x32x16_bf16 v[{A0}:{A0+15}], v[{S}:{S+3}], v[{S+8}:{S+11}], v[{A0}:{A0+15}]",
             f"v_mfma_f32_32x32x16_bf16 v[{A1}:{A1+15}], v[{S+4}:{S+7}], v[{S+8}:{S+11}], v[{A1}:{A1+15}]",
             f"v_mfma_f32_32x32x16_bf16 v[{A1}:{A1+15}], v[{S}:{S+3}], v[{S+12}:{S+15}], v[{A1}:{A1+15}]"]
        for i in range(3):
            a(M[i])
            for ins in R[2*i:2*i+2]: a(ins)
    stamp(a, 6)
    a("v_lshlrev_b32 v3, 4, v13")
    a("v_add_u32 v3, v3, v5")
    a("s_and_b32 s9, s7, 3")
    a("s_barrier")
    OWN = 40
    for p_ in range(4):
        lo = a.newlabel("cvo"); le = a.newlabel("cve")
        a(f"s_cmp_eq_u32 s9, {p_}")
        a(f"s_cbranch_scc1 {lo}")
        a(f"s_cmp_gt_u32 s9, {p_}")
        a("s_cselect_b32 s5, 1, 0")
        a("s_sub_u32 s5, s9, s5")
        a("s_lshl_b32 s5, s5, 11")
        a("v_add_u32 v4, s5, v3")
        for j in range(2):
            a(f"ds_write_b128 v4, v[{A0+8*p_+4*j}:{A0+8*p_+4*j+3}] offset:{CV_CS+p_*3*2048+j*1024}")
        a(f"s_branch {le}")
        a.label(lo)
        for k in range(8): a(f"v_mov_b32 v{OWN+k}, v{A0+8*p_+k}")
        a.label(le)
    a("s_mul_i32 s5, s9, 6144")
    a("v_add_u32 v4, s5, v3")
    a("v_lshrrev_b32 v3, 5, v13")
    a("v_lshrrev_b32 v6, 1, v14")
    a("v_and_b32 v7, 1, v14")
    a("v_lshl_add_u32 v6, v6, 3, v3")
    a("v_lshl_add_u32 v6, v7, 2, v6")
    a(f"v_mul_u32_u24 v7, {CV_BS}, v6")
    a("v_and_b32 v9, 31, v13")
    a("v_lshl_add_u32 v7, v9, 3, v7")
    a("v_add_u32 v7, v7, v5")
    a("v_lshlrev_b32 v8, 12, v12")
    a("v_lshl_add_u32 v8, v6, 8, v8")
    a("v_lshl_add_u32 v8, v9, 3, v8")
    a("v_mov_b32 v10, s47")
    a("v_lshlrev_b32 v11, 16, v10")
    a("v_and_b32 v10, 0xffff0000, v10")
    a("v_cmp_eq_u32 vcc, 0, v12")
    a("v_cndmask_b32 v10, v10, v11, vcc")
    a("s_waitcnt lgkmcnt(0)")
    a("s_barrier")
    R = 16
    for src in range(3):
        for j in range(2):
            a(f"ds_read_b128 v[{R+8*src+4*j}:{R+8*src+4*j+3}], v4 offset:{CV_CS+src*2048+j*1024}")
    X = 48
    for qq in range(2): a(f"ds_read_b64 v[{X+2*qq}:{X+2*qq+1}], v7 offset:{cvbase(3) + (7+2*qq)*CV_BS}")
    a("s_waitcnt lgkmcnt(4)")
    for k in range(8): a(f"v_add_f32 v{R+k}, v{R+k}, v{R+8+k}")
    a("s_waitcnt lgkmcnt(2)")
    for k in range(8): a(f"v_add_f32 v{R+16+k}, v{R+16+k}, v{OWN+k}")
    for k in range(8): a(f"v_add_f32 v{R+k}, v{R+k}, v{R+16+k}")
    a("s_waitcnt lgkmcnt(0)")
    T = 56
    for qq in range(2):
        for hh in range(2):
            y0 = R + 4*qq + 2*hh; x = X + 2*qq + hh
            a(f"v_cvt_pk_bf16_f32 v{T}, v{y0}, v{y0+1}")
            unpack(a, T+1, T+2, T)
            unpack(a, T+3, T+4, x)
            a(f"v_mul_f32 v{T+3}, v{T+3}, v10")
            a(f"v_mul_f32 v{T+4}, v{T+4}, v10")
            a(f"v_cvt_pk_bf16_f32 v{T}, v{T+3}, v{T+4}")
            unpack(a, T+3, T+4, T)
            a(f"v_add_f32 v{T+1}, v{T+1}, v{T+3}")
            a(f"v_add_f32 v{T+2}, v{T+2}, v{T+4}")
            a(f"v_cvt_pk_bf16_f32 v{64+2*qq+hh}, v{T+1}, v{T+2}")
        a(f"buffer_store_dwordx2 v[{64+2*qq}:{64+2*qq+1}], v8, s[56:59], s4 offen offset:{512*qq} {SC}")
    a("s_waitcnt vmcnt(0)")
    a("s_barrier")
    lab = a.newlabel("cvpub")
    a("s_cmp_eq_u32 s7, 0")
    a(f"s_cbranch_scc0 {lab}")
    a("s_lshl_b32 s6, s3, 2")
    a(f"s_add_u32 s6, s6, {F_C}")
    publish_rep(a, "s6", 3, 4, 1024)
    a.label(lab)

def build_kernel():
    a = Asm()
    load_ptrs(a)
    def common():
        a("s_waitcnt lgkmcnt(0)")
        srd(a, 80, 44, FL_SZ, WS_FL)
        a("s_load_dword s46, s[80:81], 0")
    a("s_cmp_lt_u32 s2, 224")
    a("s_cbranch_scc1 L_B")
    a("s_cmp_lt_u32 s2, 256")
    a("s_cbranch_scc1 L_LN")
    a("s_cmp_ge_u32 s2, 480")
    a("s_cbranch_scc1 L_end")
    common()
    a("s_sub_u32 s3, s2, 256")
    kern.PROF_V = 1; stamp(a, 0)
    body_g1(a)
    if not NOP2: body_g2(a)
    if kern.PROF: a("s_waitcnt vmcnt(0)")
    stamp(a, 9); prof_flush(a, 0, 4)
    if kern.PROF and WAVEPROF:
        lab = a.newlabel("wp")
        a("s_cmp_lt_u32 s2, 384")
        a(f"s_cbranch_scc0 {lab}")
        srd(a, 76, 44, 0x100000, kern.WS_PROF)
        a("s_sub_u32 s4, s2, 256")
        a("s_lshl_b32 s4, s4, 3")
        a("s_add_u32 s4, s4, s7")
        a("s_add_u32 s4, s4, 1024")
        a("s_lshl_b32 s4, s4, 7")
        a("v_and_b32 v2, 31, v0")
        a("v_lshlrev_b32 v2, 2, v2")
        a("s_mov_b64 exec, 0xffffffff")
        a(f"buffer_store_dword v{kern.PROF_V}, v2, s[76:79], s4 offen")
        a.label(lab)
    a.label("L_end")
    a("s_endpgm")
    a.label("L_B")
    common()
    a("s_mov_b32 s3, s2")
    kern.PROF_V = 123; stamp(a, 0)
    body_kg(a)
    kern.PROF_V = 1
    if kern.PROF: a("v_mov_b32 v1, v123")
    if not NOP2: body_cv(a)
    stamp(a, 7); prof_flush(a, 0, 4)
    a("s_endpgm")
    a.label("L_LN")
    common()
    a("s_sub_u32 s3, s2, 224")
    kern.PROF_V = 123; stamp(a, 0)
    body_ln(a)
    stamp(a, 3); prof_flush(a, 0, 4)
    a("s_endpgm")
    a.label("L_code_end")
    a("s_endpgm")
    return a

HEADER = """; out = x + S4conv(LN(x)) + LN(x)*Dskip + relu(LN(x) @ w1) @ w2     (bf16 in/out, fp32 accumulation)
; @launch grid=(480,1,1) block=(512,1,1) lds=81920
.amdgcn_target "amdgcn-amd-amdhsa--gfx950"
"""
def build(path):
    a = build_kernel()
    t, d, n = kernel_text(NAME, a, 128)
    hdr = HEADER
    open(path, "w").write(hdr + t + d)
    print(f"{path}: {len(t.splitlines())} lines, {n} hazard pads")

BASE = dict(FSH=7, XSH=2, W2PUB="count", KGHI=2, W2CUT=40, WPOLL=4, HPUB=7, LDPRIO=0, G1PRIO=1, G2PRIO=0, G2RING=True, NEARLY=5, W2MODE=1, XSLEEP=16, KGLOW=1, EARLYG2=True, TLATE=1, NINIT=4, TOUCH1=True, EPRIO=3, HSLEEP=4)
if __name__ == "__main__":
    globals().update(BASE)
    CODEPF = True
    build("final.s")
```
